```python
import torch

def _softmax(x, axis=-1):
    return torch.softmax(x, dim=axis)

def _gelu(x):
    return torch.nn.functional.gelu(x, approximate='tanh')

def _silu(x):
    return torch.nn.functional.silu(x)

def _sigmoid(x):
    return torch.sigmoid(x)

def _layernorm(x, axis=-1, eps=1e-05):
    m = x.mean(dim=axis, keepdim=True)
    v = x.var(dim=axis, keepdim=True, unbiased=False)
    return (x - m) / torch.sqrt(v + eps)

def _scatter_add(tgt, idx, src, axis=0):
    return tgt.clone().index_add_(axis, idx, src)

def _segment_sum(src, seg, n):
    out = torch.zeros((n,) + src.shape[1:], dtype=src.dtype)
    return out.index_add_(0, seg, src)

def _pad(x, pw):
    flat = tuple((v for pair in reversed(pw) for v in pair))
    return torch.nn.functional.pad(x, flat)
kernel_name = 'adaLN_cond__gqa_block_cached__moe_arch_mod__prompt'

def setup_inputs():

    _w = lambda a: (lambda t: t.to(torch.bfloat16) if t.is_floating_point() else t)(torch.as_tensor(a))

    def _A_setup():
        B, Sq, D = (1, 2048, 448)
        Hq, Hkv, Sk, Dh = (16, 8, 2048, 256)
        assert Hq % Hkv == 0, (Hq, Hkv)
        return {'x': _w((lambda *s: torch.randn(*s, dtype=torch.bfloat16) * 0.1)(B, Sq, D)), 'k_cache': _w((lambda *s: torch.randn(*s, dtype=torch.bfloat16) * 0.8)(B, Hkv, Sk, Dh)), 'v_cache': _w((lambda *s: torch.randn(*s, dtype=torch.bfloat16) * 1.6)(B, Hkv, Sk, Dh)), 'wq': _w((lambda *s: torch.randn(*s, dtype=torch.bfloat16) * 0.8)(D, Hq * Dh) * D ** (-0.5)), 'wo': _w((lambda *s: torch.randn(*s, dtype=torch.bfloat16) * 1.6)(Hq * Dh, D) * (Hq * Dh) ** (-0.5))}
    _A_in = _A_setup()

    def _B_setup():
        B, S, D, F, C = (1, 2048, 448, 1792, 8)
        return {'x': _w((lambda *s: torch.randn(*s, dtype=torch.bfloat16) * 0.1)(B, S, D)), 'w_r': _w((lambda *s: torch.randn(*s, dtype=torch.bfloat16) * 0.2)(D)), 'w_gate': _w((lambda *s: torch.randn(*s, dtype=torch.bfloat16) * 0.2)(D, F)), 'w_up': _w((lambda *s: torch.randn(*s, dtype=torch.bfloat16) * 0.2)(D, F)), 'w_down': _w((lambda *s: torch.randn(*s, dtype=torch.bfloat16) * 0.2)(F, D))}
    _B_in = _B_setup()
    return {'A_x': _A_in['x'], 'A_k_cache': _A_in['k_cache'], 'A_v_cache': _A_in['v_cache'], 'A_wq': _A_in['wq'], 'A_wo': _A_in['wo'], 'B_x': _B_in['x'], 'B_w_r': _B_in['w_r'], 'B_w_gate': _B_in['w_gate'], 'B_w_up': _B_in['w_up'], 'B_w_down': _B_in['w_down'], 'c': _w((lambda *s: torch.randn(*s, dtype=torch.bfloat16) * 0.2)(1, 448) * 8.0), 'w_mod': _w((lambda *s: torch.randn(*s, dtype=torch.bfloat16) * 0.2)(448, 6 * 448) * 448 ** (-0.5) * 8.0)}

def reference(A_x, A_k_cache, A_v_cache, A_wq, A_wo, B_x, B_w_r, B_w_gate, B_w_up, B_w_down, c, w_mod):

    def _A_ref(x, k_cache, v_cache, wq, wo):
        B, Sq, D = x.shape
        Hq, Dh = (16, 256)
        Hkv = k_cache.shape[1]
        rep = Hq // Hkv
        q = (lambda x, *d: x.permute(*d))((x @ wq).reshape(B, Sq, Hq, Dh), 0, 2, 1, 3)
        k = (lambda x, n, axis: torch.repeat_interleave(x, n, dim=axis))(k_cache, rep, axis=1)
        v = (lambda x, n, axis: torch.repeat_interleave(x, n, dim=axis))(v_cache, rep, axis=1)
        scores = torch.einsum('bhqd,bhkd->bhqk', q, k) * Dh ** (-0.5)
        p = _softmax(scores, axis=-1)
        o = torch.einsum('bhqk,bhkd->bhqd', p, v)
        return (lambda x, *d: x.permute(*d))(o, 0, 2, 1, 3).reshape(B, Sq, Hq * Dh) @ wo

    def _B_ref(x, w_r, w_gate, w_up, w_down):
        B, S, D = x.shape
        C = 8
        r = x @ w_r
        idx = torch.argsort(-r, axis=-1)[:, :C]
        idx_e = (lambda x, n, axis: torch.repeat_interleave(x, n, dim=axis))(idx.reshape(B, C, 1), D, axis=2)
        x_sel = (lambda x, i, axis: torch.take_along_dim(x, i, dim=axis))(x, idx_e, axis=1)
        g = _silu(x_sel @ w_gate)
        u = x_sel @ w_up
        y = g * u @ w_down
        r_sel = _sigmoid((lambda x, i, axis: torch.take_along_dim(x, i, dim=axis))(r, idx, axis=1))
        y = y * r_sel.reshape(B, C, 1)
        b_off = (torch.arange(B) * S).reshape(B, 1)
        flat_idx = (idx + b_off).reshape(B * C)
        zero = (x * 0.0).reshape(B * S, D)
        upd = _scatter_add(zero, flat_idx, y.reshape(B * C, D), axis=0)
        return x + upd.reshape(B, S, D)
    x = A_x
    mod = (_silu(c) @ w_mod).reshape(c.shape[0], 6, 1, -1)
    sa, ca, ga, sb, cb, gb = (mod[:, 0].clone(), mod[:, 1].clone(), mod[:, 2].clone(), mod[:, 3].clone(), mod[:, 4].clone(), mod[:, 5].clone())
    h = _layernorm(x, axis=-1) * (1 + ca) + sa
    x = x + ga * _A_ref(h, A_k_cache, A_v_cache, A_wq, A_wo)
    h = _layernorm(x, axis=-1) * (1 + cb) + sb
    x = x + gb * _B_ref(h, B_w_r, B_w_gate, B_w_up, B_w_down)
    return x
```

```python
class Asm:
    def __init__(self):
        self.lines = []
        self.lds_seq = 0
        self.lds_done = 0
        self.tag_last = {}
        self.ninst = 0
        self.uid = 0
    def raw(self, s):
        self.lines.append(s)
    def c(self, s):
        self.lines.append("  ; " + s)
    def label(self, s):
        self.lines.append(s + ":")
    def i(self, s):
        self.lines.append("  " + s)
        self.ninst += 1
    def i_many(self, lst):
        for s in lst:
            self.i(s)
    def lds(self, s, tag=None):
        self.i(s)
        self.lds_seq += 1
        if tag is not None:
            self.tag_last[tag] = self.lds_seq
    def need(self, *tags):
        idx = 0
        for t in tags:
            idx = max(idx, self.tag_last[t])
        if idx > self.lds_done:
            n = self.lds_seq - idx
            assert n <= 15, f"lgkmcnt {n} too large"
            self.i(f"s_waitcnt lgkmcnt({n})")
            self.lds_done = idx
    def lds_drain(self):
        self.i("s_waitcnt lgkmcnt(0)")
        self.lds_done = self.lds_seq
    def lds_state(self):
        out = {}
        for t, v in self.tag_last.items():
            if v > self.lds_done:
                out[t] = self.lds_seq - v
        return out
    def newlabel(self, base):
        self.uid += 1
        return f"{base}_{self.uid}"
    def text(self):
        return "\n".join(self.lines) + "\n"

def vr(a, n=1):
    return f"v{a}" if n == 1 else f"v[{a}:{a+n-1}]"
def ar(a, n=1):
    return f"a{a}" if n == 1 else f"a[{a}:{a+n-1}]"
def sr(a, n=1):
    return f"s{a}" if n == 1 else f"s[{a}:{a+n-1}]"

def kdesc(name, vgpr=512, accum=256, sgpr=102, extra=""):
    return f""".section .rodata,"a"
.p2align 6
.amdhsa_kernel {name}
  .amdhsa_next_free_vgpr {vgpr}
  .amdhsa_next_free_sgpr {sgpr}
  .amdhsa_accum_offset {accum}
  .amdhsa_group_segment_fixed_size 0
  .amdhsa_kernarg_size 120
  .amdhsa_user_sgpr_count 2
  .amdhsa_user_sgpr_kernarg_segment_ptr 1
  .amdhsa_system_sgpr_workgroup_id_x 1
  .amdhsa_float_denorm_mode_32 3
{extra}.end_amdhsa_kernel
.text
"""
```

```python
from asmlib import *

S = 16
NEGM = 48
P0, P1 = 64, 80
FR = 96
E = 112
PS = 116
L = 120
DK = 124
DV = 8
KB = 12
VB = 13
TA, TB = 4, 5
Q = 128
SRD_K = 4; SRD_V = 8
S_KOFF = 20; S_VOFF = 21; S_W = 22; S_KM0 = 23; S_CNT = 24; S_THR = 25; S_KOFF2 = 26; S_VOFF2 = 27; S_VM0 = 28
S_RET = 30
KSLOT = 16896; VSLOT = 17408
KRING = 0; VRING = 4 * KSLOT
def kslot_off(par): return par * 2 * KSLOT
def vslot_off(par): return par * 2 * VSLOT

class Cfg:
    PF = 3
    dma = True; valu = True; barrier = True
    xa = 48; xb = 112
    dmaKh_gaps = [2, 10, 18, 26, 34, 42]
    dmaV_gaps = [50, 58, 66, 74, 82, 90, 98, 106]
    dmaKt_gaps = [114, 122]
    ladd_gaps = [27, 29, 30, 31]
    s0_start = 35; s1_start = 67
    cap = 2

def O(db, qb): return ar(16 * db + 4 * qb, 4)
def Sreg(kb, qb): return S + 16 * kb + 4 * qb

def frag_reads(f, par_k, par_v):
    r = FR + 4 * (f % 4)
    if f < 16:
        kb, ks = f >> 3, f & 7
        off = kslot_off(par_k) + kb * 8 * 1056 + 64 * ks
        return [f"ds_read_b128 {vr(r, 4)}, {vr(KB)} offset:{off}"]
    db = f - 16
    out = []
    for r2 in range(2):
        off = vslot_off(par_v) + r2 * 8 * 1088 + 64 * (db >> 1)
        out.append(f"ds_read_b64_tr_b16 {vr(r + 2 * r2, 2)}, {vr(VB + (db & 1))} offset:{off}")
    return out

def softmax_ops(kb, Pn):
    ops = []
    groups = [(qb, h) for qb in range(4) for h in range(2)]
    n = len(groups)
    for p in range(n + 1):
        if p < n:
            qb, h = groups[p]
            e = E + 2 * (p & 1); s = Sreg(kb, qb) + 2 * h
            ops.append((2, f"v_exp_f32 {vr(e)}, {vr(s)}"))
            ops.append((2, f"v_exp_f32 {vr(e + 1)}, {vr(s + 1)}"))
        if p >= 1:
            qb, h = groups[p - 1]
            e = E + 2 * ((p - 1) & 1)
            ps = vr(PS + qb)
            if kb == 0 and h == 0:
                ops.append((1, f"v_add_f32 {ps}, {vr(e)}, {vr(e + 1)}"))
            else:
                ops.append((1, f"v_add_f32 {ps}, {ps}, {vr(e)}"))
                ops.append((1, f"v_add_f32 {ps}, {ps}, {vr(e + 1)}"))
            ops.append((1, f"v_cvt_pk_bf16_f32 {vr(Pn + 4 * qb + 2 * kb + h)}, {vr(e)}, {vr(e + 1)}"))
    return ops

def dma_tile(kind, par):
    if kind == 'K':
        base = KRING + kslot_off(par); m0b = S_KM0; srd = SRD_K; so = (S_KOFF, S_KOFF2); vo = DK; stride = 1056; tile = 16384
    else:
        base = VRING + vslot_off(par); m0b = S_VM0; srd = SRD_V; so = (S_VOFF, S_VOFF2); vo = DV; stride = 1088; tile = 16384
    groups = []
    for i in range(8):
        pre = []
        if i % 4 == 0:
            pre.append(f"s_add_u32 m0, {sr(m0b)}, {base + (i // 4) * 4 * stride}")
        ins = [f"buffer_load_dwordx4 {vr(vo + (i & 3))}, {sr(srd, 4)}, {sr(so[i // 4])} offen offset:{stride * (i & 3)} lds"]
        post = []
        if i % 4 == 3:
            post.append(f"s_add_u32 {sr(so[i // 4])}, {sr(so[i // 4])}, {tile}")
        groups.append((pre, ins, post))
    return groups

class Core16:
    def __init__(self, a, cfg):
        self.a = a; self.cfg = cfg
        self.fidx = 0
        self.tramps = []
        self.pend_l = False

    def issue_frag(self, absf, f, par_k, par_v):
        for s in frag_reads(f, par_k, par_v):
            self.a.lds(s, ("f", absf))

    def prefetch_first(self, t, start=0):
        for j in range(self.cfg.PF):
            self.issue_frag(self.fidx + j, start + j, (t + 1) & 1, t & 1)

    def iteration(self, t, first=False, do_A=True, do_soft=True, dmaV=True, dmaKh=True, dmaKt=True, nxt='A', barA=True, barB=True,
                  vmA=8, vmB=8):
        a, cfg = self.a, self.cfg
        PF = cfg.PF
        Pu = (P0, P1)[t & 1]; Pn = (P0, P1)[(t + 1) & 1]
        pk, pv = (t + 1) & 1, t & 1
        f0 = 0 if do_A else 16
        nfr = 32 - f0
        plan = {}
        def put(g, s): plan.setdefault(g, []).append(s)
        if cfg.barrier:
            if barA and do_A:
                put(cfg.xa, f"s_waitcnt vmcnt({vmA})"); put(cfg.xa, "s_barrier")
            if barB:
                put(cfg.xb, f"s_waitcnt vmcnt({vmB})"); put(cfg.xb, "s_barrier")
        if cfg.dma:
            jobs = []
            if dmaKh: jobs.append((dma_tile('K', t & 1)[2:], cfg.dmaKh_gaps))
            if dmaV: jobs.append((dma_tile('V', (t + 1) & 1), cfg.dmaV_gaps))
            if dmaKt: jobs.append((dma_tile('K', (t + 1) & 1)[:2], cfg.dmaKt_gaps))
            for groups, gaps in jobs:
                for (pre, ins, post), g in zip(groups, gaps):
                    for s in pre: put(g - 1, s)
                    for s in ins + post: put(g, s)
        if self.pend_l:
            if do_A:
                for qb, g in enumerate(cfg.ladd_gaps): put(g, f"v_add_f32 {vr(L + qb)}, {vr(L + qb)}, {vr(PS + qb)}")
            else:
                for qb in range(4): put(64 + 2 * qb + 1, f"v_add_f32 {vr(L + qb)}, {vr(L + qb)}, {vr(PS + qb)}")
            self.pend_l = False
        vq0 = softmax_ops(0, Pn) if (do_soft and cfg.valu) else []
        vq1 = softmax_ops(1, Pn) if (do_soft and cfg.valu) else []
        pend_reads = []
        for i in range(4 * f0, 128):
            f = i >> 2; qb = i & 3
            absf = self.fidx + (f - f0)
            if qb == 0:
                a.need(("f", absf))
            fr = vr(FR + 4 * (f % 4), 4)
            if f < 16:
                kb, ks = f >> 3, f & 7
                d = vr(Sreg(kb, qb), 4)
                cin = vr(NEGM + 4 * qb, 4) if ks == 0 else d
                a.i(f"v_mfma_f32_16x16x32_bf16 {d}, {fr}, {vr(Q + 32 * qb + 4 * ks, 4)}, {cin}")
            else:
                db = f - 16
                cin = "0" if first else O(db, qb)
                a.i(f"v_mfma_f32_16x16x32_bf16 {O(db, qb)}, {fr}, {vr(Pu + 4 * qb, 4)}, {cin}")
            budget = cfg.cap
            if qb == 0:
                j = f + PF
                if j < 32:
                    pend_reads += [(s, ("f", self.fidx + j - f0)) for s in frag_reads(j, pk, pv)]
                elif nxt == 'A':
                    pend_reads += [(s, ("f", self.fidx + nfr + j - 32)) for s in frag_reads(j - 32, (t + 2) & 1, (t + 1) & 1)]
                elif nxt == 'B':
                    pend_reads += [(s, ("f", self.fidx + nfr + j - 32)) for s in frag_reads(16 + j - 32, 0, (t + 1) & 1)]
            for s in plan.pop(i, []):
                a.i(s); budget -= 1
            while pend_reads and budget >= 1:
                s, tag = pend_reads.pop(0)
                a.lds(s, tag); budget -= 1
            if qb == 3: budget -= 1
            for vq, st in ((vq0, cfg.s0_start), (vq1, cfg.s1_start)):
                if vq is vq1 and vq0: continue
                while vq and i >= st and budget >= vq[0][0]:
                    c, s = vq.pop(0); budget -= c
                    a.i(s)
        for s, tag in pend_reads: a.lds(s, tag)
        left = len(vq0) + len(vq1)
        if left: a.c(f"leftover softmax ops: {left}")
        for c, s in vq0 + vq1:
            a.i(s)
        assert not plan, plan
        if do_soft and cfg.valu:
            tr = a.newlabel("TR"); ret = a.newlabel("RET")
            a.i(f"v_max3_f32 {vr(TA)}, {vr(PS)}, {vr(PS + 1)}, {vr(PS + 2)}")
            a.i(f"v_max_f32 {vr(TA)}, {vr(TA)}, {vr(PS + 3)}")
            a.i(f"v_cmp_lt_f32 vcc, {sr(S_THR)}, {vr(TA)}")
            a.i(f"s_cbranch_vccnz {tr}")
            a.label(ret)
            self.pend_l = True
            self.tramps.append((tr, ret, (t + 1) & 1))
        self.fidx += nfr

    def rowmax4(self, qb, dst, tmp):
        a = self.a
        s0, s1 = Sreg(0, qb), Sreg(1, qb)
        a.i(f"v_max3_f32 {vr(dst)}, {vr(s0)}, {vr(s0 + 1)}, {vr(s0 + 2)}")
        a.i(f"v_max3_f32 {vr(dst)}, {vr(dst)}, {vr(s0 + 3)}, {vr(s1)}")
        a.i(f"v_max3_f32 {vr(dst)}, {vr(dst)}, {vr(s1 + 1)}, {vr(s1 + 2)}")
        a.i(f"v_max_f32 {vr(dst)}, {vr(dst)}, {vr(s1 + 3)}")
        self.xreduce(dst, tmp, "v_max_f32")

    def xreduce(self, dst, tmp, op):
        a = self.a
        a.i(f"v_mov_b32 {vr(tmp)}, {vr(dst)}")
        a.i("s_nop 1")
        a.i(f"v_permlane32_swap_b32 {vr(dst)}, {vr(tmp)}")
        a.i("s_nop 1")
        a.i(f"{op} {vr(dst)}, {vr(dst)}, {vr(tmp)}")
        a.i(f"v_mov_b32 {vr(tmp)}, {vr(dst)}")
        a.i("s_nop 1")
        a.i(f"v_permlane16_swap_b32 {vr(dst)}, {vr(tmp)}")
        a.i("s_nop 1")
        a.i(f"{op} {vr(dst)}, {vr(dst)}, {vr(tmp)}")

    def emit_rare(self):
        a = self.a
        for tr, ret, par in self.tramps:
            a.label(tr)
            a.i(f"s_call_b64 {sr(S_RET, 2)}, FB_{par}")
            a.i(f"s_branch {ret}")
        for par in sorted({p for _, _, p in self.tramps}):
            Pn = (P0, P1)[par]
            a.label(f"FB_{par}")
            a.i("s_nop 15")
            for qb in range(4):
                self.rowmax4(qb, TA, TB)
                a.i(f"v_max_f32 {vr(TA)}, 0, {vr(TA)}")
                a.i(f"v_exp_f32 {vr(TB)}, -{vr(TA)}")
                a.i("s_nop 0")
                for db in range(16):
                    for r in range(4):
                        x = 16 * db + 4 * qb + r
                        a.i(f"v_accvgpr_read_b32 {vr(6)}, {ar(x)}")
                        a.i(f"v_mul_f32 {vr(6)}, {vr(TB)}, {vr(6)}")
                        a.i(f"v_accvgpr_write_b32 {ar(x)}, {vr(6)}")
                a.i(f"v_mul_f32 {vr(L + qb)}, {vr(TB)}, {vr(L + qb)}")
                for r in range(4):
                    a.i(f"v_sub_f32 {vr(NEGM + 4 * qb + r)}, {vr(NEGM + 4 * qb + r)}, {vr(TA)}")
                    for kb in range(2):
                        a.i(f"v_sub_f32 {vr(Sreg(kb, qb) + r)}, {vr(Sreg(kb, qb) + r)}, {vr(TA)}")
            for kb in range(2):
                for c, s in softmax_ops(kb, Pn):
                    a.i(s)
                    if c == 2: a.i("s_nop 0")
            a.i("s_nop 3")
            a.i(f"s_setpc_b64 {sr(S_RET, 2)}")
```

```python
from asmlib import *
from core16 import *
import core16 as c16
from kern_small import (srd, kstart, bf_lo, bf_hi, f2u, WS_A1, WS_PART, WS_SIZE)

SRD_X = 12
SRD_WS = 16
SRD_WQ = 68
S_KH = 32; S_RG = 33; S_G = 34; S_QW = 35
T0, T1, T2, T3 = 36, 37, 38, 39
S_WOFF = 40; S_WOFF2 = 41; S_WM0 = 42

WT = 33792
PHYS = [2 * WT, 1 * WT, 0 * WT, 3 * WT]
HB = 3 * WT
HSTR = 912
MODB = 160256
QX = 96256; QSTR = 528
ST = 153600
XB = 0
OX = 0; OSTR = 1040
WOT = 28672
WOSLOT = [67584, 67584 + WOT, 67584 + 2 * WOT, 0, WOT]
TB = 0; TSTR = 912

DBG = {}

def k1_setup(a):
    a.i("s_load_dwordx2 s[44:45], s[0:1], 0")
    a.i("s_load_dwordx4 s[48:51], s[0:1], 8")
    a.i("s_load_dwordx4 s[52:55], s[0:1], 24")
    a.i("s_load_dwordx2 s[56:57], s[0:1], 112")
    a.i("v_lshrrev_b32 v1, 6, v0"); a.i("s_nop 0")
    a.i(f"v_readfirstlane_b32 {sr(S_W)}, v1")
    a.i("v_and_b32 v0, 63, v0")
    a.i(f"s_and_b32 {sr(S_KH)}, {sr(S_W)}, 1")
    a.i(f"s_lshr_b32 {sr(S_RG)}, {sr(S_W)}, 1")
    a.i(f"s_and_b32 {sr(S_G)}, s2, 7")
    a.i(f"s_lshr_b32 {sr(S_QW)}, s2, 3")

def k1_srds(a):
    a.i("s_waitcnt lgkmcnt(0)")
    srd(a, SRD_X, 44, 2048 * 896)
    srd(a, SRD_WS, 56, 0x2000000)
    a.i(f"s_lshl_b32 {sr(T0)}, {sr(S_G)}, 10")
    a.i(f"s_add_u32 {sr(SRD_WQ)}, s52, {sr(T0)}"); a.i(f"s_addc_u32 {sr(SRD_WQ + 1)}, s53, 0")
    a.i(f"s_sub_u32 {sr(SRD_WQ + 2)}, {448 * 8192}, {sr(T0)}"); a.i(f"s_mov_b32 {sr(SRD_WQ + 3)}, 0x20000")
    a.i(f"s_lshl_b32 {sr(T0)}, {sr(S_G)}, 20")
    for d, p, bias in ((SRD_K, 48, 128), (SRD_V, 50, 256)):
        a.i(f"s_add_u32 {sr(d)}, {sr(p)}, {sr(T0)}"); a.i(f"s_addc_u32 {sr(d + 1)}, {sr(p + 1)}, 0")
        a.i(f"s_sub_u32 {sr(d)}, {sr(d)}, {bias}"); a.i(f"s_subb_u32 {sr(d + 1)}, {sr(d + 1)}, 0")
        a.i(f"s_mov_b32 {sr(d + 2)}, {0x100000 + bias}"); a.i(f"s_mov_b32 {sr(d + 3)}, 0x20000")

WQV = 4
def wq_setup(a):
    a.i(f"s_lshl_b32 {sr(T0)}, {sr(S_KH)}, 3"); a.i(f"v_xor_b32 v1, {sr(T0)}, v0")
    a.i("v_lshlrev_b32 v1, 4, v1")
    a.i(f"s_lshl_b32 {sr(T0)}, {sr(S_W)}, 16")
    a.i(f"v_add_u32 v1, {sr(T0)}, v1")
    for j in range(4):
        a.i(f"v_add_u32 {vr(WQV + j)}, {j * (8192 - 1056)}, v1")
    a.i(f"s_mul_i32 {sr(S_WM0)}, {sr(S_W)}, 8448")
    a.i(f"s_mov_b32 {sr(S_WOFF)}, 0"); a.i(f"s_mov_b32 {sr(S_WOFF2)}, {4 * 8192}")

def wq_tile(s):
    base = PHYS[s % 4]
    groups = []
    for i in range(8):
        pre = [f"s_add_u32 m0, {sr(S_WM0)}, {base + (i // 4) * 4224}"] if i % 4 == 0 else []
        so = (S_WOFF, S_WOFF2)[i // 4]
        ins = [f"buffer_load_dwordx4 {vr(WQV + (i & 3))}, {sr(SRD_WQ, 4)}, {sr(so)} offen offset:{1056 * (i & 3)} lds"]
        post = [f"s_add_u32 {sr(so)}, {sr(so)}, {32 * 8192}"] if i % 4 == 3 else []
        groups.append((pre, ins, post))
    return groups

def emit_groups(a, groups):
    for pre, ins, post in groups:
        for s in pre: a.i(s); a.i("s_nop 0")
        for s in ins + post: a.i(s)

def attn_setup(a):
    kh, rg = sr(S_KH), sr(S_RG)
    t = sr(T0)
    a.i(f"s_mul_i32 {sr(S_KM0)}, {kh}, {KSLOT}"); a.i(f"s_mul_i32 {t}, {rg}, {8 * 1056}"); a.i(f"s_add_u32 {sr(S_KM0)}, {sr(S_KM0)}, {t}")
    a.i(f"s_mul_i32 {sr(S_VM0)}, {kh}, {VSLOT}"); a.i(f"s_mul_i32 {t}, {rg}, {8 * 1088}"); a.i(f"s_add_u32 {sr(S_VM0)}, {sr(S_VM0)}, {t}")
    a.i(f"s_lshl_b32 {sr(S_KOFF)}, {kh}, 19"); a.i(f"s_add_u32 {sr(S_KOFF2)}, {sr(S_KOFF)}, 4096")
    a.i(f"s_mov_b32 {sr(S_VOFF)}, {sr(S_KOFF)}"); a.i(f"s_mov_b32 {sr(S_VOFF2)}, {sr(S_KOFF2)}")
    a.i(f"s_mov_b32 {sr(S_THR)}, 0x46800000")
    a.i("v_lshrrev_b32 v2, 5, v0"); a.i("v_and_b32 v1, 31, v0")
    a.i("v_xor_b32 v3, v1, v2"); a.i("v_lshlrev_b32 v3, 4, v3"); a.i("v_lshl_add_u32 v3, v2, 9, v3")
    a.i(f"s_lshl_b32 {t}, {rg}, 13"); a.i(f"v_add_u32 v3, {t}, v3")
    for j in range(4): a.i(f"v_add_u32 {vr(DK + j)}, {128 - 32 * j}, v3")

def attn_setup2(a):
    kh, rg = sr(S_KH), sr(S_RG); t = sr(T0)
    a.i("v_and_b32 v1, 15, v0"); a.i("v_lshrrev_b32 v2, 4, v0"); a.i("v_and_b32 v3, 1, v0")
    a.i("v_lshrrev_b32 v4, 1, v1"); a.i("v_mul_u32_u24 v4, 1056, v4"); a.i("v_lshl_add_u32 v4, v3, 9, v4")
    a.i("v_xor_b32 v5, v2, v3"); a.i("v_lshl_add_u32 v4, v5, 4, v4")
    a.i(f"s_mul_i32 {t}, {kh}, {KSLOT}"); a.i(f"v_add_u32 {vr(KB)}, {t}, v4")
    a.i("v_bfe_u32 v3, v0, 2, 1"); a.i("v_bfe_u32 v4, v0, 3, 1"); a.i("v_lshl_add_u32 v4, v2, 1, v4")
    a.i("v_mul_u32_u24 v4, 1088, v4"); a.i("v_lshl_add_u32 v4, v3, 9, v4")
    a.i("v_and_b32 v5, 3, v0"); a.i("v_lshl_add_u32 v4, v5, 3, v4")
    a.i(f"s_mul_i32 {t}, {kh}, {VSLOT}"); a.i(f"s_add_u32 {t}, {t}, {VRING}")
    a.i(f"v_add_u32 v4, {t}, v4")
    a.i(f"v_lshl_add_u32 {vr(VB)}, v3, 5, v4")
    a.i("v_xor_b32 v5, 1, v3"); a.i(f"v_lshl_add_u32 {vr(VB + 1)}, v5, 5, v4")
    a.i("v_lshrrev_b32 v2, 5, v0"); a.i("v_and_b32 v1, 31, v0")
    a.i("v_lshlrev_b32 v3, 1, v2"); a.i("v_xor_b32 v3, v1, v3"); a.i("v_lshlrev_b32 v3, 4, v3"); a.i("v_lshl_add_u32 v3, v2, 9, v3")
    a.i(f"s_lshl_b32 {t}, {rg}, 13"); a.i(f"v_add_u32 v3, {t}, v3")
    for j in range(4): a.i(f"v_add_u32 {vr(DV + j)}, {256 - 64 * j}, v3")

XF = 16
XR = 128
MV = 184
def prologue(a):
    a.i("v_lshrrev_b32 v1, 2, v0"); a.i("v_and_b32 v2, 3, v0")
    a.i(f"s_lshl_b32 {sr(T0)}, {sr(S_QW)}, 6"); a.i(f"s_lshl_b32 {sr(T1)}, {sr(S_W)}, 4"); a.i(f"s_add_u32 {sr(T0)}, {sr(T0)}, {sr(T1)}")
    a.i(f"v_add_u32 v3, {sr(T0)}, v1"); a.i("v_mul_u32_u24 v3, 896, v3"); a.i("v_lshl_add_u32 v3, v2, 4, v3")
    for i in range(14):
        a.i(f"buffer_load_dwordx4 {vr(XR + 4 * i, 4)}, v3, {sr(SRD_X, 4)}, 0 offen offset:{64 * i}")
    a.i("v_lshlrev_b32 v8, 4, v0")
    a.i(f"s_lshl_b32 {sr(T0)}, {sr(S_W)}, 10"); a.i(f"s_add_u32 m0, {sr(T0)}, {MODB}")
    a.i(f"s_cmp_eq_u32 {sr(S_W)}, 3"); a.i("s_cselect_b32 exec_hi, 0, -1")
    a.i(f"buffer_load_dwordx4 v8, {sr(SRD_WS, 4)}, {sr(T0)} offen lds")
    a.i("s_mov_b32 exec_hi, -1")
    wq_setup(a)
    for s in range(3): emit_groups(a, wq_tile(s))
    a.i(f"s_lshl_b32 {sr(T0)}, {sr(S_QW)}, 2"); a.i(f"s_add_u32 {sr(T0)}, {sr(T0)}, {sr(S_W)}"); a.i(f"s_lshl_b32 {sr(T0)}, {sr(T0)}, 13")
    a.i("v_lshlrev_b32 v9, 7, v0"); a.i(f"v_add_u32 v9, 256, v9")
    a.i(f"buffer_load_dword v10, v9, {sr(SRD_K, 4)}, {sr(T0)} offen")
    a.i(f"buffer_load_dword v11, v9, {sr(SRD_V, 4)}, {sr(T0)} offen")
    a.i("s_waitcnt vmcnt(27)")
    for i in range(14):
        for j in range(4):
            bf_lo(a, XF + 8 * i + 2 * j, XR + 4 * i + j); bf_hi(a, XF + 8 * i + 2 * j + 1, XR + 4 * i + j)
    a.i(f"v_pk_add_f32 v[12:13], {vr(XF, 2)}, {vr(XF + 2, 2)}")
    a.i(f"v_pk_add_f32 v[14:15], {vr(XF + 4, 2)}, {vr(XF + 6, 2)}")
    for k in range(8, 112, 4):
        a.i(f"v_pk_add_f32 v[12:13], v[12:13], {vr(XF + k, 2)}")
        a.i(f"v_pk_add_f32 v[14:15], v[14:15], {vr(XF + k + 2, 2)}")
    a.i("v_pk_add_f32 v[12:13], v[12:13], v[14:15]")
    a.i("v_add_f32 v12, v12, v13")
    def quad_sum(v):
        for ctl in ("quad_perm:[1,0,3,2]", "quad_perm:[2,3,0,1]"):
            a.i("s_nop 1"); a.i(f"v_add_f32_dpp {vr(v)}, {vr(v)}, {vr(v)} {ctl} row_mask:0xf bank_mask:0xf")
    quad_sum(12)
    a.i(f"v_mul_f32 v12, {hex(f2u(-1.0 / 448))}, v12")
    for k in range(0, 112, 2):
        a.i(f"v_pk_add_f32 {vr(XF + k, 2)}, {vr(XF + k, 2)}, v[12:13] op_sel_hi:[1,0]")
    a.i(f"v_pk_mul_f32 v[14:15], {vr(XF, 2)}, {vr(XF, 2)}")
    a.i(f"v_pk_mul_f32 v[2:3], {vr(XF + 2, 2)}, {vr(XF + 2, 2)}")
    for k in range(4, 112, 4):
        a.i(f"v_pk_fma_f32 v[14:15], {vr(XF + k, 2)}, {vr(XF + k, 2)}, v[14:15]")
        a.i(f"v_pk_fma_f32 v[2:3], {vr(XF + k + 2, 2)}, {vr(XF + k + 2, 2)}, v[2:3]")
    a.i("v_pk_add_f32 v[14:15], v[14:15], v[2:3]")
    a.i("v_add_f32 v14, v14, v15")
    quad_sum(14)
    a.i(f"v_mul_f32 v14, {hex(f2u(1.0 / 448))}, v14"); a.i(f"v_add_f32 v14, {hex(f2u(1e-5))}, v14")
    a.i("v_rsq_f32 v14, v14")
    a.i("s_waitcnt vmcnt(26)"); a.i("s_barrier")
    a.i("v_and_b32 v2, 3, v0"); a.i("v_lshlrev_b32 v2, 5, v2"); a.i(f"v_add_u32 v2, {MODB}, v2")
    def mv_read(i):
        b = MV + 16 * (i & 1)
        for k in range(2):
            a.lds(f"ds_read_b128 {vr(b + 4 * k, 4)}, v2 offset:{128 * i + 16 * k}", ("mv", i))
            a.lds(f"ds_read_b128 {vr(b + 8 + 4 * k, 4)}, v2 offset:{1792 + 128 * i + 16 * k}", ("mv", i))
    mv_read(0)
    for i in range(14):
        if i + 1 < 14: mv_read(i + 1)
        a.need(("mv", i))
        b = MV + 16 * (i & 1)
        for k in range(0, 8, 2):
            x = XF + 8 * i + k
            a.i(f"v_pk_mul_f32 {vr(x, 2)}, {vr(x, 2)}, v[14:15] op_sel_hi:[1,0]")
            a.i(f"v_pk_fma_f32 {vr(x, 2)}, {vr(x, 2)}, {vr(b + k, 2)}, {vr(b + 8 + k, 2)}")
            a.i(f"v_cvt_pk_bf16_f32 {vr(XR + 4 * i + k // 2)}, {vr(x)}, {vr(x + 1)}")
    a.i("v_lshrrev_b32 v1, 2, v0"); a.i(f"s_lshl_b32 {sr(T0)}, {sr(S_W)}, 4"); a.i(f"v_add_u32 v1, {sr(T0)}, v1")
    a.i(f"v_mul_u32_u24 v1, {HSTR}, v1"); a.i("v_and_b32 v2, 3, v0"); a.i("v_lshl_add_u32 v1, v2, 4, v1"); a.i(f"v_add_u32 v1, {HB}, v1")
    for i in range(14):
        a.lds(f"ds_write_b128 v1, {vr(XR + 4 * i, 4)} offset:{64 * i}")
    a.lds_drain(); a.i("s_barrier")
    a.i("v_and_b32 v1, 15, v0"); a.i(f"v_mul_u32_u24 v1, {HSTR}, v1"); a.i("v_lshrrev_b32 v2, 4, v0"); a.i("v_lshl_add_u32 v1, v2, 4, v1")
    a.i(f"v_add_u32 v1, {HB}, v1")
    for ks in range(14):
        for qb in range(4):
            a.lds(f"ds_read_b128 {ar((ks * 4 + qb) * 4, 4)}, v1 offset:{16 * HSTR * qb + 64 * ks}")
        if ks % 3 == 2: a.lds_drain()
    a.lds_drain()

WA = 8
WAH = 12
QACC = 128
def qproj(a):
    attn_setup(a)
    a.i("v_lshrrev_b32 v1, 4, v0"); a.i("v_bfe_u32 v2, v0, 2, 2"); a.i("v_lshl_add_u32 v2, v1, 3, v2"); a.i("v_mul_u32_u24 v2, 1056, v2")
    a.i("v_and_b32 v3, 3, v0"); a.i("v_lshl_add_u32 v2, v3, 3, v2")
    a.i(f"s_lshl_b32 {sr(T0)}, {sr(S_W)}, 8")
    a.i(f"v_add_u32 v2, {sr(T0)}, v2")
    a.i("v_and_b32 v3, 1, v1"); a.i("v_lshlrev_b32 v3, 7, v3")
    a.i(f"v_add_u32 {vr(WA)}, v2, v3"); a.i(f"v_sub_u32 {vr(WA + 1)}, v2, v3")
    a.i(f"v_add_u32 {vr(WAH)}, {2 * WT}, {vr(WA)}"); a.i(f"v_add_u32 {vr(WAH + 1)}, {2 * WT}, {vr(WA + 1)}")
    a.i("s_waitcnt vmcnt(18)"); a.i("s_barrier")
    PF = 3
    def fread(absf):
        s, db = absf // 8, absf % 8
        ph = PHYS[s % 4]
        breg, off = (WA, ph) if ph < 2 * WT else (WAH, ph - 2 * WT)
        breg += db >> 2
        r = FR + 4 * (absf % 4)
        return [(f"ds_read_b64_tr_b16 {vr(r + 2 * r2, 2)}, {vr(breg)} offset:{off + 4224 * r2 + 32 * db}", ("wf", absf)) for r2 in range(2)]
    for f in range(PF):
        for s, tag in fread(f): a.lds(s, tag)
    pend = []
    for s in range(14):
        plan = {}
        def put(g, t): plan.setdefault(g, []).append(t)
        if s + 1 < 14:
            vm = 10 if s < 2 else 8
            if s >= 11: vm = {11: 8, 12: 8}[s]
            put(1, f"s_waitcnt vmcnt({vm})"); put(1, "s_barrier")
        else:
            put(1, "s_barrier")
        groups = None
        if s + 3 < 14: groups = wq_tile(s + 3)
        elif s == 11: groups = dma_tile('K', 0)
        if groups:
            for (pre, ins, post), g in zip(groups, [3, 6, 10, 14, 18, 22, 26, 30]):
                for t in pre: put(g - 1, t)
                for t in ins + post: put(g, t)
        for i in range(32):
            db, qb = i >> 2, i & 3
            absf = 8 * s + db
            if qb == 0: a.need(("wf", absf))
            acc = vr(QACC + 16 * db + 4 * qb, 4)
            a.i(f"v_mfma_f32_16x16x32_bf16 {acc}, {vr(FR + 4 * (absf % 4), 4)}, {ar((s * 4 + qb) * 4, 4)}, {'0' if s == 0 else acc}")
            if qb == 0 and absf + PF < 8 * 14: pend += fread(absf + PF)
            for t in plan.pop(i, []): a.i(t)
            k = 0
            while pend and k < 2:
                t, tag = pend.pop(0); a.lds(t, tag); k += 1
        assert not plan

def qexchange(a):
    a.i("s_nop 7")
    a.i("v_and_b32 v1, 15, v0"); a.i(f"v_mul_u32_u24 v1, {QSTR}, v1"); a.i("v_lshrrev_b32 v2, 4, v0"); a.i("v_lshl_add_u32 v3, v2, 3, v1")
    a.i(f"s_mul_i32 {sr(T0)}, {sr(S_RG)}, {64 * QSTR}"); a.i(f"s_add_u32 {sr(T0)}, {sr(T0)}, {QX}")
    a.i(f"s_lshl_b32 {sr(T1)}, {sr(S_KH)}, 8"); a.i(f"s_add_u32 {sr(T1)}, {sr(T1)}, {sr(T0)}")
    a.i(f"v_add_u32 v3, {sr(T1)}, v3")
    n = 0
    for db in range(8):
        for qb in range(4):
            x = QACC + 16 * db + 4 * qb
            t = 96 + 2 * (n % 8); n += 1
            a.i(f"v_cvt_pk_bf16_f32 {vr(t)}, {vr(x)}, {vr(x + 1)}")
            a.i(f"v_cvt_pk_bf16_f32 {vr(t + 1)}, {vr(x + 2)}, {vr(x + 3)}")
            a.lds(f"ds_write_b64 v3, {vr(t, 2)} offset:{16 * QSTR * qb + 32 * db}")
    a.lds_drain(); a.i("s_barrier")
    emit_groups(a, dma_tile('K', 1))
    a.i("v_lshl_add_u32 v3, v2, 4, v1"); a.i(f"v_add_u32 v3, {sr(T0)}, v3")
    for qb in range(4):
        for ks in range(8):
            a.lds(f"ds_read_b128 {vr(Q + 32 * qb + 4 * ks, 4)}, v3 offset:{16 * QSTR * qb + 64 * ks}")
        a.lds_drain()
    attn_setup2(a)
    a.i("s_waitcnt vmcnt(8)"); a.i("s_barrier")
    emit_groups(a, dma_tile('V', 0))

def attention(a, cfg):
    core = Core16(a, cfg)
    for f in range(16):
        for s in frag_reads(f, 0, 0): a.lds(s)
        if f % 4 == 3:
            a.lds_drain()
            for f2 in range(f - 3, f + 1):
                kb, ks = f2 >> 3, f2 & 7
                for qb in range(4):
                    d = vr(Sreg(kb, qb), 4)
                    a.i(f"v_mfma_f32_16x16x32_bf16 {d}, {vr(FR + 4 * (f2 % 4), 4)}, {vr(Q + 32 * qb + 4 * ks, 4)}, {'0' if ks == 0 else d}")
    a.i("s_nop 7")
    for qb in range(4):
        core.rowmax4(qb, TA, TB_)
        for r in range(4):
            a.i(f"v_sub_f32 {vr(NEGM + 4 * qb + r)}, 0, {vr(TA)}")
            for kb in range(2):
                a.i(f"v_sub_f32 {vr(Sreg(kb, qb) + r)}, {vr(Sreg(kb, qb) + r)}, {vr(TA)}")
        a.i(f"v_mov_b32 {vr(L + qb)}, 0")
    for kb in range(2):
        for c, s in softmax_ops(kb, P0):
            a.i(s)
            if c == 2: a.i("s_nop 0")
    for qb in range(4):
        a.i(f"v_add_f32 {vr(L + qb)}, {vr(L + qb)}, {vr(PS + qb)}")
    a.i("s_waitcnt vmcnt(8)"); a.i("s_barrier")
    emit_groups(a, dma_tile('K', 0)[:2])
    core.prefetch_first(0)
    core.iteration(0, first=True)
    a.i(f"s_mov_b32 {sr(S_CNT)}, 14")
    st0 = a.lds_state(); base0 = core.fidx
    st0 = {k: v for k, v in st0.items() if k[0] == 'f'}
    a.lds_done = a.tag_last[("f", core.fidx)] - 1
    a.raw(".p2align 3")
    a.label("K1_LOOP")
    core.pend_l = True
    core.iteration(1); core.iteration(2)
    a.i(f"s_sub_u32 {sr(S_CNT)}, {sr(S_CNT)}, 1")
    a.i(f"s_cmp_lg_u32 {sr(S_CNT)}, 0")
    a.i("s_cbranch_scc1 K1_LOOP")
    st1 = {k: v for k, v in a.lds_state().items() if k[0] == 'f'}
    rel0 = {k[1] - base0: v for k, v in st0.items()}; rel1 = {k[1] - core.fidx: v for k, v in st1.items()}
    assert all(rel0.get(k) == v for k, v in rel1.items()), (rel0, rel1)
    core.iteration(1, dmaKt=False)
    core.iteration(2, dmaKh=False, dmaKt=False, nxt='B', vmA=0, vmB=0)
    core.iteration(3, do_A=False, do_soft=False, dmaV=False, dmaKh=False, dmaKt=False, nxt=None, barB=False)
    return core

TB_ = c16.TB

def merge(a, core):
    W = 16
    a.i("s_nop 7")
    for qb in range(4): core.xreduce(L + qb, TA, "v_add_f32")
    a.i("v_lshlrev_b32 v1, 2, v0"); a.i(f"s_lshl_b32 {sr(T0)}, {sr(S_W)}, 11"); a.i(f"s_add_u32 {sr(T1)}, {sr(T0)}, {ST}")
    a.i(f"v_add_u32 v2, {sr(T1)}, v1")
    for qb in range(4):
        a.lds(f"ds_write_b32 v2, {vr(NEGM + 4 * qb)} offset:{256 * qb}")
        a.lds(f"ds_write_b32 v2, {vr(L + qb)} offset:{1024 + 256 * qb}")
    a.lds_drain(); a.i("s_barrier")
    wo_setup(a)
    for s in range(3): emit_groups(a, wo_tile(s))
    a.i(f"s_xor_b32 {sr(T0)}, {sr(T0)}, 2048"); a.i(f"s_add_u32 {sr(T1)}, {sr(T0)}, {ST}")
    a.i(f"v_add_u32 v2, {sr(T1)}, v1")
    for qb in range(4):
        a.lds(f"ds_read_b32 {vr(16 + qb)}, v2 offset:{256 * qb}")
        a.lds(f"ds_read_b32 {vr(20 + qb)}, v2 offset:{1024 + 256 * qb}")
    a.lds_drain()
    for qb in range(4):
        no, np_ = NEGM + 4 * qb, 16 + qb
        a.i(f"v_min_f32 v4, {vr(no)}, {vr(np_)}")
        a.i(f"v_sub_f32 v5, v4, {vr(no)}"); a.i("v_exp_f32 v5, v5")
        a.i(f"v_sub_f32 v6, v4, {vr(np_)}"); a.i("v_exp_f32 v6, v6")
        a.i("s_nop 0")
        a.i(f"v_mul_f32 v7, v5, {vr(L + qb)}"); a.i(f"v_fmac_f32 v7, v6, {vr(20 + qb)}")
        a.i("v_rcp_f32 v7, v7"); a.i("s_nop 0")
        a.i(f"v_mul_f32 {vr(24 + 2 * qb)}, v5, v7"); a.i(f"v_mul_f32 {vr(32 + 2 * qb)}, v6, v7")
    a.i("v_lshlrev_b32 v1, 4, v0")
    a.i(f"s_lshl_b32 {sr(T0)}, {sr(S_W)}, 14"); a.i(f"v_add_u32 v2, {sr(T0)}, v1")
    a.i(f"s_xor_b32 {sr(T0)}, {sr(T0)}, 16384"); a.i(f"v_add_u32 v3, {sr(T0)}, v1")
    R = 48
    PK = 128
    a.i(f"s_cmp_eq_u32 {sr(S_KH)}, 0"); a.i("s_cbranch_scc0 K1_MG1")
    for kh in range(2):
        if kh == 1: a.label("K1_MG1")
        save = (a.lds_seq, a.lds_done)
        for rho in range(2):
            if rho == 1: a.i("s_barrier")
            for d4 in range(4):
                db = 8 * (1 - kh) + 4 * rho + d4
                for qb in range(4):
                    a.lds(f"ds_write_b128 v2, {ar(16 * db + 4 * qb, 4)} offset:{(d4 * 4 + qb) * 1024}")
            a.lds_drain(); a.i("s_barrier")
            for d4 in range(4):
                for qb in range(4):
                    a.lds(f"ds_read_b128 {vr(R + 4 * (d4 * 4 + qb), 4)}, v3 offset:{(d4 * 4 + qb) * 1024}", ("mg", kh, rho, d4, qb))
            for d4 in range(4):
                db = 8 * kh + 4 * rho + d4
                for qb in range(4):
                    x = 16 * db + 4 * qb; rr = R + 4 * (d4 * 4 + qb); o = 40 + 4 * ((d4 * 4 + qb) & 1)
                    for k in range(4): a.i(f"v_accvgpr_read_b32 {vr(o + k)}, {ar(x + k)}")
                    a.need(("mg", kh, rho, d4, qb))
                    for k in (0, 2):
                        a.i(f"v_pk_mul_f32 {vr(rr + k, 2)}, {vr(rr + k, 2)}, {vr(32 + 2 * qb, 2)} op_sel_hi:[1,0]")
                    for k in (0, 2):
                        a.i(f"v_pk_fma_f32 {vr(rr + k, 2)}, {vr(o + k, 2)}, {vr(24 + 2 * qb, 2)}, {vr(rr + k, 2)} op_sel_hi:[1,0,1]")
                    p = PK + 2 * ((4 * rho + d4) * 4 + qb)
                    a.i(f"v_cvt_pk_bf16_f32 {vr(p)}, {vr(rr)}, {vr(rr + 1)}")
                    a.i(f"v_cvt_pk_bf16_f32 {vr(p + 1)}, {vr(rr + 2)}, {vr(rr + 3)}")
        if kh == 0: a.i("s_branch K1_MGJ")
    a.label("K1_MGJ")
    a.i("s_barrier")
    a.i("v_and_b32 v1, 15, v0"); a.i(f"v_mul_u32_u24 v1, {OSTR}, v1"); a.i("v_lshrrev_b32 v2, 4, v0"); a.i("v_lshl_add_u32 v3, v2, 3, v1")
    a.i(f"s_lshl_b32 {sr(T0)}, {sr(S_W)}, 8"); a.i(f"v_add_u32 v3, {sr(T0)}, v3")
    for dbp in range(8):
        for qb in range(4):
            a.lds(f"ds_write_b64 v3, {vr(PK + 2 * (dbp * 4 + qb), 2)} offset:{OX + 16 * OSTR * qb + 32 * dbp}")
    a.lds_drain(); a.i("s_barrier")
    a.i("v_lshl_add_u32 v3, v2, 4, v1")
    for ks in range(16):
        for qb in range(4):
            a.lds(f"ds_read_b128 {ar((ks * 4 + qb) * 4, 4)}, v3 offset:{OX + 16 * OSTR * qb + 64 * ks}")
        if ks % 3 == 2: a.lds_drain()
    a.lds_drain()

WOV = 240
WOA = 16
OACC = 128
S_OOFF = 40; S_OM0 = 42
def wo_setup(a):
    a.i(f"s_mul_i32 {sr(T2)}, {sr(S_G)}, {512 * 896}")
    a.i(f"s_add_u32 {sr(SRD_X)}, s54, {sr(T2)}"); a.i(f"s_addc_u32 {sr(SRD_X + 1)}, s55, 0")
    a.i(f"s_mov_b32 {sr(SRD_X + 2)}, {512 * 896}"); a.i(f"s_mov_b32 {sr(SRD_X + 3)}, 0x20000")
    a.i(f"s_mul_i32 {sr(S_OM0)}, {sr(S_W)}, 7168"); a.i(f"s_mov_b32 {sr(S_OOFF)}, 0")
    for i in range(7):
        a.i(f"s_mul_i32 {sr(T2)}, {sr(S_W)}, 448"); a.i(f"s_add_u32 {sr(T2)}, {sr(T2)}, {64 * i}")
        a.i(f"v_add_u32 v4, {sr(T2)}, v0")
        a.i("v_mul_u32_u24 v5, 18725, v4"); a.i("v_lshrrev_b32 v5, 20, v5")
        a.i("v_bfe_u32 v6, v5, 1, 1"); a.i("v_bfe_u32 v7, v5, 3, 1"); a.i("v_lshl_or_b32 v6, v7, 1, v6")
        a.i("v_lshlrev_b32 v6, 5, v6"); a.i("v_lshlrev_b32 v4, 4, v4"); a.i("v_xor_b32 v4, v4, v6")
        a.i(f"v_subrev_u32 {vr(WOV + i)}, {1024 * (i & 3)}, v4")

def wo_tile(s):
    base = WOSLOT[s % 5]
    groups = []
    for i in range(7):
        pre = [f"s_add_u32 m0, {sr(S_OM0)}, {base + (i // 4) * 4096}"] if i % 4 == 0 else []
        ins = [f"buffer_load_dwordx4 {vr(WOV + i)}, {sr(SRD_X, 4)}, {sr(S_OOFF)} offen offset:{1024 * (i & 3)} lds"]
        post = [f"s_add_u32 {sr(S_OOFF)}, {sr(S_OOFF)}, {WOT}"] if i == 6 else []
        groups.append((pre, ins, post))
    return groups

def oproj(a):
    a.i("v_lshrrev_b32 v1, 4, v0"); a.i("v_bfe_u32 v2, v0, 2, 2"); a.i("v_lshl_add_u32 v2, v1, 3, v2"); a.i("v_mul_u32_u24 v2, 896, v2")
    a.i("v_and_b32 v3, 3, v0"); a.i("v_lshl_add_u32 v2, v3, 3, v2")
    a.i("v_bfe_u32 v3, v0, 3, 1"); a.i("v_bfe_u32 v4, v0, 4, 1"); a.i("v_lshl_or_b32 v3, v4, 1, v3")
    a.i(f"s_mul_i32 {sr(T0)}, {sr(S_W)}, 7")
    for j in range(7):
        a.i(f"s_add_u32 {sr(T1)}, {sr(T0)}, {j}")
        a.i(f"v_xor_b32 v4, {sr(T1)}, v3"); a.i(f"v_lshl_add_u32 {vr(WOA + j)}, v4, 5, v2")
        a.i(f"v_add_u32 {vr(WOA + 7 + j)}, {WOSLOT[0]}, {vr(WOA + j)}")
    a.i("s_waitcnt vmcnt(14)"); a.i("s_barrier")
    emit_groups(a, wo_tile(3)); emit_groups(a, wo_tile(4))
    PF = 3
    NF = 7 * 16
    def fread(absf):
        s, j = absf // 7, absf % 7
        ph = WOSLOT[s % 5]
        breg, off = (WOA + 7 + j, ph - WOSLOT[0]) if ph >= WOSLOT[0] else (WOA + j, ph)
        r = FR + 4 * (absf % 4)
        return [(f"ds_read_b64_tr_b16 {vr(r + 2 * r2, 2)}, {vr(breg)} offset:{off + 3584 * r2}", ("of", absf)) for r2 in range(2)]
    for f in range(PF):
        for s, tag in fread(f): a.lds(s, tag)
    pend = []
    for s in range(16):
        plan = {}
        def put(g, t): plan.setdefault(g, []).append(t)
        if s + 1 < 16:
            last = min(15, s + 4 if s == 0 else s + 3)
            vm = 7 * (last - (s + 1))
            put(1, f"s_waitcnt vmcnt({vm})"); put(1, "s_barrier")
        if s >= 1 and s + 4 < 16:
            for (pre, ins, post), g in zip(wo_tile(s + 4), [3, 6, 10, 14, 18, 22, 26]):
                for t in pre: put(g - 1, t)
                for t in ins + post: put(g, t)
        for i in range(28):
            j, qb = i >> 2, i & 3
            absf = 7 * s + j
            if qb == 0: a.need(("of", absf))
            acc = vr(OACC + 16 * j + 4 * qb, 4)
            a.i(f"v_mfma_f32_16x16x32_bf16 {acc}, {vr(FR + 4 * (absf % 4), 4)}, {ar((s * 4 + qb) * 4, 4)}, {'0' if s == 0 else acc}")
            if qb == 0 and absf + PF < NF: pend += fread(absf + PF)
            for t in plan.pop(i, []): a.i(t)
            k = 0
            while pend and k < 2:
                t, tag = pend.pop(0); a.lds(t, tag); k += 1
        assert not plan, plan

def store_partials(a):
    a.i("s_barrier")
    a.i("s_nop 7")
    a.i("v_and_b32 v1, 15, v0"); a.i(f"v_mul_u32_u24 v1, {TSTR}, v1"); a.i("v_lshrrev_b32 v2, 4, v0"); a.i("v_lshl_add_u32 v1, v2, 3, v1")
    a.i(f"s_mul_i32 {sr(T0)}, {sr(S_W)}, 224"); a.i(f"v_add_u32 v1, {sr(T0)}, v1")
    n = 0
    for j in range(7):
        for qb in range(4):
            x = OACC + 16 * j + 4 * qb; t = 96 + 2 * (n % 8); n += 1
            a.i(f"v_cvt_pk_bf16_f32 {vr(t)}, {vr(x)}, {vr(x + 1)}")
            a.i(f"v_cvt_pk_bf16_f32 {vr(t + 1)}, {vr(x + 2)}, {vr(x + 3)}")
            a.lds(f"ds_write_b64 v1, {vr(t, 2)} offset:{TB + 16 * TSTR * qb + 32 * j}")
    a.lds_drain(); a.i("s_barrier")
    a.i("v_lshlrev_b32 v1, 4, v0")
    a.i(f"s_mul_i32 {sr(T0)}, {sr(S_W)}, {16 * TSTR}"); a.i(f"v_add_u32 v2, {sr(T0)}, v1")
    a.i(f"s_lshl_b32 {sr(T0)}, {sr(S_QW)}, 6"); a.i(f"s_lshl_b32 {sr(T1)}, {sr(S_W)}, 4"); a.i(f"s_add_u32 {sr(T0)}, {sr(T0)}, {sr(T1)}")
    a.i(f"s_lshl_b32 {sr(T1)}, {sr(S_G)}, 11"); a.i(f"s_add_u32 {sr(T0)}, {sr(T0)}, {sr(T1)}")
    a.i(f"s_mul_i32 {sr(T0)}, {sr(T0)}, 896"); a.i(f"s_add_u32 {sr(T0)}, {sr(T0)}, {WS_PART}")
    a.i("v_cmp_gt_u32 vcc, 56, v0"); a.i(f"s_and_saveexec_b64 s[46:47], vcc")
    for i in range(16):
        a.lds(f"ds_read_b128 {vr(128 + 4 * i, 4)}, v2 offset:{TB + TSTR * i}", ("tb", i))
    for i in range(16):
        a.need(("tb", i))
        a.i(f"s_add_u32 {sr(T1)}, {sr(T0)}, {896 * i}")
        a.i(f"buffer_store_dwordx4 {vr(128 + 4 * i, 4)}, v1, {sr(SRD_WS, 4)}, {sr(T1)} offen")
    a.i("s_mov_b64 exec, s[46:47]")

def dump_regs(a, kind, first, n, slot):
    a.i("s_nop 15")
    a.i("s_mov_b32 s60, s56"); a.i("s_mov_b32 s61, s57"); a.i("s_mov_b32 s62, 0x10000000"); a.i("s_mov_b32 s63, 0x20000")
    a.i(f"s_lshl_b32 s58, s2, 2"); a.i(f"s_add_u32 s58, s58, {sr(S_W)}"); a.i("s_lshl_b32 s58, s58, 16")
    a.i(f"s_add_u32 s58, s58, {0x8000000 + slot * 0x4000000}")
    a.i("v_lshlrev_b32 v15, 2, v0")
    for r in range(n):
        a.i(f"s_add_u32 s59, s58, {256 * r}")
        if kind == 'a':
            a.i(f"v_accvgpr_read_b32 v1, {ar(first + r)}"); a.i(f"buffer_store_dword v1, v15, s[60:63], s59 offen"); a.i("s_nop 1")
        else:
            a.i(f"buffer_store_dword {vr(first + r)}, v15, s[60:63], s59 offen")
    a.i("s_waitcnt vmcnt(0)")

def gen_k1(a, cfg, stop=None):
    n = "attn_kernel"
    kstart(a, n)
    a.i("s_cmp_ge_u32 s2, 256"); a.i("s_cbranch_scc1 K1_DONE")
    k1_setup(a); k1_srds(a)
    prologue(a)
    if getattr(cfg, 'dbg', 0): dump_regs(a, 'a', 0, 224, 0)
    qproj(a)
    qexchange(a)
    if getattr(cfg, 'dbg', 0): dump_regs(a, 'v', 128, 128, 1)
    core = attention(a, cfg)
    merge(a, core)
    oproj(a)
    store_partials(a)
    a.i("s_waitcnt vmcnt(0)")
    a.label("K1_DONE")
    a.i("s_endpgm")
    core.emit_rare()
    return kdesc(n, vgpr=512, accum=256, sgpr=102), 256, 163840
```

```python
from asmlib import *

WS_A1 = 0
WS_S1 = 1792
WS_GA = 4096; WS_A2 = 5120; WS_SB = 6144; WS_GB = 7168
WS_R = 8192
WS_IDX = 16384
WS_RSEL = 16448
WS_GU = 20480
WS_X1 = 0x100000
WS_H2 = 0x300000
WS_PART = 0x800000
WS_SIZE = 0x10000000
QSCALE = 1.4426950408889634 / 16

import struct
def f2u(x): return struct.unpack('<I', struct.pack('<f', x))[0]

def kstart(a, name):
    a.raw(f".globl {name}\n.p2align 8\n.type {name},@function\n{name}:")

def srd(a, dst, ptr, size, off=0):
    if off == 0:
        a.i(f"s_mov_b32 {sr(dst)}, {sr(ptr)}"); a.i(f"s_mov_b32 {sr(dst + 1)}, {sr(ptr + 1)}")
    else:
        a.i(f"s_add_u32 {sr(dst)}, {sr(ptr)}, {off}"); a.i(f"s_addc_u32 {sr(dst + 1)}, {sr(ptr + 1)}, 0")
    a.i(f"s_mov_b32 {sr(dst + 2)}, {size}"); a.i(f"s_mov_b32 {sr(dst + 3)}, 0x20000")

def bf_lo(a, d, s): a.i(f"v_lshlrev_b32 {vr(d)}, 16, {vr(s)}")
def bf_hi(a, d, s): a.i(f"v_and_b32 {vr(d)}, 0xffff0000, {vr(s)}")
def round_bf(a, d, s, tmp=None):
    a.i(f"v_cvt_pk_bf16_f32 {vr(d)}, {vr(s)}, {vr(s)}")
    a.i(f"v_lshlrev_b32 {vr(d)}, 16, {vr(d)}")

def wave_sum(a, v, t, n=1):
    for ctl in ("quad_perm:[1,0,3,2]", "quad_perm:[2,3,0,1]", "row_half_mirror", "row_mirror"):
        a.i("s_nop 1")
        a.i(f"v_add_f32_dpp {vr(v)}, {vr(v)}, {vr(v)} {ctl} row_mask:0xf bank_mask:0xf")
    for sw in ("v_permlane16_swap_b32", "v_permlane32_swap_b32"):
        a.i(f"v_mov_b32 {vr(t)}, {vr(v)}")
        a.i("s_nop 1")
        a.i(f"{sw} {vr(v)}, {vr(t)}")
        a.i("s_nop 1")
        a.i(f"v_add_f32 {vr(v)}, {vr(v)}, {vr(t)}")

def sigmoid(a, d, x, t):
    a.i(f"v_mul_f32 {vr(t)}, {hex(f2u(-1.4426950408889634))}, {vr(x)}")
    a.i(f"v_exp_f32 {vr(t)}, {vr(t)}")
    a.i("s_nop 0")
    a.i(f"v_add_f32 {vr(t)}, 1.0, {vr(t)}")
    a.i(f"v_rcp_f32 {vr(d)}, {vr(t)}")
    a.i("s_nop 0")

def gen_k0(a):
    n = "mod_kernel"
    kstart(a, n)
    a.i("s_cmp_ge_u32 s2, 84"); a.i("s_cbranch_scc1 K0_DONE")
    a.i("s_load_dwordx4 s[4:7], s[0:1], 80")
    a.i("s_load_dwordx2 s[8:9], s[0:1], 112")
    a.i("v_and_b32 v1, 3, v0")
    a.i("v_lshrrev_b32 v2, 2, v0")
    a.i("v_mul_u32_u24 v3, 14, v2")
    a.i("v_mul_u32_u24 v4, 37632, v2")
    a.i("v_lshl_add_u32 v4, v1, 4, v4")
    a.i("s_lshl_b32 s3, s2, 6")
    a.i("v_add_u32 v4, s3, v4")
    a.i("s_waitcnt lgkmcnt(0)")
    srd(a, 12, 4, 896); srd(a, 16, 6, 448 * 5376); srd(a, 20, 8, WS_SIZE)
    for i in range(7):
        a.i(f"buffer_load_ushort {vr(8 + i)}, v3, s[12:15], 0 offen offset:{2 * i}")
    for i in range(7):
        a.i(f"s_mov_b32 s24, {5376 * i}")
        a.i(f"buffer_load_dwordx4 {vr(16 + 4 * i, 4)}, v4, s[16:19], s24 offen")
    a.i("s_waitcnt vmcnt(7)")
    for i in range(7):
        x = 8 + i
        a.i(f"v_lshlrev_b32 {vr(x)}, 16, {vr(x)}")
        sigmoid(a, 5, x, 6)
        a.i(f"v_mul_f32 {vr(x)}, {vr(x)}, v5")
        round_bf(a, x, x)
    for j in range(8): a.i(f"v_mov_b32 {vr(48 + j)}, 0")
    for i in range(7):
        a.i(f"s_waitcnt vmcnt({6 - i})")
        for j in range(4):
            bf_lo(a, 5, 16 + 4 * i + j); bf_hi(a, 6, 16 + 4 * i + j)
            a.i(f"v_fmac_f32 {vr(48 + 2 * j)}, {vr(8 + i)}, v5")
            a.i(f"v_fmac_f32 {vr(48 + 2 * j + 1)}, {vr(8 + i)}, v6")
    a.i("v_lshlrev_b32 v7, 7, v2"); a.i("v_lshl_add_u32 v7, v1, 5, v7")
    a.i("ds_write_b128 v7, v[48:51]"); a.i("ds_write_b128 v7, v[52:55] offset:16")
    a.i("s_waitcnt lgkmcnt(0)"); a.i("s_barrier")
    a.i("v_cmp_gt_u32 vcc, 32, v0"); a.i("s_and_saveexec_b64 s[26:27], vcc")
    a.i("s_cbranch_execz K0_DONE")
    a.i("v_lshlrev_b32 v7, 2, v0")
    for b in range(4):
        for j in range(16):
            a.i(f"ds_read_b32 {vr(16 + j)}, v7 offset:{128 * (16 * b + j)}")
        a.i("s_waitcnt lgkmcnt(0)")
        if b == 0: a.i("v_mov_b32 v8, 0")
        for j in range(0, 16, 4):
            a.i(f"v_add_f32 {vr(16 + j)}, {vr(16 + j)}, {vr(17 + j)}")
            a.i(f"v_add_f32 {vr(18 + j)}, {vr(18 + j)}, {vr(19 + j)}")
            a.i(f"v_add_f32 {vr(16 + j)}, {vr(16 + j)}, {vr(18 + j)}")
            a.i(f"v_add_f32 v8, v8, {vr(16 + j)}")
    round_bf(a, 8, 8)
    a.i("s_mul_i32 s24, s2, 4682"); a.i("s_lshr_b32 s24, s24, 16")
    a.i("s_mul_i32 s25, s24, 14"); a.i("s_sub_u32 s25, s2, s25"); a.i("s_lshl_b32 s25, s25, 5")
    a.i("v_add_u32 v9, s25, v0")
    a.i("v_add_f32 v10, 1.0, v8"); round_bf(a, 10, 10)
    a.i(f"s_mov_b32 s28, {hex(f2u(QSCALE))}")
    a.i("s_cmp_eq_u32 s24, 0"); a.i("s_cbranch_scc1 K0_S0")
    a.i("s_cmp_eq_u32 s24, 1"); a.i("s_cbranch_scc1 K0_S1")
    a.i("s_cmp_eq_u32 s24, 4")
    a.i("s_cbranch_scc0 K0_NB")
    a.i("v_mov_b32 v8, v10")
    a.label("K0_NB")
    a.i("v_lshrrev_b32 v8, 16, v8")
    a.i(f"s_mov_b32 s29, {WS_GA}")
    a.i("s_cmp_eq_u32 s24, 3"); a.i(f"s_cselect_b32 s29, {WS_SB}, s29")
    a.i("s_cmp_eq_u32 s24, 4"); a.i(f"s_cselect_b32 s29, {WS_A2}, s29")
    a.i("s_cmp_eq_u32 s24, 5"); a.i(f"s_cselect_b32 s29, {WS_GB}, s29")
    a.i("v_lshlrev_b32 v9, 1, v9")
    a.i("buffer_store_short v8, v9, s[20:23], s29 offen")
    a.i("s_branch K0_END")
    a.label("K0_S0")
    a.i("v_mul_f32 v8, s28, v8"); a.i("v_lshlrev_b32 v9, 2, v9")
    a.i(f"buffer_store_dword v8, v9, s[20:23], 0 offen offset:{WS_S1}")
    a.i("s_branch K0_END")
    a.label("K0_S1")
    a.i("v_mul_f32 v8, s28, v10"); a.i("v_lshlrev_b32 v9, 2, v9")
    a.i(f"buffer_store_dword v8, v9, s[20:23], 0 offen offset:{WS_A1}")
    a.label("K0_END")
    a.i("s_waitcnt vmcnt(0)")
    a.label("K0_DONE")
    a.i("s_endpgm")
    return kdesc(n, vgpr=64, accum=64, sgpr=40)

def gen_k2(a):
    n = "red_kernel"
    kstart(a, n)
    a.i("s_cmp_ge_u32 s2, 256"); a.i("s_cbranch_scc1 K2_DONE")
    a.i("s_load_dwordx2 s[4:5], s[0:1], 0")
    a.i("s_load_dwordx2 s[6:7], s[0:1], 48")
    a.i("s_load_dwordx2 s[8:9], s[0:1], 96")
    a.i("s_load_dwordx2 s[10:11], s[0:1], 112")
    a.i("v_lshrrev_b32 v1, 6, v0"); a.i("s_nop 0"); a.i("v_readfirstlane_b32 s3, v1")
    a.i("v_and_b32 v0, 63, v0")
    a.i("s_lshl_b32 s28, s2, 3"); a.i("s_add_u32 s28, s28, s3")
    a.i("s_mul_i32 s29, s28, 896")
    a.i("v_lshlrev_b32 v1, 4, v0")
    a.i("v_cmp_gt_u32 vcc, 56, v0"); a.i("v_mov_b32 v2, 0x7fff0000"); a.i("s_nop 0")
    a.i("v_cndmask_b32 v1, v2, v1, vcc")
    a.i("s_waitcnt lgkmcnt(0)")
    srd(a, 12, 4, 2048 * 896); srd(a, 16, 6, 896); srd(a, 20, 8, 2048 * 896); srd(a, 24, 10, 0x2000000)
    for g in range(8):
        a.i(f"s_add_u32 s30, s29, {WS_PART + g * 2048 * 896}")
        a.i(f"buffer_load_dwordx4 {vr(16 + 4 * g, 4)}, v1, s[24:27], s30 offen")
    a.i(f"buffer_load_dwordx4 v[48:51], v1, s[12:15], s29 offen")
    for k, off in enumerate((WS_GA, WS_A2, WS_SB, WS_GB)):
        a.i(f"s_mov_b32 s30, {off}")
        a.i(f"buffer_load_dwordx4 {vr(52 + 4 * k, 4)}, v1, s[24:27], s30 offen")
    a.i(f"buffer_load_dwordx4 v[68:71], v1, s[16:19], 0 offen")
    for g in range(8):
        a.i(f"s_waitcnt vmcnt({13 - g})")
        for j in range(4):
            if g == 0:
                bf_lo(a, 72 + 2 * j, 16 + j); bf_hi(a, 73 + 2 * j, 16 + j)
            else:
                bf_lo(a, 4, 16 + 4 * g + j); bf_hi(a, 5, 16 + 4 * g + j)
                a.i(f"v_add_f32 {vr(72 + 2 * j)}, {vr(72 + 2 * j)}, v4")
                a.i(f"v_add_f32 {vr(73 + 2 * j)}, {vr(73 + 2 * j)}, v5")
    a.i("s_waitcnt vmcnt(0)")
    def unpack(dst, src):
        for j in range(4):
            bf_lo(a, dst + 2 * j, src + j); bf_hi(a, dst + 2 * j + 1, src + j)
    unpack(80, 48)
    unpack(88, 52)
    for j in range(8):
        round_bf(a, 72 + j, 72 + j)
        a.i(f"v_mul_f32 {vr(72 + j)}, {vr(88 + j)}, {vr(72 + j)}")
        round_bf(a, 72 + j, 72 + j)
        a.i(f"v_add_f32 {vr(80 + j)}, {vr(80 + j)}, {vr(72 + j)}")
        round_bf(a, 80 + j, 80 + j)
    for j in range(4):
        a.i(f"v_cvt_pk_bf16_f32 {vr(16 + j)}, {vr(80 + 2 * j)}, {vr(81 + 2 * j)}")
    a.i(f"s_add_u32 s30, s29, {WS_X1}")
    a.i("buffer_store_dwordx4 v[16:19], v1, s[24:27], s30 offen")
    a.i("v_add_f32 v4, v80, v81")
    for j in range(2, 8): a.i(f"v_add_f32 v4, v4, {vr(80 + j)}")
    wave_sum(a, 4, 5)
    a.i(f"v_mul_f32 v4, {hex(f2u(1.0 / 448))}, v4")
    for j in range(8): a.i(f"v_sub_f32 {vr(96 + j)}, {vr(80 + j)}, v4")
    a.i("v_mul_f32 v6, v96, v96")
    for j in range(1, 8): a.i(f"v_fmac_f32 v6, {vr(96 + j)}, {vr(96 + j)}")
    a.i("v_cmp_gt_u32 vcc, 56, v0"); a.i("s_nop 1")
    a.i("v_cndmask_b32 v6, 0, v6, vcc")
    wave_sum(a, 6, 5)
    a.i(f"v_mul_f32 v6, {hex(f2u(1.0 / 448))}, v6")
    a.i(f"v_add_f32 v6, {hex(f2u(1e-5))}, v6")
    a.i("v_rsq_f32 v6, v6"); a.i("s_nop 0")
    unpack(88, 56)
    unpack(104, 60)
    for j in range(8):
        a.i(f"v_mul_f32 {vr(96 + j)}, {vr(96 + j)}, v6")
        a.i(f"v_fma_f32 {vr(96 + j)}, {vr(96 + j)}, {vr(88 + j)}, {vr(104 + j)}")
        round_bf(a, 96 + j, 96 + j)
    for j in range(4):
        a.i(f"v_cvt_pk_bf16_f32 {vr(20 + j)}, {vr(96 + 2 * j)}, {vr(97 + 2 * j)}")
    a.i(f"s_add_u32 s30, s29, {WS_H2}")
    a.i("buffer_store_dwordx4 v[20:23], v1, s[24:27], s30 offen")
    unpack(88, 68)
    a.i("v_mul_f32 v7, v96, v88")
    for j in range(1, 8): a.i(f"v_fmac_f32 v7, {vr(96 + j)}, {vr(88 + j)}")
    wave_sum(a, 7, 5)
    round_bf(a, 7, 7)
    unpack(88, 64)
    for j in range(8):
        a.i(f"v_mul_f32 {vr(88 + j)}, {vr(88 + j)}, {vr(96 + j)}")
        round_bf(a, 88 + j, 88 + j)
        a.i(f"v_add_f32 {vr(88 + j)}, {vr(88 + j)}, {vr(80 + j)}")
    for j in range(4):
        a.i(f"v_cvt_pk_bf16_f32 {vr(24 + j)}, {vr(88 + 2 * j)}, {vr(89 + 2 * j)}")
    a.i("buffer_store_dwordx4 v[24:27], v1, s[20:23], s29 offen")
    a.i("v_cmp_eq_u32 vcc, 0, v0"); a.i("s_and_saveexec_b64 s[32:33], vcc")
    a.i("s_lshl_b32 s30, s28, 2"); a.i(f"s_add_u32 s30, s30, {WS_R}")
    a.i("v_mov_b32 v8, 0")
    a.i("buffer_store_dword v7, v8, s[24:27], s30 offen")
    a.i("s_mov_b64 exec, s[32:33]")
    a.i("s_waitcnt vmcnt(0)")
    a.label("K2_DONE")
    a.i("s_endpgm")
    return kdesc(n, vgpr=128, accum=128, sgpr=48)

def wave_max_u32(a, v, t):
    for ctl in ("quad_perm:[1,0,3,2]", "quad_perm:[2,3,0,1]", "row_half_mirror", "row_mirror"):
        a.i("s_nop 1")
        a.i(f"v_max_u32_dpp {vr(v)}, {vr(v)}, {vr(v)} {ctl} row_mask:0xf bank_mask:0xf")
    for sw in ("v_permlane16_swap_b32", "v_permlane32_swap_b32"):
        a.i(f"v_mov_b32 {vr(t)}, {vr(v)}")
        a.i("s_nop 1")
        a.i(f"{sw} {vr(v)}, {vr(t)}")
        a.i("s_nop 1")
        a.i(f"v_max_u32 {vr(v)}, {vr(v)}, {vr(t)}")

def gen_k3(a):
    n = "gate_kernel"
    NWG = 112
    L_CAND = 28672; L_SEL = 28672 + 128
    kstart(a, n)
    a.i(f"s_cmp_ge_u32 s2, {NWG}"); a.i("s_cbranch_scc1 K3_DONE")
    a.i("s_load_dwordx4 s[4:7], s[0:1], 56")
    a.i("s_load_dwordx2 s[8:9], s[0:1], 112")
    a.i("v_lshrrev_b32 v1, 6, v0"); a.i("s_nop 0"); a.i("v_readfirstlane_b32 s3, v1")
    a.i("v_and_b32 v2, 63, v0")
    a.i("s_waitcnt lgkmcnt(0)")
    srd(a, 20, 8, 0x2000000)
    a.i("v_lshlrev_b32 v3, 5, v0")
    a.i(f"s_mov_b32 s24, {WS_R}")
    a.i("buffer_load_dwordx4 v[16:19], v3, s[20:23], s24 offen")
    a.i("buffer_load_dwordx4 v[20:23], v3, s[20:23], s24 offen offset:16")
    a.i("s_cmp_ge_u32 s3, 2")
    a.i("s_cselect_b32 s12, s6, s4"); a.i("s_cselect_b32 s13, s7, s5")
    a.i(f"s_mov_b32 s14, {448 * 3584}"); a.i("s_mov_b32 s15, 0x20000")
    a.i("v_lshrrev_b32 v4, 1, v2"); a.i("v_mul_u32_u24 v4, 3584, v4")
    a.i("v_and_b32 v5, 1, v2"); a.i("v_lshl_add_u32 v4, v5, 4, v4")
    a.i("s_lshl_b32 s25, s2, 5"); a.i("v_add_u32 v4, s25, v4")
    a.i("s_and_b32 s26, s3, 1"); a.i("s_mul_i32 s27, s26, 7")
    a.i("s_mul_i32 s28, s3, 7168")
    a.i(f"s_mul_i32 s27, s27, {32 * 3584}")
    for i in range(7):
        a.i(f"s_add_u32 m0, s28, {1024 * i}")
        a.i(f"s_add_u32 s29, s27, {32 * 3584 * i}")
        a.i("buffer_load_dwordx4 v4, s[12:15], s29 offen lds")
    a.i("s_waitcnt vmcnt(7)")
    a.i("v_lshlrev_b32 v6, 3, v0"); a.i("v_sub_u32 v6, 2047, v6")
    for j in range(8):
        k = 16 + j
        a.i(f"v_ashrrev_i32 v7, 31, {vr(k)}")
        a.i("v_or_b32 v7, 0x80000000, v7")
        a.i(f"v_xor_b32 {vr(k)}, {vr(k)}, v7")
        a.i(f"v_and_b32 {vr(k)}, 0xffff0000, {vr(k)}")
        a.i(f"v_subrev_u32 v7, {j}, v6")
        a.i(f"v_or_b32 {vr(k)}, {vr(k)}, v7")
    a.i("v_mov_b32 v9, 0")
    for rnd in range(8):
        a.i("v_max3_u32 v8, v16, v17, v18"); a.i("v_max3_u32 v8, v8, v19, v20")
        a.i("v_max3_u32 v8, v8, v21, v22"); a.i("v_max_u32 v8, v8, v23")
        wave_max_u32(a, 8, 7)
        a.i(f"v_cmp_eq_u32 s[30:31], {rnd}, v2")
        if rnd < 7:
            for j in range(0, 8, 2):
                a.i(f"v_cmp_eq_u32 s[32:33], {vr(16 + j)}, v8")
                a.i(f"v_cmp_eq_u32 s[34:35], {vr(17 + j)}, v8")
                a.i("s_nop 0")
                a.i(f"v_cndmask_b32 {vr(16 + j)}, {vr(16 + j)}, 0, s[32:33]")
                a.i(f"v_cndmask_b32 {vr(17 + j)}, {vr(17 + j)}, 0, s[34:35]")
        else:
            a.i("s_nop 1")
        a.i("v_cndmask_b32 v9, v9, v8, s[30:31]")
    a.i("s_lshl_b32 s29, s3, 5"); a.i("v_lshl_add_u32 v7, v2, 2, s29"); a.i(f"v_add_u32 v7, {L_CAND}, v7")
    a.i("v_cmp_gt_u32 vcc, 8, v2"); a.i("s_and_saveexec_b64 s[36:37], vcc")
    a.i("ds_write_b32 v7, v9")
    a.i("s_mov_b64 exec, s[36:37]")
    a.i("s_waitcnt lgkmcnt(0) vmcnt(0)"); a.i("s_barrier")
    a.i("s_cmp_lg_u32 s3, 0"); a.i("s_cbranch_scc1 K3_DONE")
    a.i("v_and_b32 v7, 31, v2"); a.i("v_lshlrev_b32 v7, 2, v7"); a.i(f"v_add_u32 v7, {L_CAND}, v7")
    a.i("ds_read_b32 v9, v7")
    a.i(f"v_mov_b32 v10, {L_CAND}")
    for j in range(8): a.i(f"ds_read_b128 {vr(16 + 4 * j, 4)}, v10 offset:{16 * j}")
    a.i("s_waitcnt lgkmcnt(0)")
    a.i("v_mov_b32 v11, 0")
    for j in range(0, 32, 2):
        a.i(f"v_cmp_gt_u32 s[32:33], {vr(16 + j)}, v9")
        a.i(f"v_cmp_gt_u32 s[34:35], {vr(17 + j)}, v9")
        a.i("s_nop 0")
        a.i("v_addc_co_u32 v11, vcc, 0, v11, s[32:33]")
        a.i("v_addc_co_u32 v11, vcc, 0, v11, s[34:35]")
    a.i("v_cmp_gt_u32 s[32:33], 8, v11"); a.i("v_cmp_gt_u32 s[34:35], 32, v2")
    a.i("s_and_b64 s[32:33], s[32:33], s[34:35]")
    a.i("v_lshlrev_b32 v11, 2, v11"); a.i(f"v_add_u32 v11, {L_SEL}, v11")
    a.i("s_and_saveexec_b64 s[36:37], s[32:33]")
    a.i("ds_write_b32 v11, v9")
    a.i("s_mov_b64 exec, s[36:37]")
    a.i("s_waitcnt lgkmcnt(0)")
    a.i("v_and_b32 v7, 7, v2"); a.i("v_lshlrev_b32 v7, 2, v7"); a.i(f"v_add_u32 v7, {L_SEL}, v7")
    a.i("ds_read_b32 v9, v7")
    a.i("s_waitcnt lgkmcnt(0)")
    a.i("v_and_b32 v10, 0xffff, v9"); a.i("v_sub_u32 v10, 2047, v10")
    a.i("v_mul_u32_u24 v11, 896, v10"); a.i("v_lshrrev_b32 v12, 4, v2"); a.i("v_lshl_add_u32 v11, v12, 4, v11")
    a.i(f"s_mov_b32 s24, {WS_H2}")
    for ks in range(14):
        a.i(f"buffer_load_dwordx4 {vr(16 + 4 * ks, 4)}, v11, s[20:23], s24 offen offset:{64 * ks}")
    a.i("s_cmp_lg_u32 s2, 0"); a.i("s_cbranch_scc1 K3_NOPUB")
    a.i("v_lshrrev_b32 v13, 16, v9")
    a.i("v_and_b32 v14, 0x8000, v13"); a.i("v_cmp_ne_u32 vcc, 0, v14")
    a.i("v_xor_b32 v14, 0x8000, v13"); a.i("v_xor_b32 v15, 0xffff, v13")
    a.i("v_cndmask_b32 v13, v15, v14, vcc"); a.i("v_lshlrev_b32 v13, 16, v13")
    a.i("v_lshlrev_b32 v14, 2, v2")
    a.i("v_cmp_gt_u32 vcc, 8, v2"); a.i("s_and_saveexec_b64 s[36:37], vcc")
    a.i(f"s_mov_b32 s24, {WS_IDX}")
    a.i("buffer_store_dword v10, v14, s[20:23], s24 offen")
    a.i("buffer_store_dword v13, v14, s[20:23], s24 offen offset:64")
    a.i("s_mov_b64 exec, s[36:37]")
    a.label("K3_NOPUB")
    a.i("v_bfe_u32 v13, v2, 2, 2"); a.i("v_lshl_add_u32 v13, v12, 3, v13"); a.i("v_lshlrev_b32 v13, 5, v13")
    a.i("v_and_b32 v14, 3, v2"); a.i("v_lshl_add_u32 v13, v14, 3, v13")
    for m in range(2):
        for ks in range(14):
            for r2 in range(2):
                a.i(f"ds_read_b64_tr_b16 {vr(80 + 56 * m + 4 * ks + 2 * r2, 2)}, v13 offset:{14336 * m + 1024 * ks + 128 * r2}")
            if ks % 7 == 6: a.i("s_waitcnt lgkmcnt(0)")
    a.i("s_waitcnt vmcnt(0)")
    for ks in range(14):
        for m in range(2):
            acc = vr(72 + 4 * m, 4)
            a.i(f"v_mfma_f32_16x16x32_bf16 {acc}, {vr(80 + 56 * m + 4 * ks, 4)}, {vr(16 + 4 * ks, 4)}, {'0' if ks == 0 else acc}")
    a.i("s_nop 15")
    for r in range(4):
        round_bf(a, 72 + r, 72 + r); round_bf(a, 76 + r, 76 + r)
        sigmoid(a, 5, 72 + r, 6)
        a.i(f"v_mul_f32 {vr(72 + r)}, {vr(72 + r)}, v5"); round_bf(a, 72 + r, 72 + r)
        a.i(f"v_mul_f32 {vr(72 + r)}, {vr(72 + r)}, {vr(76 + r)}")
    a.i("v_cvt_pk_bf16_f32 v76, v72, v73"); a.i("v_cvt_pk_bf16_f32 v77, v74, v75")
    a.i("v_and_b32 v5, 15, v2"); a.i("v_mul_u32_u24 v6, 3584, v5"); a.i("v_lshl_add_u32 v6, v12, 3, v6")
    a.i(f"s_lshl_b32 s24, s2, 5"); a.i(f"s_add_u32 s24, s24, {WS_GU}")
    a.i("v_cmp_gt_u32 vcc, 8, v5"); a.i("s_and_saveexec_b64 s[36:37], vcc")
    a.i("buffer_store_dwordx2 v[76:77], v6, s[20:23], s24 offen")
    a.i("s_mov_b64 exec, s[36:37]")
    a.i("s_waitcnt vmcnt(0)")
    a.label("K3_DONE")
    a.i("s_endpgm")
    return kdesc(n, vgpr=200, accum=200, sgpr=48), NWG, 28672 + 256

def gen_k4(a):
    n = "down_kernel"
    NWG = 28
    L_RED = 57344
    kstart(a, n)
    a.i(f"s_cmp_ge_u32 s2, {NWG}"); a.i("s_cbranch_scc1 K4_DONE")
    a.i("s_load_dwordx2 s[4:5], s[0:1], 72")
    a.i("s_load_dwordx2 s[6:7], s[0:1], 96")
    a.i("s_load_dwordx2 s[8:9], s[0:1], 112")
    a.i("v_lshrrev_b32 v1, 6, v0"); a.i("s_nop 0"); a.i("v_readfirstlane_b32 s3, v1")
    a.i("v_and_b32 v2, 63, v0")
    a.i("s_waitcnt lgkmcnt(0)")
    srd(a, 12, 4, 1792 * 896); srd(a, 16, 6, 2048 * 896); srd(a, 20, 8, 0x2000000)
    a.i("v_lshrrev_b32 v4, 1, v2"); a.i("v_mul_u32_u24 v4, 896, v4")
    a.i("v_and_b32 v5, 1, v2"); a.i("v_lshl_add_u32 v4, v5, 4, v4")
    a.i("s_lshl_b32 s25, s2, 5"); a.i("v_add_u32 v4, s25, v4")
    a.i(f"s_mul_i32 s27, s3, {448 * 896}"); a.i("s_mul_i32 s28, s3, 14336")
    for i in range(14):
        a.i(f"s_add_u32 m0, s28, {1024 * i}")
        a.i(f"s_add_u32 s29, s27, {32 * 896 * i}")
        a.i("buffer_load_dwordx4 v4, s[12:15], s29 offen lds")
    a.i("v_and_b32 v5, 7, v2"); a.i("v_mul_u32_u24 v6, 3584, v5"); a.i("v_lshrrev_b32 v12, 4, v2"); a.i("v_lshl_add_u32 v6, v12, 4, v6")
    a.i(f"s_mul_i32 s24, s3, 896"); a.i(f"s_add_u32 s24, s24, {WS_GU}")
    for ks in range(14):
        a.i(f"buffer_load_dwordx4 {vr(16 + 4 * ks, 4)}, v6, s[20:23], s24 offen offset:{64 * ks}")
    a.i("v_lshlrev_b32 v7, 2, v5"); a.i(f"s_mov_b32 s24, {WS_IDX}")
    a.i("buffer_load_dword v8, v7, s[20:23], s24 offen")
    a.i("buffer_load_dword v9, v7, s[20:23], s24 offen offset:64")
    a.i("v_bfe_u32 v13, v2, 2, 2"); a.i("v_lshl_add_u32 v13, v12, 3, v13"); a.i("v_lshlrev_b32 v13, 5, v13")
    a.i("v_and_b32 v14, 3, v2"); a.i("v_lshl_add_u32 v13, v14, 3, v13"); a.i("v_add_u32 v13, s28, v13")
    a.i("s_waitcnt vmcnt(0)")
    a.i("v_mul_u32_u24 v10, 896, v8"); a.i("v_lshl_add_u32 v10, v12, 3, v10"); a.i("v_add_u32 v10, s25, v10")
    a.i(f"s_mov_b32 s24, {WS_X1}"); a.i("buffer_load_dwordx2 v[76:77], v10, s[20:23], s24 offen")
    a.i(f"s_mov_b32 s24, {WS_H2}"); a.i("buffer_load_dwordx2 v[78:79], v10, s[20:23], s24 offen")
    a.i("v_lshlrev_b32 v11, 3, v12"); a.i("v_add_u32 v11, s25, v11")
    a.i(f"s_mov_b32 s24, {WS_GB}"); a.i("buffer_load_dwordx2 v[14:15], v11, s[20:23], s24 offen")
    for ks in range(14):
        for r2 in range(2):
            a.i(f"ds_read_b64_tr_b16 {vr(80 + 4 * ks + 2 * r2, 2)}, v13 offset:{1024 * ks + 128 * r2}")
        if ks % 7 == 6: a.i("s_waitcnt lgkmcnt(0)")
    for ks in range(14):
        a.i(f"v_mfma_f32_16x16x32_bf16 v[72:75], {vr(80 + 4 * ks, 4)}, {vr(16 + 4 * ks, 4)}, {'0' if ks == 0 else 'v[72:75]'}")
    a.i("s_nop 15")
    a.i("v_lshlrev_b32 v3, 4, v2"); a.i("s_lshl_b32 s24, s3, 10"); a.i(f"s_add_u32 s24, s24, {L_RED}"); a.i("v_add_u32 v3, s24, v3")
    a.i("ds_write_b128 v3, v[72:75]")
    a.i("s_waitcnt lgkmcnt(0)"); a.i("s_barrier")
    a.i("s_cmp_lg_u32 s3, 0"); a.i("s_cbranch_scc1 K4_DONE")
    for w in range(1, 4): a.i(f"ds_read_b128 {vr(16 + 4 * w, 4)}, v3 offset:{1024 * w}")
    a.i("s_waitcnt lgkmcnt(0) vmcnt(0)")
    sigmoid(a, 5, 9, 6); round_bf(a, 5, 5)
    for r in range(4):
        for w in range(1, 4): a.i(f"v_add_f32 {vr(72 + r)}, {vr(72 + r)}, {vr(16 + 4 * w + r)}")
        round_bf(a, 72 + r, 72 + r)
        a.i(f"v_mul_f32 {vr(72 + r)}, {vr(72 + r)}, v5"); round_bf(a, 72 + r, 72 + r)
    for half in range(2):
        bf_lo(a, 16 + 2 * half, 78 + half); bf_hi(a, 17 + 2 * half, 78 + half)
        bf_lo(a, 20 + 2 * half, 76 + half); bf_hi(a, 21 + 2 * half, 76 + half)
        bf_lo(a, 24 + 2 * half, 14 + half); bf_hi(a, 25 + 2 * half, 14 + half)
    for r in range(4):
        a.i(f"v_add_f32 {vr(72 + r)}, {vr(72 + r)}, {vr(16 + r)}"); round_bf(a, 72 + r, 72 + r)
        a.i(f"v_mul_f32 {vr(72 + r)}, {vr(72 + r)}, {vr(24 + r)}"); round_bf(a, 72 + r, 72 + r)
        a.i(f"v_add_f32 {vr(72 + r)}, {vr(72 + r)}, {vr(20 + r)}")
    a.i("v_cvt_pk_bf16_f32 v76, v72, v73"); a.i("v_cvt_pk_bf16_f32 v77, v74, v75")
    a.i("v_and_b32 v5, 15, v2")
    a.i("v_cmp_gt_u32 vcc, 8, v5"); a.i("s_and_saveexec_b64 s[36:37], vcc")
    a.i("buffer_store_dwordx2 v[76:77], v10, s[16:19], 0 offen")
    a.i("s_mov_b64 exec, s[36:37]")
    a.i("s_waitcnt vmcnt(0)")
    a.label("K4_DONE")
    a.i("s_endpgm")
    return kdesc(n, vgpr=144, accum=144, sgpr=48), NWG, L_RED + 4096
```

```python
import sys
from asmlib import *
import kern_small as ks, kern_attn as ka
from core16 import Cfg

HEADER = open('adaLN_cond__gqa_block_cached__moe_arch_mod__prompt.s.ref').read().split('; Override launch geometry')[0]

def gen(cfg):
    a = Asm()
    body = Asm()
    descs = []
    descs.append(ks.gen_k0(body))
    d, n1, l1 = ka.gen_k1(body, cfg); descs.append(d)
    descs.append(ks.gen_k2(body))
    d, n3, l3 = ks.gen_k3(body); descs.append(d)
    d, n4, l4 = ks.gen_k4(body); descs.append(d)
    hdr = HEADER
    hdr += "; @launch kernel=mod_kernel grid=(84,1,1) block=(256,1,1) lds=8192\n"
    hdr += f"; @launch kernel=attn_kernel grid=({n1},1,1) block=(256,1,1) lds={l1}\n"
    hdr += "; @launch kernel=red_kernel grid=(256,1,1) block=(512,1,1) lds=0\n"
    hdr += f"; @launch kernel=gate_kernel grid=({n3},1,1) block=(256,1,1) lds={l3}\n"
    hdr += f"; @launch kernel=down_kernel grid=({n4},1,1) block=(256,1,1) lds={l4}\n"
    hdr += '.amdgcn_target "amdgcn-amd-amdhsa--gfx950"\n.text\n'
    txt = hdr + body.text()
    for d in descs: txt += d
    return txt

if __name__ == "__main__":
    cfg = Cfg()
    for o in sys.argv[2:]:
        k, v = o.split("="); setattr(cfg, k, eval(v))
    open(sys.argv[1], "w").write(gen(cfg))
```

```python
from asmlib import *

S = 16
NEGM = 48
P0, P1 = 64, 80
FR = 96
E = 112
PS = 116
L = 120
DK = 124
DV = 8
KB = 12
VB = 13
TA, TB = 4, 5
Q = 128
SRD_K = 4; SRD_V = 8
S_KOFF = 20; S_VOFF = 21; S_W = 22; S_KM0 = 23; S_CNT = 24; S_THR = 25; S_KOFF2 = 26; S_VOFF2 = 27; S_VM0 = 28
S_RET = 30
KSLOT = 16896; VSLOT = 17408
KRING = 0; VRING = 4 * KSLOT
def kslot_off(par): return par * 2 * KSLOT
def vslot_off(par): return par * 2 * VSLOT

class Cfg:
    PF = 3
    dma = True; valu = True; barrier = True
    xa = 48; xb = 112
    dmaKh_gaps = [2, 10, 18, 26, 34, 42]
    dmaV_gaps = [50, 58, 66, 74, 82, 90, 98, 106]
    dmaKt_gaps = [114, 122]
    ladd_gaps = [27, 29, 30, 31]
    s0_start = 35; s1_start = 67
    cap = 2
    poll_sleep = 0

def O(db, qb): return ar(16 * db + 4 * qb, 4)
def Sreg(kb, qb): return S + 16 * kb + 4 * qb

def frag_reads(f, par_k, par_v):
    r = FR + 4 * (f % 4)
    if f < 16:
        kb, ks = f >> 3, f & 7
        off = kslot_off(par_k) + kb * 8 * 1056 + 64 * ks
        return [f"ds_read_b128 {vr(r, 4)}, {vr(KB)} offset:{off}"]
    db = f - 16
    out = []
    for r2 in range(2):
        off = vslot_off(par_v) + r2 * 8 * 1088 + 64 * (db >> 1)
        out.append(f"ds_read_b64_tr_b16 {vr(r + 2 * r2, 2)}, {vr(VB + (db & 1))} offset:{off}")
    return out

def softmax_ops(kb, Pn):
    ops = []
    groups = [(qb, h) for qb in range(4) for h in range(2)]
    n = len(groups)
    for p in range(n + 1):
        if p < n:
            qb, h = groups[p]
            e = E + 2 * (p & 1); s = Sreg(kb, qb) + 2 * h
            ops.append((2, f"v_exp_f32 {vr(e)}, {vr(s)}"))
            ops.append((2, f"v_exp_f32 {vr(e + 1)}, {vr(s + 1)}"))
        if p >= 1:
            qb, h = groups[p - 1]
            e = E + 2 * ((p - 1) & 1)
            ps = vr(PS + qb)
            if kb == 0 and h == 0:
                ops.append((1, f"v_add_f32 {ps}, {vr(e)}, {vr(e + 1)}"))
            else:
                ops.append((1, f"v_add_f32 {ps}, {ps}, {vr(e)}"))
                ops.append((1, f"v_add_f32 {ps}, {ps}, {vr(e + 1)}"))
            ops.append((1, f"v_cvt_pk_bf16_f32 {vr(Pn + 4 * qb + 2 * kb + h)}, {vr(e)}, {vr(e + 1)}"))
    return ops

def dma_tile(kind, par):
    if kind == 'K':
        base = KRING + kslot_off(par); m0b = S_KM0; srd = SRD_K; so = (S_KOFF, S_KOFF2); vo = DK; stride = 1056; tile = 16384
    else:
        base = VRING + vslot_off(par); m0b = S_VM0; srd = SRD_V; so = (S_VOFF, S_VOFF2); vo = DV; stride = 1088; tile = 16384
    groups = []
    for i in range(8):
        pre = []
        if i % 4 == 0:
            pre.append(f"s_add_u32 m0, {sr(m0b)}, {base + (i // 4) * 4 * stride}")
        ins = [f"buffer_load_dwordx4 {vr(vo + (i & 3))}, {sr(srd, 4)}, {sr(so[i // 4])} offen offset:{stride * (i & 3)} lds"]
        post = []
        if i % 4 == 3:
            post.append(f"s_add_u32 {sr(so[i // 4])}, {sr(so[i // 4])}, {tile}")
        groups.append((pre, ins, post))
    return groups

class Core16:
    def __init__(self, a, cfg):
        self.a = a; self.cfg = cfg
        self.fidx = 0
        self.tramps = []
        self.pend_l = False

    def issue_frag(self, absf, f, par_k, par_v):
        for s in frag_reads(f, par_k, par_v):
            self.a.lds(s, ("f", absf))

    def prefetch_first(self, t, start=0):
        for j in range(self.cfg.PF):
            self.issue_frag(self.fidx + j, start + j, (t + 1) & 1, t & 1)

    def iteration(self, t, first=False, do_A=True, do_soft=True, dmaV=True, dmaKh=True, dmaKt=True, nxt='A', barA=True, barB=True,
                  vmA=8, vmB=8, extra_q=None, extra_start=0):
        a, cfg = self.a, self.cfg
        PF = cfg.PF
        Pu = (P0, P1)[t & 1]; Pn = (P0, P1)[(t + 1) & 1]
        pk, pv = (t + 1) & 1, t & 1
        f0 = 0 if do_A else 16
        nfr = 32 - f0
        plan = {}
        def put(g, s): plan.setdefault(g, []).append(s)
        if cfg.barrier:
            if barA and do_A:
                put(cfg.xa, f"s_waitcnt vmcnt({vmA})"); put(cfg.xa, "s_barrier")
            if barB:
                put(cfg.xb, f"s_waitcnt vmcnt({vmB})"); put(cfg.xb, "s_barrier")
        if cfg.dma:
            jobs = []
            if dmaKh: jobs.append((dma_tile('K', t & 1)[2:], cfg.dmaKh_gaps))
            if dmaV: jobs.append((dma_tile('V', (t + 1) & 1), cfg.dmaV_gaps))
            if dmaKt: jobs.append((dma_tile('K', (t + 1) & 1)[:2], cfg.dmaKt_gaps))
            for groups, gaps in jobs:
                for (pre, ins, post), g in zip(groups, gaps):
                    for s in pre: put(g - 1, s)
                    for s in ins + post: put(g, s)
        if self.pend_l:
            if do_A:
                for qb, g in enumerate(cfg.ladd_gaps): put(g, f"v_add_f32 {vr(L + qb)}, {vr(L + qb)}, {vr(PS + qb)}")
            else:
                for qb in range(4): put(64 + 2 * qb + 1, f"v_add_f32 {vr(L + qb)}, {vr(L + qb)}, {vr(PS + qb)}")
            self.pend_l = False
        vq0 = softmax_ops(0, Pn) if (do_soft and cfg.valu) else []
        vq1 = softmax_ops(1, Pn) if (do_soft and cfg.valu) else []
        pend_reads = []
        for i in range(4 * f0, 128):
            f = i >> 2; qb = i & 3
            absf = self.fidx + (f - f0)
            if qb == 0:
                a.need(("f", absf))
            fr = vr(FR + 4 * (f % 4), 4)
            if f < 16:
                kb, ks = f >> 3, f & 7
                d = vr(Sreg(kb, qb), 4)
                cin = vr(NEGM + 4 * qb, 4) if ks == 0 else d
                a.i(f"v_mfma_f32_16x16x32_bf16 {d}, {fr}, {vr(Q + 32 * qb + 4 * ks, 4)}, {cin}")
            else:
                db = f - 16
                cin = "0" if first else O(db, qb)
                a.i(f"v_mfma_f32_16x16x32_bf16 {O(db, qb)}, {fr}, {vr(Pu + 4 * qb, 4)}, {cin}")
            budget = cfg.cap
            if qb == 0:
                j = f + PF
                if j < 32:
                    pend_reads += [(s, ("f", self.fidx + j - f0)) for s in frag_reads(j, pk, pv)]
                elif nxt == 'A':
                    pend_reads += [(s, ("f", self.fidx + nfr + j - 32)) for s in frag_reads(j - 32, (t + 2) & 1, (t + 1) & 1)]
                elif nxt == 'B':
                    pend_reads += [(s, ("f", self.fidx + nfr + j - 32)) for s in frag_reads(16 + j - 32, 0, (t + 1) & 1)]
            for s in plan.pop(i, []):
                a.i(s); budget -= 1
            while pend_reads and budget >= 1:
                s, tag = pend_reads.pop(0)
                a.lds(s, tag); budget -= 1
            if qb == 3: budget -= 1
            while extra_q and i >= extra_start and budget >= 1:
                a.i(extra_q.pop(0)); budget -= 1
            for vq, st in ((vq0, cfg.s0_start), (vq1, cfg.s1_start)):
                if vq is vq1 and vq0: continue
                while vq and i >= st and budget >= vq[0][0]:
                    c, s = vq.pop(0); budget -= c
                    a.i(s)
        for s, tag in pend_reads: a.lds(s, tag)
        for s in (extra_q or []): a.i(s)
        left = len(vq0) + len(vq1)
        if left: a.c(f"leftover softmax ops: {left}")
        for c, s in vq0 + vq1:
            a.i(s)
        assert not plan, plan
        if do_soft and cfg.valu:
            tr = a.newlabel("TR"); ret = a.newlabel("RET")
            a.i(f"v_max3_f32 {vr(TA)}, {vr(PS)}, {vr(PS + 1)}, {vr(PS + 2)}")
            a.i(f"v_max_f32 {vr(TA)}, {vr(TA)}, {vr(PS + 3)}")
            a.i(f"v_cmp_lt_f32 vcc, {sr(S_THR)}, {vr(TA)}")
            a.i(f"s_cbranch_vccnz {tr}")
            a.label(ret)
            self.pend_l = True
            self.tramps.append((tr, ret, (t + 1) & 1))
        self.fidx += nfr

    def rowmax4(self, qb, dst, tmp):
        a = self.a
        s0, s1 = Sreg(0, qb), Sreg(1, qb)
        a.i(f"v_max3_f32 {vr(dst)}, {vr(s0)}, {vr(s0 + 1)}, {vr(s0 + 2)}")
        a.i(f"v_max3_f32 {vr(dst)}, {vr(dst)}, {vr(s0 + 3)}, {vr(s1)}")
        a.i(f"v_max3_f32 {vr(dst)}, {vr(dst)}, {vr(s1 + 1)}, {vr(s1 + 2)}")
        a.i(f"v_max_f32 {vr(dst)}, {vr(dst)}, {vr(s1 + 3)}")
        self.xreduce(dst, tmp, "v_max_f32")

    def xreduce(self, dst, tmp, op):
        a = self.a
        a.i(f"v_mov_b32 {vr(tmp)}, {vr(dst)}")
        a.i("s_nop 1")
        a.i(f"v_permlane32_swap_b32 {vr(dst)}, {vr(tmp)}")
        a.i("s_nop 1")
        a.i(f"{op} {vr(dst)}, {vr(dst)}, {vr(tmp)}")
        a.i(f"v_mov_b32 {vr(tmp)}, {vr(dst)}")
        a.i("s_nop 1")
        a.i(f"v_permlane16_swap_b32 {vr(dst)}, {vr(tmp)}")
        a.i("s_nop 1")
        a.i(f"{op} {vr(dst)}, {vr(dst)}, {vr(tmp)}")

    def emit_rare(self):
        a = self.a
        for tr, ret, par in self.tramps:
            a.label(tr)
            a.i(f"s_call_b64 {sr(S_RET, 2)}, FB_{par}")
            a.i(f"s_branch {ret}")
        for par in sorted({p for _, _, p in self.tramps}):
            Pn = (P0, P1)[par]
            a.label(f"FB_{par}")
            a.i("s_nop 15")
            for qb in range(4):
                self.rowmax4(qb, TA, TB)
                a.i(f"v_max_f32 {vr(TA)}, 0, {vr(TA)}")
                a.i(f"v_exp_f32 {vr(TB)}, -{vr(TA)}")
                a.i("s_nop 0")
                for db in range(16):
                    for r in range(4):
                        x = 16 * db + 4 * qb + r
                        a.i(f"v_accvgpr_read_b32 {vr(6)}, {ar(x)}")
                        a.i(f"v_mul_f32 {vr(6)}, {vr(TB)}, {vr(6)}")
                        a.i(f"v_accvgpr_write_b32 {ar(x)}, {vr(6)}")
                a.i(f"v_mul_f32 {vr(L + qb)}, {vr(TB)}, {vr(L + qb)}")
                for r in range(4):
                    a.i(f"v_sub_f32 {vr(NEGM + 4 * qb + r)}, {vr(NEGM + 4 * qb + r)}, {vr(TA)}")
                    for kb in range(2):
                        a.i(f"v_sub_f32 {vr(Sreg(kb, qb) + r)}, {vr(Sreg(kb, qb) + r)}, {vr(TA)}")
            for kb in range(2):
                for c, s in softmax_ops(kb, Pn):
                    a.i(s)
                    if c == 2: a.i("s_nop 0")
            a.i("s_nop 3")
            a.i(f"s_setpc_b64 {sr(S_RET, 2)}")
```

```python
from asmlib import *
from core16 import *
import core16 as c16
from kern_small import (srd, kstart, bf_lo, bf_hi, f2u, sigmoid, round_bf, QSCALE, WS_A1, WS_S1, WS_GA, WS_A2, WS_SB, WS_GB, WS_PART, WS_SIZE, WS_STAT)

SRD_X = 12
SRD_WS = 16
SRD_WQ = 68
S_KH = 32; S_RG = 33; S_G = 34; S_QW = 35
T0, T1, T2, T3 = 36, 37, 38, 39
S_WOFF = 40; S_WOFF2 = 41; S_WM0 = 42

WT = 33792
PHYS = [2 * WT, 1 * WT, 0 * WT, 3 * WT]
HB = 102912
MODB = 160256
QX = 98304
ST = 57344
XB = 67584
OX = 67584
WOT = 28672
WOSLOT = [0, WOT, 133120, 67584]
TB = 0; TSTR = 912

DBG = {}
WARM_MOE = True

def k1_setup(a):
    a.i("s_load_dwordx2 s[44:45], s[0:1], 0")
    a.i("s_load_dwordx4 s[48:51], s[0:1], 8")
    a.i("s_load_dwordx4 s[52:55], s[0:1], 24")
    a.i("s_load_dwordx2 s[56:57], s[0:1], 112")
    a.i("s_load_dwordx4 s[60:63], s[0:1], 56")
    a.i("s_load_dwordx2 s[64:65], s[0:1], 72")
    a.i("v_lshrrev_b32 v1, 6, v0"); a.i("s_nop 0")
    a.i(f"v_readfirstlane_b32 {sr(S_W)}, v1")
    a.i("v_and_b32 v0, 63, v0")
    a.i(f"s_and_b32 {sr(S_KH)}, {sr(S_W)}, 1")
    a.i(f"s_lshr_b32 {sr(S_RG)}, {sr(S_W)}, 1")
    a.i(f"s_and_b32 {sr(S_G)}, s2, 7")
    a.i(f"s_lshr_b32 {sr(S_QW)}, s2, 3")

def k1_srds(a):
    a.i("s_waitcnt lgkmcnt(0)")
    srd(a, SRD_X, 44, 2048 * 896)
    srd(a, SRD_WS, 56, 0x2000000)
    a.i(f"s_lshl_b32 {sr(T0)}, {sr(S_G)}, 10")
    a.i(f"s_add_u32 {sr(SRD_WQ)}, s52, {sr(T0)}"); a.i(f"s_addc_u32 {sr(SRD_WQ + 1)}, s53, 0")
    a.i(f"s_sub_u32 {sr(SRD_WQ + 2)}, {448 * 8192}, {sr(T0)}"); a.i(f"s_mov_b32 {sr(SRD_WQ + 3)}, 0x20000")

def kv_srds(a):
    a.i(f"s_lshl_b32 {sr(T0)}, {sr(S_G)}, 20")
    for d, p, bias in ((SRD_K, 48, 128), (SRD_V, 50, 256)):
        a.i(f"s_add_u32 {sr(d)}, {sr(p)}, {sr(T0)}"); a.i(f"s_addc_u32 {sr(d + 1)}, {sr(p + 1)}, 0")
        a.i(f"s_sub_u32 {sr(d)}, {sr(d)}, {bias}"); a.i(f"s_subb_u32 {sr(d + 1)}, {sr(d + 1)}, 0")
        a.i(f"s_mov_b32 {sr(d + 2)}, {0x100000 + bias}"); a.i(f"s_mov_b32 {sr(d + 3)}, 0x20000")

WQV = 4
def wq_setup(a):
    a.i(f"s_lshl_b32 {sr(T0)}, {sr(S_KH)}, 3"); a.i(f"v_xor_b32 v1, {sr(T0)}, v0")
    a.i("v_lshlrev_b32 v1, 4, v1")
    a.i(f"s_lshl_b32 {sr(T0)}, {sr(S_W)}, 16")
    a.i(f"v_add_u32 v1, {sr(T0)}, v1")
    for j in range(4):
        a.i(f"v_add_u32 {vr(WQV + j)}, {j * (8192 - 1056)}, v1")
    a.i(f"s_mul_i32 {sr(S_WM0)}, {sr(S_W)}, 8448")
    a.i(f"s_mov_b32 {sr(S_WOFF)}, 0"); a.i(f"s_mov_b32 {sr(S_WOFF2)}, {4 * 8192}")

def wq_tile(s):
    base = PHYS[s % 4]
    groups = []
    for i in range(8):
        pre = [f"s_add_u32 m0, {sr(S_WM0)}, {base + (i // 4) * 4224}"] if i % 4 == 0 else []
        so = (S_WOFF, S_WOFF2)[i // 4]
        ins = [f"buffer_load_dwordx4 {vr(WQV + (i & 3))}, {sr(SRD_WQ, 4)}, {sr(so)} offen offset:{1056 * (i & 3)} lds"]
        post = [f"s_add_u32 {sr(so)}, {sr(so)}, {32 * 8192}"] if i % 4 == 3 else []
        groups.append((pre, ins, post))
    return groups

def emit_groups(a, groups):
    for pre, ins, post in groups:
        for s in pre: a.i(s); a.i("s_nop 0")
        for s in ins + post: a.i(s)

def attn_setup(a):
    kh, rg = sr(S_KH), sr(S_RG)
    t = sr(T0)
    a.i(f"s_mul_i32 {sr(S_KM0)}, {kh}, {KSLOT}"); a.i(f"s_mul_i32 {t}, {rg}, {8 * 1056}"); a.i(f"s_add_u32 {sr(S_KM0)}, {sr(S_KM0)}, {t}")
    a.i(f"s_mul_i32 {sr(S_VM0)}, {kh}, {VSLOT}"); a.i(f"s_mul_i32 {t}, {rg}, {8 * 1088}"); a.i(f"s_add_u32 {sr(S_VM0)}, {sr(S_VM0)}, {t}")
    a.i(f"s_lshl_b32 {sr(S_KOFF)}, {kh}, 19"); a.i(f"s_add_u32 {sr(S_KOFF2)}, {sr(S_KOFF)}, 4096")
    a.i(f"s_mov_b32 {sr(S_VOFF)}, {sr(S_KOFF)}"); a.i(f"s_mov_b32 {sr(S_VOFF2)}, {sr(S_KOFF2)}")
    a.i(f"s_mov_b32 {sr(S_THR)}, 0x46800000")
    a.i("v_lshrrev_b32 v2, 5, v0"); a.i("v_and_b32 v1, 31, v0")
    a.i("v_xor_b32 v3, v1, v2"); a.i("v_lshlrev_b32 v3, 4, v3"); a.i("v_lshl_add_u32 v3, v2, 9, v3")
    a.i(f"s_lshl_b32 {t}, {rg}, 13"); a.i(f"v_add_u32 v3, {t}, v3")
    for j in range(4): a.i(f"v_add_u32 {vr(DK + j)}, {128 - 32 * j}, v3")

def attn_setup2(a):
    kh, rg = sr(S_KH), sr(S_RG); t = sr(T0)
    a.i("v_and_b32 v1, 15, v0"); a.i("v_lshrrev_b32 v2, 4, v0"); a.i("v_and_b32 v3, 1, v0")
    a.i("v_lshrrev_b32 v4, 1, v1"); a.i("v_mul_u32_u24 v4, 1056, v4"); a.i("v_lshl_add_u32 v4, v3, 9, v4")
    a.i("v_xor_b32 v5, v2, v3"); a.i("v_lshl_add_u32 v4, v5, 4, v4")
    a.i(f"s_mul_i32 {t}, {kh}, {KSLOT}"); a.i(f"v_add_u32 {vr(KB)}, {t}, v4")
    a.i("v_bfe_u32 v3, v0, 2, 1"); a.i("v_bfe_u32 v4, v0, 3, 1"); a.i("v_lshl_add_u32 v4, v2, 1, v4")
    a.i("v_mul_u32_u24 v4, 1088, v4"); a.i("v_lshl_add_u32 v4, v3, 9, v4")
    a.i("v_and_b32 v5, 3, v0"); a.i("v_lshl_add_u32 v4, v5, 3, v4")
    a.i(f"s_mul_i32 {t}, {kh}, {VSLOT}"); a.i(f"s_add_u32 {t}, {t}, {VRING}")
    a.i(f"v_add_u32 v4, {t}, v4")
    a.i(f"v_lshl_add_u32 {vr(VB)}, v3, 5, v4")
    a.i("v_xor_b32 v5, 1, v3"); a.i(f"v_lshl_add_u32 {vr(VB + 1)}, v5, 5, v4")
    a.i("v_lshrrev_b32 v2, 5, v0"); a.i("v_and_b32 v1, 31, v0")
    a.i("v_lshlrev_b32 v3, 1, v2"); a.i("v_xor_b32 v3, v1, v3"); a.i("v_lshlrev_b32 v3, 4, v3"); a.i("v_lshl_add_u32 v3, v2, 9, v3")
    a.i(f"s_lshl_b32 {t}, {rg}, 13"); a.i(f"v_add_u32 v3, {t}, v3")
    for j in range(4): a.i(f"v_add_u32 {vr(DV + j)}, {256 - 64 * j}, v3")

XF = 16
XR = 128
MV = 184
def x_issue(a):
    a.i("v_and_b32 v1, 15, v0"); a.i("v_lshrrev_b32 v2, 4, v0")
    a.i(f"s_lshl_b32 {sr(T0)}, {sr(S_QW)}, 6"); a.i(f"s_lshl_b32 {sr(T1)}, {sr(S_W)}, 4"); a.i(f"s_add_u32 {sr(T0)}, {sr(T0)}, {sr(T1)}")
    a.i(f"v_add_u32 v3, {sr(T0)}, v1")
    a.i("v_lshlrev_b32 v9, 3, v3"); a.i(f"s_mov_b32 {sr(T1)}, {WS_STAT}")
    a.i(f"buffer_load_dwordx2 v[14:15], v9, {sr(SRD_WS, 4)}, {sr(T1)} offen")
    a.i("v_lshlrev_b32 v8, 4, v0")
    a.i(f"s_lshl_b32 {sr(T0)}, {sr(S_W)}, 10"); a.i(f"s_add_u32 m0, {sr(T0)}, {MODB}")
    a.i(f"s_cmp_eq_u32 {sr(S_W)}, 3"); a.i("s_cselect_b32 exec_hi, 0, -1")
    a.i(f"buffer_load_dwordx4 v8, {sr(SRD_WS, 4)}, {sr(T0)} offen lds")
    a.i("s_mov_b32 exec_hi, -1")
    a.i("v_mul_u32_u24 v3, 896, v3"); a.i("v_lshl_add_u32 v3, v2, 4, v3")
    for i in range(14):
        a.i(f"buffer_load_dwordx4 {vr(XR + 4 * i, 4)}, v3, {sr(SRD_X, 4)}, 0 offen offset:{64 * i}")
    a.i(f"s_lshl_b32 {sr(T0)}, {sr(S_W)}, 5"); a.i(f"v_and_b32 v9, 31, v0"); a.i(f"v_add_u32 v9, {sr(T0)}, v9")
    a.i("v_lshrrev_b32 v10, 3, v9"); a.i(f"s_mul_i32 {sr(T0)}, {sr(S_QW)}, 14"); a.i(f"v_add_u32 v10, {sr(T0)}, v10")
    a.i("v_lshlrev_b32 v10, 13, v10"); a.i("v_and_b32 v9, 7, v9"); a.i("v_lshl_add_u32 v9, v9, 7, v10")
    a.i(f"buffer_load_dword v250, v9, {sr(SRD_WQ, 4)}, 0 offen")

def prologue(a, cfg):
    x_issue(a)
    wq_setup(a)
    kv_srds(a)
    wqq = []
    for s in range(3):
        for pre, ins, post in wq_tile(s): wqq.append((pre, ins, post))
    def drip(n=1):
        for _ in range(n):
            if wqq:
                pre, ins, post = wqq.pop(0)
                for t in pre: a.i(t); a.i("s_nop 0")
                for t in ins + post: a.i(t)
    a.i("s_waitcnt vmcnt(15)"); a.i("s_barrier")
    stamp(a, cfg, 'modv')
    a.i("v_lshrrev_b32 v2, 4, v0"); a.i("v_lshlrev_b32 v2, 5, v2"); a.i(f"v_add_u32 v2, {MODB}, v2")
    a.i("v_lshlrev_b32 v1, 4, v0"); a.i(f"s_lshl_b32 {sr(T0)}, {sr(S_W)}, 10"); a.i(f"s_add_u32 {sr(T0)}, {sr(T0)}, {HB}")
    a.i(f"v_add_u32 v1, {sr(T0)}, v1")
    def mv_read(i):
        b = MV + 16 * (i & 1)
        for k in range(2):
            a.lds(f"ds_read_b128 {vr(b + 4 * k, 4)}, v2 offset:{128 * i + 16 * k}", ("mv", i))
            a.lds(f"ds_read_b128 {vr(b + 8 + 4 * k, 4)}, v2 offset:{1792 + 128 * i + 16 * k}", ("mv", i))
    mv_read(0)
    a.i("v_mov_b32 v12, v15")
    ndrip = 0
    for i in range(14):
        if i + 1 < 14: mv_read(i + 1)
        a.i(f"s_waitcnt vmcnt({13 - i + 1 + ndrip})")
        if i == 0: stamp(a, cfg, 'xarr')
        for j in range(4):
            x = XF + 8 * (i & 1) + 2 * j
            bf_lo(a, x, XR + 4 * i + j); bf_hi(a, x + 1, XR + 4 * i + j)
        a.need(("mv", i))
        b = MV + 16 * (i & 1)
        for k in range(0, 8, 2):
            x = XF + 8 * (i & 1) + k
            a.i(f"v_pk_fma_f32 {vr(x, 2)}, {vr(x, 2)}, v[14:15], v[12:13] op_sel_hi:[1,0,0]")
            a.i(f"v_pk_fma_f32 {vr(x, 2)}, {vr(x, 2)}, {vr(b + k, 2)}, {vr(b + 8 + k, 2)}")
            a.i(f"v_cvt_pk_bf16_f32 {vr(XR + 4 * i + k // 2)}, {vr(x)}, {vr(x + 1)}")
        a.lds(f"ds_write_b128 v1, {vr(XR + 4 * i, 4)} offset:{4096 * i}")
        if i >= 2: drip(2); ndrip += 2
    assert not wqq
    stamp(a, cfg, 'ln')
    a.lds_drain(); a.i("s_barrier")
    a.i(f"v_lshlrev_b32 v14, 4, v0"); a.i(f"v_add_u32 v14, {HB}, v14")
    for ks in range(8):
        for qb in range(4):
            a.lds(f"ds_read_b128 {ar((ks * 4 + qb) * 4, 4)}, v14 offset:{(ks * 4 + qb) * 1024}", ("hf", ks))
        if ks % 3 == 2: a.lds_drain()
    a.lds_drain()

WA = 8
WAH = 12
QACC = 128
def qproj(a):
    attn_setup(a)
    a.i("v_lshrrev_b32 v1, 4, v0"); a.i("v_bfe_u32 v2, v0, 2, 2"); a.i("v_lshl_add_u32 v2, v1, 3, v2"); a.i("v_mul_u32_u24 v2, 1056, v2")
    a.i("v_and_b32 v3, 3, v0"); a.i("v_lshl_add_u32 v2, v3, 3, v2")
    a.i(f"s_lshl_b32 {sr(T0)}, {sr(S_W)}, 8")
    a.i(f"v_add_u32 v2, {sr(T0)}, v2")
    a.i("v_and_b32 v3, 1, v1"); a.i("v_lshlrev_b32 v3, 7, v3")
    a.i(f"v_add_u32 {vr(WA)}, v2, v3"); a.i(f"v_sub_u32 {vr(WA + 1)}, v2, v3")
    a.i(f"v_add_u32 {vr(WAH)}, {2 * WT}, {vr(WA)}"); a.i(f"v_add_u32 {vr(WAH + 1)}, {2 * WT}, {vr(WA + 1)}")
    a.i("s_waitcnt vmcnt(16)"); a.i("s_barrier")
    PF = 3
    def fread(absf):
        s, db = absf // 8, absf % 8
        ph = PHYS[s % 4]
        breg, off = (WA, ph) if ph < 2 * WT else (WAH, ph - 2 * WT)
        breg += db >> 2
        r = FR + 4 * (absf % 4)
        return [(f"ds_read_b64_tr_b16 {vr(r + 2 * r2, 2)}, {vr(breg)} offset:{off + 4224 * r2 + 32 * db}", ("wf", absf)) for r2 in range(2)]
    for f in range(PF):
        for s, tag in fread(f): a.lds(s, tag)
    pend = []
    for s in range(14):
        plan = {}
        def put(g, t): plan.setdefault(g, []).append(t)
        if s + 1 < 14:
            vm = 8
            put(1, f"s_waitcnt vmcnt({vm})"); put(1, "s_barrier")
        else:
            put(1, "s_barrier")
        groups = None
        if s + 3 < 14: groups = wq_tile(s + 3)
        elif s == 11: groups = dma_tile('K', 0)
        if groups:
            for (pre, ins, post), g in zip(groups, [3, 6, 10, 14, 18, 22, 26, 30]):
                for t in pre: put(g - 1, t)
                for t in ins + post: put(g, t)
        hq = []
        if s < 6:
            hq = [(f"ds_read_b128 {ar(((8 + s) * 4 + qb) * 4, 4)}, v14 offset:{((8 + s) * 4 + qb) * 1024}", ("hf", 8 + s)) for qb in range(4)]
        for i in range(32):
            db, qb = i >> 2, i & 3
            absf = 8 * s + db
            if qb == 0: a.need(("wf", absf))
            if i == 0 and s >= 8: a.need(("hf", s))
            if hq and i % 8 == 3:
                t, tag = hq.pop(0); a.lds(t, tag)
            acc = vr(QACC + 16 * db + 4 * qb, 4)
            a.i(f"v_mfma_f32_16x16x32_bf16 {acc}, {vr(FR + 4 * (absf % 4), 4)}, {ar((s * 4 + qb) * 4, 4)}, {'0' if s == 0 else acc}")
            if qb == 0 and absf + PF < 8 * 14: pend += fread(absf + PF)
            for t in plan.pop(i, []): a.i(t)
            k = 0
            while pend and k < 2:
                t, tag = pend.pop(0); a.lds(t, tag); k += 1
        assert not plan

def qexchange(a):
    a.i("s_nop 7")
    a.i("v_and_b32 v1, 15, v0"); a.i("v_lshlrev_b32 v1, 4, v1"); a.i("v_bfe_u32 v2, v0, 4, 1"); a.i("v_lshl_add_u32 v1, v2, 3, v1")
    a.i("v_lshrrev_b32 v2, 5, v0"); a.i("v_lshl_add_u32 v1, v2, 8, v1")
    a.i(f"s_lshl_b32 {sr(T0)}, {sr(S_RG)}, 15"); a.i(f"s_add_u32 {sr(T0)}, {sr(T0)}, {QX}")
    a.i(f"s_lshl_b32 {sr(T1)}, {sr(S_KH)}, 12"); a.i(f"s_add_u32 {sr(T1)}, {sr(T1)}, {sr(T0)}")
    a.i(f"v_add_u32 v3, {sr(T1)}, v1")
    n = 0
    for db in range(8):
        for qb in range(4):
            x = QACC + 16 * db + 4 * qb
            t = 96 + 2 * (n % 8); n += 1
            a.i(f"v_cvt_pk_bf16_f32 {vr(t)}, {vr(x)}, {vr(x + 1)}")
            a.i(f"v_cvt_pk_bf16_f32 {vr(t + 1)}, {vr(x + 2)}, {vr(x + 3)}")
            a.lds(f"ds_write_b64 v3, {vr(t, 2)} offset:{8192 * qb + 1024 * (db >> 1) + 512 * (db & 1)}")
    a.i("v_lshlrev_b32 v3, 4, v0"); a.i(f"v_add_u32 v3, {sr(T0)}, v3")
    a.lds_drain(); a.i("s_barrier")
    kq = []
    for pre, ins, post in dma_tile('K', 1):
        kq.append([t for t in pre] + (["s_nop 0"] if pre else []) + ins + post)
    for ks in range(8):
        for qb in range(4):
            a.lds(f"ds_read_b128 {vr(Q + 32 * qb + 4 * ks, 4)}, v3 offset:{8192 * qb + 1024 * ks}", ("qf", ks))
        for t in kq.pop(0): a.i(t)
        if ks % 2 == 1: a.need(("qf", ks - 1))
    attn_setup2(a)
    a.lds_drain()
    a.i("s_waitcnt vmcnt(8)"); a.i("s_barrier")
    emit_groups(a, dma_tile('V', 0))

def attention(a, cfg):
    core = Core16(a, cfg)
    for f in range(16):
        for s in frag_reads(f, 0, 0): a.lds(s)
        if f % 4 == 3:
            a.lds_drain()
            for f2 in range(f - 3, f + 1):
                kb, ks = f2 >> 3, f2 & 7
                for qb in range(4):
                    d = vr(Sreg(kb, qb), 4)
                    a.i(f"v_mfma_f32_16x16x32_bf16 {d}, {vr(FR + 4 * (f2 % 4), 4)}, {vr(Q + 32 * qb + 4 * ks, 4)}, {'0' if ks == 0 else d}")
    a.i("s_nop 7")
    for qb in range(4):
        core.rowmax4(qb, TA, TB_)
        for r in range(4):
            a.i(f"v_sub_f32 {vr(NEGM + 4 * qb + r)}, 0, {vr(TA)}")
            for kb in range(2):
                a.i(f"v_sub_f32 {vr(Sreg(kb, qb) + r)}, {vr(Sreg(kb, qb) + r)}, {vr(TA)}")
        a.i(f"v_mov_b32 {vr(L + qb)}, 0")
    for kb in range(2):
        for c, s in softmax_ops(kb, P0):
            a.i(s)
            if c == 2: a.i("s_nop 0")
    for qb in range(4):
        a.i(f"v_add_f32 {vr(L + qb)}, {vr(L + qb)}, {vr(PS + qb)}")
    a.i("s_waitcnt vmcnt(8)"); a.i("s_barrier")
    emit_groups(a, dma_tile('K', 0)[:2])
    core.prefetch_first(0)
    core.iteration(0, first=True)
    a.i(f"s_mov_b32 {sr(S_CNT)}, 14")
    st0 = a.lds_state(); base0 = core.fidx
    st0 = {k: v for k, v in st0.items() if k[0] == 'f'}
    a.lds_done = a.tag_last[("f", core.fidx)] - 1
    a.raw(".p2align 3")
    a.label("K1_LOOP")
    core.pend_l = True
    core.iteration(1); core.iteration(2)
    a.i(f"s_sub_u32 {sr(S_CNT)}, {sr(S_CNT)}, 1")
    a.i(f"s_cmp_lg_u32 {sr(S_CNT)}, 0")
    a.i("s_cbranch_scc1 K1_LOOP")
    st1 = {k: v for k, v in a.lds_state().items() if k[0] == 'f'}
    rel0 = {k[1] - base0: v for k, v in st0.items()}; rel1 = {k[1] - core.fidx: v for k, v in st1.items()}
    assert all(rel0.get(k) == v for k, v in rel1.items()), (rel0, rel1)
    a.i(f"s_mul_i32 {sr(T2)}, {sr(S_G)}, {512 * 896}")
    a.i(f"s_add_u32 {sr(SRD_X)}, s54, {sr(T2)}"); a.i(f"s_addc_u32 {sr(SRD_X + 1)}, s55, 0")
    a.i(f"s_mov_b32 {sr(SRD_X + 2)}, {512 * 896}"); a.i(f"s_mov_b32 {sr(SRD_X + 3)}, 0x20000")
    a.i(f"s_mul_i32 {sr(T2)}, {sr(S_QW)}, {112 * 128}"); a.i(f"s_lshl_b32 {sr(T3)}, {sr(S_W)}, 12"); a.i(f"s_add_u32 {sr(T2)}, {sr(T2)}, {sr(T3)}")
    a.i(f"v_and_b32 {vr(TA)}, 31, v0"); a.i(f"v_lshlrev_b32 {vr(TA)}, 7, {vr(TA)}")
    a.i(f"buffer_load_dword v15, {vr(TA)}, {sr(SRD_X, 4)}, {sr(T2)} offen")
    core.iteration(1, dmaKt=False)
    core.iteration(2, dmaKh=False, dmaKt=False, nxt='B', vmA=0, vmB=0)
    class L_:
        def __init__(self): self.q = []
        def i(self, t): self.q.append(t)
    lq = L_(); wo_setup(lq)
    for s_ in range(2):
        for pre, ins, post in wo_tile(s_):
            for t in pre: lq.i(t); lq.i("s_nop 0")
            for t in ins + post: lq.i(t)
    core.iteration(3, do_A=False, do_soft=False, dmaV=False, dmaKh=False, dmaKt=False, nxt=None, barB=False, extra_q=lq.q, extra_start=64)
    return core

TB_ = c16.TB

def merge(a, core, cfg):
    for qb in range(4): core.xreduce(L + qb, TA, "v_add_f32")
    a.i("v_lshlrev_b32 v1, 2, v0"); a.i(f"s_lshl_b32 {sr(T0)}, {sr(S_W)}, 11"); a.i(f"s_add_u32 {sr(T1)}, {sr(T0)}, {ST}")
    a.i(f"v_add_u32 v2, {sr(T1)}, v1")
    for qb in range(4):
        a.lds(f"ds_write_b32 v2, {vr(NEGM + 4 * qb)} offset:{256 * qb}")
        a.lds(f"ds_write_b32 v2, {vr(L + qb)} offset:{1024 + 256 * qb}")
    a.i(f"s_xor_b32 {sr(T0)}, {sr(T0)}, 2048"); a.i(f"s_add_u32 {sr(T1)}, {sr(T0)}, {ST}")
    a.i(f"v_add_u32 v2, {sr(T1)}, v1")
    a.lds_drain(); a.i("s_barrier")
    for qb in range(4):
        a.lds(f"ds_read_b32 {vr(16 + qb)}, v2 offset:{256 * qb}")
        a.lds(f"ds_read_b32 {vr(20 + qb)}, v2 offset:{1024 + 256 * qb}", "st")
    a.i("v_lshlrev_b32 v1, 4, v0")
    a.i(f"s_lshl_b32 {sr(T0)}, {sr(S_W)}, 14"); a.i(f"s_add_u32 {sr(T1)}, {sr(T0)}, {XB}"); a.i(f"v_add_u32 v6, {sr(T1)}, v1")
    a.i(f"s_xor_b32 {sr(T0)}, {sr(T0)}, 16384"); a.i(f"s_add_u32 {sr(T1)}, {sr(T0)}, {XB}"); a.i(f"v_add_u32 v7, {sr(T1)}, v1")
    emit_groups(a, wo_tile(2))
    a.need("st")
    for qb in range(4):
        no, np_ = NEGM + 4 * qb, 16 + qb
        a.i(f"v_min_f32 v4, {vr(no)}, {vr(np_)}")
        a.i(f"v_sub_f32 v5, v4, {vr(no)}"); a.i("v_exp_f32 v5, v5")
        a.i(f"v_sub_f32 v3, v4, {vr(np_)}"); a.i("v_exp_f32 v3, v3")
        a.i("s_nop 0")
        a.i(f"v_mul_f32 v2, v5, {vr(L + qb)}"); a.i(f"v_fmac_f32 v2, v3, {vr(20 + qb)}")
        a.i("v_rcp_f32 v2, v2"); a.i("s_nop 0")
        a.i(f"v_mul_f32 {vr(24 + 2 * qb)}, v5, v2"); a.i(f"v_mul_f32 {vr(32 + 2 * qb)}, v3, v2")
    R = 72; OWN = 128
    a.i(f"s_cmp_eq_u32 {sr(S_KH)}, 0"); a.i("s_cbranch_scc0 K1_MG1")
    for kh in range(2):
        if kh == 1: a.label("K1_MG1")
        ownq = []
        for dbp in range(8):
            for qb in range(4):
                k = dbp * 4 + qb; x = 16 * (8 * kh + dbp) + 4 * qb; o = OWN + 4 * k
                ownq.append([f"v_accvgpr_read_b32 {vr(o + j)}, {ar(x + j)}" for j in range(4)] +
                            [f"v_pk_mul_f32 {vr(o + j, 2)}, {vr(o + j, 2)}, {vr(24 + 2 * qb, 2)} op_sel_hi:[1,0]" for j in (0, 2)])
        for rho in range(2):
            if rho == 1: a.i("s_barrier")
            for d4 in range(4):
                db = 8 * (1 - kh) + 4 * rho + d4
                for qb in range(4):
                    a.lds(f"ds_write_b128 v6, {ar(16 * db + 4 * qb, 4)} offset:{(d4 * 4 + qb) * 1024}")
                    if ownq:
                        for t in ownq.pop(0): a.i(t)
            a.lds_drain(); a.i("s_barrier")
            for half in range(2):
                for kk in range(8):
                    t16 = 8 * half + kk
                    a.lds(f"ds_read_b128 {vr(R + 4 * kk, 4)}, v7 offset:{t16 * 1024}", ("mg", kh, rho, t16))
                for kk in range(8):
                    t16 = 8 * half + kk
                    k = 16 * rho + t16; qb = k & 3; rr = R + 4 * kk; o = OWN + 4 * k
                    a.need(("mg", kh, rho, t16))
                    for j in (0, 2):
                        a.i(f"v_pk_fma_f32 {vr(o + j, 2)}, {vr(rr + j, 2)}, {vr(32 + 2 * qb, 2)}, {vr(o + j, 2)} op_sel_hi:[1,0,1]")
                    a.i(f"v_cvt_pk_bf16_f32 {vr(o)}, {vr(o)}, {vr(o + 1)}")
                    a.i(f"v_cvt_pk_bf16_f32 {vr(o + 1)}, {vr(o + 2)}, {vr(o + 3)}")
        if kh == 0: a.i("s_branch K1_MGJ")
    a.label("K1_MGJ")
    a.i("v_and_b32 v1, 15, v0"); a.i("v_lshlrev_b32 v1, 4, v1"); a.i("v_bfe_u32 v2, v0, 4, 1"); a.i("v_lshl_add_u32 v1, v2, 3, v1")
    a.i("v_lshrrev_b32 v2, 5, v0"); a.i("v_lshl_add_u32 v1, v2, 8, v1")
    a.i(f"s_lshl_b32 {sr(T0)}, {sr(S_W)}, 14"); a.i(f"s_add_u32 {sr(T0)}, {sr(T0)}, {OX}"); a.i(f"v_add_u32 v3, {sr(T0)}, v1")
    a.i("s_barrier")
    for dbp in range(8):
        for qb in range(4):
            a.lds(f"ds_write_b64 v3, {vr(OWN + 4 * (dbp * 4 + qb), 2)} offset:{(dbp >> 1) * 4096 + qb * 1024 + 512 * (dbp & 1)}")
    a.i(f"v_lshlrev_b32 v14, 4, v0"); a.i(f"v_add_u32 v14, {OX}, v14")
    a.lds_drain(); a.i("s_barrier")
    for ks in range(8):
        for qb in range(4):
            a.lds(f"ds_read_b128 {ar((ks * 4 + qb) * 4, 4)}, v14 offset:{(ks * 4 + qb) * 1024}", ("ox", ks))
        if ks % 2 == 1: a.need(("ox", ks - 1))

WOV = 64
WOA = 16
OACC = 128
S_OOFF = 40; S_OM0 = 42
def wo_setup(a):
    a.i(f"s_mul_i32 {sr(S_OM0)}, {sr(S_W)}, 7168"); a.i(f"s_mov_b32 {sr(S_OOFF)}, 0")
    for i in range(7):
        d = WOV + i
        a.i(f"s_mul_i32 {sr(T2)}, {sr(S_W)}, 448"); a.i(f"s_add_u32 {sr(T2)}, {sr(T2)}, {64 * i}")
        a.i(f"v_add_u32 {vr(d)}, {sr(T2)}, v0")
        a.i(f"v_mul_u32_u24 v2, 18725, {vr(d)}"); a.i("v_lshrrev_b32 v2, 20, v2")
        a.i("v_bfe_u32 v3, v2, 1, 1"); a.i("v_bfe_u32 v2, v2, 3, 1"); a.i("v_lshl_or_b32 v3, v2, 1, v3")
        a.i("v_lshlrev_b32 v3, 5, v3"); a.i(f"v_lshlrev_b32 {vr(d)}, 4, {vr(d)}"); a.i(f"v_xor_b32 {vr(d)}, {vr(d)}, v3")
        if i & 3: a.i(f"v_subrev_u32 {vr(d)}, {1024 * (i & 3)}, {vr(d)}")

def wo_tile(s):
    base = WOSLOT[s % 4]
    groups = []
    for i in range(7):
        pre = [f"s_add_u32 m0, {sr(S_OM0)}, {base + (i // 4) * 4096}"] if i % 4 == 0 else []
        ins = [f"buffer_load_dwordx4 {vr(WOV + i)}, {sr(SRD_X, 4)}, {sr(S_OOFF)} offen offset:{1024 * (i & 3)} lds"]
        post = [f"s_add_u32 {sr(S_OOFF)}, {sr(S_OOFF)}, {WOT}"] if i == 6 else []
        groups.append((pre, ins, post))
    return groups

def oproj(a):
    a.i("v_lshrrev_b32 v1, 4, v0"); a.i("v_bfe_u32 v2, v0, 2, 2"); a.i("v_lshl_add_u32 v2, v1, 3, v2"); a.i("v_mul_u32_u24 v2, 896, v2")
    a.i("v_and_b32 v3, 3, v0"); a.i("v_lshl_add_u32 v2, v3, 3, v2")
    a.i("v_bfe_u32 v3, v0, 3, 1"); a.i("v_bfe_u32 v4, v0, 4, 1"); a.i("v_lshl_or_b32 v3, v4, 1, v3")
    a.i(f"s_mul_i32 {sr(T0)}, {sr(S_W)}, 7")
    for j in range(7):
        a.i(f"s_add_u32 {sr(T1)}, {sr(T0)}, {j}")
        a.i(f"v_xor_b32 v4, {sr(T1)}, v3"); a.i(f"v_lshl_add_u32 {vr(WOA + j)}, v4, 5, v2")
        a.i(f"v_add_u32 {vr(WOA + 7 + j)}, {WOSLOT[3]}, {vr(WOA + j)}")
        a.i(f"v_add_u32 {vr(WOA + 14 + j)}, {WOSLOT[2]}, {vr(WOA + j)}")
    a.lds_drain()
    a.i("s_waitcnt vmcnt(14)"); a.i("s_barrier")
    emit_groups(a, wo_tile(3))
    PF = 3
    NF = 7 * 16
    def fread(absf):
        s, j = absf // 7, absf % 7
        sl = s % 4
        breg, off = {0: (WOA + j, 0), 1: (WOA + j, WOT), 2: (WOA + 14 + j, 0), 3: (WOA + 7 + j, 0)}[sl]
        r = FR + 4 * (absf % 4)
        return [(f"ds_read_b64_tr_b16 {vr(r + 2 * r2, 2)}, {vr(breg)} offset:{off + 3584 * r2}", ("of", absf)) for r2 in range(2)]
    for f in range(PF):
        for s, tag in fread(f): a.lds(s, tag)
    pend = []
    for s in range(16):
        plan = {}
        def put(g, t): plan.setdefault(g, []).append(t)
        if s + 1 < 16:
            vm = 14 if s == 0 else (7 if s + 2 <= 15 else 0)
            put(1, f"s_waitcnt vmcnt({vm})"); put(1, "s_barrier")
        if s >= 1 and s + 3 < 16:
            for (pre, ins, post), g in zip(wo_tile(s + 3), [3, 6, 10, 14, 18, 22, 26]):
                for t in pre: put(g - 1, t)
                for t in ins + post: put(g, t)
        if s == 15 and WARM_MOE:
            put(2, f"s_cmp_eq_u32 {sr(S_W)}, 1"); put(2, "s_cselect_b32 s4, s62, s60"); put(2, "s_cselect_b32 s5, s63, s61")
            put(3, f"s_cmp_ge_u32 {sr(S_W)}, 2"); put(3, "s_cselect_b32 s4, s64, s4"); put(3, "s_cselect_b32 s5, s65, s5")
            put(4, f"s_mov_b32 s6, {448 * 3584}"); put(4, "s_mov_b32 s7, 0x20000")
            put(5, f"s_mul_i32 {sr(T2)}, s2, {49 * 128}"); put(5, "v_lshlrev_b32 v4, 7, v0")
            put(7, f"buffer_load_dword v5, v4, s[4:7], {sr(T2)} offen")
        hq = []
        if s < 8:
            hq = [(f"ds_read_b128 {ar(((8 + s) * 4 + qb) * 4, 4)}, v14 offset:{((8 + s) * 4 + qb) * 1024}", ("ox", 8 + s)) for qb in range(4)]
        for i in range(28):
            j, qb = i >> 2, i & 3
            absf = 7 * s + j
            if qb == 0: a.need(("of", absf))
            if i == 0 and s >= 8: a.need(("ox", s))
            if hq and i % 7 == 3:
                t, tag = hq.pop(0); a.lds(t, tag)
            acc = vr(OACC + 16 * j + 4 * qb, 4)
            a.i(f"v_mfma_f32_16x16x32_bf16 {acc}, {vr(FR + 4 * (absf % 4), 4)}, {ar((s * 4 + qb) * 4, 4)}, {'0' if s == 0 else acc}")
            if qb == 0 and absf + PF < NF: pend += fread(absf + PF)
            for t in plan.pop(i, []): a.i(t)
            k = 0
            while pend and k < 2:
                t, tag = pend.pop(0); a.lds(t, tag); k += 1
        assert not plan, plan

def store_partials(a):
    a.i("s_barrier")
    a.i("s_nop 7")
    a.i("v_and_b32 v1, 15, v0"); a.i(f"v_mul_u32_u24 v1, {TSTR}, v1"); a.i("v_lshrrev_b32 v2, 4, v0"); a.i("v_lshl_add_u32 v1, v2, 3, v1")
    a.i(f"s_mul_i32 {sr(T0)}, {sr(S_W)}, 224"); a.i(f"v_add_u32 v1, {sr(T0)}, v1")
    n = 0
    for j in range(7):
        for qb in range(4):
            x = OACC + 16 * j + 4 * qb; t = 96 + 2 * (n % 8); n += 1
            a.i(f"v_cvt_pk_bf16_f32 {vr(t)}, {vr(x)}, {vr(x + 1)}")
            a.i(f"v_cvt_pk_bf16_f32 {vr(t + 1)}, {vr(x + 2)}, {vr(x + 3)}")
            a.lds(f"ds_write_b64 v1, {vr(t, 2)} offset:{TB + 16 * TSTR * qb + 32 * j}")
    a.lds_drain(); a.i("s_barrier")
    a.i("v_lshlrev_b32 v1, 4, v0")
    a.i(f"s_mul_i32 {sr(T0)}, {sr(S_W)}, {16 * TSTR}"); a.i(f"v_add_u32 v2, {sr(T0)}, v1")
    a.i(f"s_lshl_b32 {sr(T0)}, {sr(S_QW)}, 6"); a.i(f"s_lshl_b32 {sr(T1)}, {sr(S_W)}, 4"); a.i(f"s_add_u32 {sr(T0)}, {sr(T0)}, {sr(T1)}")
    a.i(f"s_lshl_b32 {sr(T1)}, {sr(S_G)}, 11"); a.i(f"s_add_u32 {sr(T0)}, {sr(T0)}, {sr(T1)}")
    a.i(f"s_mul_i32 {sr(T0)}, {sr(T0)}, 896"); a.i(f"s_add_u32 {sr(T0)}, {sr(T0)}, {WS_PART}")
    a.i("v_cmp_gt_u32 vcc, 56, v0"); a.i(f"s_and_saveexec_b64 s[46:47], vcc")
    for i in range(16):
        a.lds(f"ds_read_b128 {vr(128 + 4 * i, 4)}, v2 offset:{TB + TSTR * i}", ("tb", i))
    for i in range(16):
        a.need(("tb", i))
        a.i(f"s_add_u32 {sr(T1)}, {sr(T0)}, {896 * i}")
        a.i(f"buffer_store_dwordx4 {vr(128 + 4 * i, 4)}, v1, {sr(SRD_WS, 4)}, {sr(T1)} offen")
    a.i("s_mov_b64 exec, s[46:47]")

def dump_regs(a, kind, first, n, slot):
    a.i("s_nop 15")
    a.i("s_mov_b32 s60, s56"); a.i("s_mov_b32 s61, s57"); a.i("s_mov_b32 s62, 0x10000000"); a.i("s_mov_b32 s63, 0x20000")
    a.i(f"s_lshl_b32 s58, s2, 2"); a.i(f"s_add_u32 s58, s58, {sr(S_W)}"); a.i("s_lshl_b32 s58, s58, 16")
    a.i(f"s_add_u32 s58, s58, {0x8000000 + slot * 0x4000000}")
    a.i("v_lshlrev_b32 v15, 2, v0")
    for r in range(n):
        a.i(f"s_add_u32 s59, s58, {256 * r}")
        if kind == 'a':
            a.i(f"v_accvgpr_read_b32 v1, {ar(first + r)}"); a.i(f"buffer_store_dword v1, v15, s[60:63], s59 offen"); a.i("s_nop 1")
        else:
            a.i(f"buffer_store_dword {vr(first + r)}, v15, s[60:63], s59 offen")
    a.i("s_waitcnt vmcnt(0)")

STAMPS = []
def stamp(a, cfg, name):
    if not getattr(cfg, 'stamps', 0): return
    k = len(STAMPS); STAMPS.append(name)
    a.i(f"s_memrealtime s[{72 + 2 * k}:{73 + 2 * k}]")

def stamps_out(a, cfg):
    if not getattr(cfg, 'stamps', 0): return
    a.i("s_waitcnt lgkmcnt(0)")
    a.i("s_mov_b32 s60, s56"); a.i("s_mov_b32 s61, s57"); a.i("s_mov_b32 s62, 0x10000000"); a.i("s_mov_b32 s63, 0x20000")
    a.i(f"s_lshl_b32 s58, s2, 2"); a.i(f"s_add_u32 s58, s58, {sr(S_W)}"); a.i("s_lshl_b32 s58, s58, 7"); a.i("s_add_u32 s58, s58, 0x6000000")
    a.i("v_mov_b32 v15, 0")
    for k in range(len(STAMPS)):
        a.i(f"v_mov_b32 v14, s{72 + 2 * k}")
        a.i(f"buffer_store_dword v14, v15, s[60:63], s58 offen offset:{4 * k}")
        a.i("s_nop 1")

def gen_k1(a, cfg, stop=None):
    n = "attn_kernel"
    kstart(a, n)
    a.i("s_cmp_ge_u32 s2, 256"); a.i("s_cbranch_scc1 K1_DONE")
    stamp(a, cfg, 'start')
    k1_setup(a); k1_srds(a)
    prologue(a, cfg)
    if getattr(cfg, 'dbg', 0): dump_regs(a, 'a', 0, 224, 0)
    stamp(a, cfg, 'hfrag')
    qproj(a)
    stamp(a, cfg, 'qproj')
    qexchange(a)
    if getattr(cfg, 'dbg', 0): dump_regs(a, 'v', 128, 128, 1)
    stamp(a, cfg, 'qx')
    core = attention(a, cfg)
    stamp(a, cfg, 'attn')
    merge(a, core, cfg)
    oproj(a)
    stamp(a, cfg, 'oproj')
    store_partials(a)
    a.i("s_waitcnt vmcnt(0)")
    stamp(a, cfg, 'store')
    stamps_out(a, cfg)
    a.label("K1_DONE")
    a.i("s_endpgm")
    core.emit_rare()
    return kdesc(n, vgpr=512, accum=256, sgpr=102), 256, 163840
```

```python
from asmlib import *

WS_A1 = 0
WS_S1 = 1792
WS_GA = 4096; WS_A2 = 5120; WS_SB = 6144; WS_GB = 7168
WS_R = 8192
WS_IDX = 16384
WS_RSEL = 16448
WS_GU = 20480
WS_STAT = 0x10000
WS_SYNC = 0x18000
WS_X1 = 0x100000
WS_H2 = 0x300000
WS_PART = 0x800000
WS_SIZE = 0x10000000
QSCALE = 1.4426950408889634 / 16

import struct
def f2u(x): return struct.unpack('<I', struct.pack('<f', x))[0]

def kstart(a, name):
    a.raw(f".globl {name}\n.p2align 8\n.type {name},@function\n{name}:")

def srd(a, dst, ptr, size, off=0):
    if off == 0:
        a.i(f"s_mov_b32 {sr(dst)}, {sr(ptr)}"); a.i(f"s_mov_b32 {sr(dst + 1)}, {sr(ptr + 1)}")
    else:
        a.i(f"s_add_u32 {sr(dst)}, {sr(ptr)}, {off}"); a.i(f"s_addc_u32 {sr(dst + 1)}, {sr(ptr + 1)}, 0")
    a.i(f"s_mov_b32 {sr(dst + 2)}, {size}"); a.i(f"s_mov_b32 {sr(dst + 3)}, 0x20000")

def bf_lo(a, d, s): a.i(f"v_lshlrev_b32 {vr(d)}, 16, {vr(s)}")
def bf_hi(a, d, s): a.i(f"v_and_b32 {vr(d)}, 0xffff0000, {vr(s)}")
def round_bf(a, d, s, tmp=None):
    a.i(f"v_cvt_pk_bf16_f32 {vr(d)}, {vr(s)}, {vr(s)}")
    a.i(f"v_lshlrev_b32 {vr(d)}, 16, {vr(d)}")

def wave_sum(a, v, t, n=1):
    for ctl in ("quad_perm:[1,0,3,2]", "quad_perm:[2,3,0,1]", "row_half_mirror", "row_mirror"):
        a.i("s_nop 1")
        a.i(f"v_add_f32_dpp {vr(v)}, {vr(v)}, {vr(v)} {ctl} row_mask:0xf bank_mask:0xf")
    for sw in ("v_permlane16_swap_b32", "v_permlane32_swap_b32"):
        a.i(f"v_mov_b32 {vr(t)}, {vr(v)}")
        a.i("s_nop 1")
        a.i(f"{sw} {vr(v)}, {vr(t)}")
        a.i("s_nop 1")
        a.i(f"v_add_f32 {vr(v)}, {vr(v)}, {vr(t)}")

def sigmoid(a, d, x, t):
    a.i(f"v_mul_f32 {vr(t)}, {hex(f2u(-1.4426950408889634))}, {vr(x)}")
    a.i(f"v_exp_f32 {vr(t)}, {vr(t)}")
    a.i("s_nop 0")
    a.i(f"v_add_f32 {vr(t)}, 1.0, {vr(t)}")
    a.i(f"v_rcp_f32 {vr(d)}, {vr(t)}")
    a.i("s_nop 0")

def gen_k0(a):
    n = "mod_kernel"
    kstart(a, n)
    a.i("s_cmp_ge_u32 s2, 260"); a.i("s_cbranch_scc1 K0_DONE")
    a.i("s_cmp_ge_u32 s2, 148"); a.i("s_cbranch_scc1 K0_WARM")
    a.i("s_cmp_ge_u32 s2, 84"); a.i("s_cbranch_scc1 K0_STAT")
    a.i("s_load_dwordx4 s[4:7], s[0:1], 80")
    a.i("s_load_dwordx2 s[8:9], s[0:1], 112")
    a.i("v_and_b32 v1, 3, v0")
    a.i("v_lshrrev_b32 v2, 2, v0")
    a.i("v_mul_u32_u24 v3, 14, v2")
    a.i("v_mul_u32_u24 v4, 37632, v2")
    a.i("v_lshl_add_u32 v4, v1, 4, v4")
    a.i("s_lshl_b32 s3, s2, 6")
    a.i("v_add_u32 v4, s3, v4")
    a.i("s_waitcnt lgkmcnt(0)")
    srd(a, 12, 4, 896); srd(a, 16, 6, 448 * 5376); srd(a, 20, 8, WS_SIZE)
    for i in range(7):
        a.i(f"buffer_load_ushort {vr(8 + i)}, v3, s[12:15], 0 offen offset:{2 * i}")
    for i in range(7):
        a.i(f"s_mov_b32 s24, {5376 * i}")
        a.i(f"buffer_load_dwordx4 {vr(16 + 4 * i, 4)}, v4, s[16:19], s24 offen")
    a.i("s_waitcnt vmcnt(7)")
    for i in range(7):
        x = 8 + i
        a.i(f"v_lshlrev_b32 {vr(x)}, 16, {vr(x)}")
        sigmoid(a, 5, x, 6)
        a.i(f"v_mul_f32 {vr(x)}, {vr(x)}, v5")
        round_bf(a, x, x)
    for j in range(8): a.i(f"v_mov_b32 {vr(48 + j)}, 0")
    for i in range(7):
        a.i(f"s_waitcnt vmcnt({6 - i})")
        for j in range(4):
            bf_lo(a, 5, 16 + 4 * i + j); bf_hi(a, 6, 16 + 4 * i + j)
            a.i(f"v_fmac_f32 {vr(48 + 2 * j)}, {vr(8 + i)}, v5")
            a.i(f"v_fmac_f32 {vr(48 + 2 * j + 1)}, {vr(8 + i)}, v6")
    a.i("v_lshlrev_b32 v7, 7, v2"); a.i("v_lshl_add_u32 v7, v1, 5, v7")
    a.i("ds_write_b128 v7, v[48:51]"); a.i("ds_write_b128 v7, v[52:55] offset:16")
    a.i("s_waitcnt lgkmcnt(0)"); a.i("s_barrier")
    a.i("v_cmp_gt_u32 vcc, 32, v0"); a.i("s_and_saveexec_b64 s[26:27], vcc")
    a.i("s_cbranch_execz K0_DONE")
    a.i("v_lshlrev_b32 v7, 2, v0")
    for b in range(4):
        for j in range(16):
            a.i(f"ds_read_b32 {vr(16 + j)}, v7 offset:{128 * (16 * b + j)}")
        a.i("s_waitcnt lgkmcnt(0)")
        if b == 0: a.i("v_mov_b32 v8, 0")
        for j in range(0, 16, 4):
            a.i(f"v_add_f32 {vr(16 + j)}, {vr(16 + j)}, {vr(17 + j)}")
            a.i(f"v_add_f32 {vr(18 + j)}, {vr(18 + j)}, {vr(19 + j)}")
            a.i(f"v_add_f32 {vr(16 + j)}, {vr(16 + j)}, {vr(18 + j)}")
            a.i(f"v_add_f32 v8, v8, {vr(16 + j)}")
    round_bf(a, 8, 8)
    a.i("s_mul_i32 s24, s2, 4682"); a.i("s_lshr_b32 s24, s24, 16")
    a.i("s_mul_i32 s25, s24, 14"); a.i("s_sub_u32 s25, s2, s25"); a.i("s_lshl_b32 s25, s25, 5")
    a.i("v_add_u32 v9, s25, v0")
    a.i("v_add_f32 v10, 1.0, v8"); round_bf(a, 10, 10)
    a.i(f"s_mov_b32 s28, {hex(f2u(QSCALE))}")
    a.i("s_cmp_eq_u32 s24, 0"); a.i("s_cbranch_scc1 K0_S0")
    a.i("s_cmp_eq_u32 s24, 1"); a.i("s_cbranch_scc1 K0_S1")
    a.i("s_cmp_eq_u32 s24, 4")
    a.i("s_cbranch_scc0 K0_NB")
    a.i("v_mov_b32 v8, v10")
    a.label("K0_NB")
    a.i("v_lshrrev_b32 v8, 16, v8")
    a.i(f"s_mov_b32 s29, {WS_GA}")
    a.i("s_cmp_eq_u32 s24, 3"); a.i(f"s_cselect_b32 s29, {WS_SB}, s29")
    a.i("s_cmp_eq_u32 s24, 4"); a.i(f"s_cselect_b32 s29, {WS_A2}, s29")
    a.i("s_cmp_eq_u32 s24, 5"); a.i(f"s_cselect_b32 s29, {WS_GB}, s29")
    a.i("v_lshlrev_b32 v9, 1, v9")
    a.i("buffer_store_short v8, v9, s[20:23], s29 offen")
    a.i("s_branch K0_END")
    a.label("K0_S0")
    a.i("v_mul_f32 v8, s28, v8"); a.i("v_lshlrev_b32 v9, 2, v9")
    a.i(f"buffer_store_dword v8, v9, s[20:23], 0 offen offset:{WS_S1}")
    a.i("s_branch K0_END")
    a.label("K0_S1")
    a.i("v_mul_f32 v8, s28, v10"); a.i("v_lshlrev_b32 v9, 2, v9")
    a.i(f"buffer_store_dword v8, v9, s[20:23], 0 offen offset:{WS_A1}")
    a.label("K0_END")
    a.i("s_waitcnt vmcnt(0)")
    a.label("K0_DONE")
    a.i("s_endpgm")
    a.label("K0_WARM")
    a.i("s_load_dwordx2 s[4:5], s[0:1], 24")
    a.i("s_sub_u32 s3, s2, 148"); a.i("s_lshl_b32 s3, s3, 15"); a.i("v_lshlrev_b32 v1, 7, v0")
    a.i("s_waitcnt lgkmcnt(0)")
    srd(a, 8, 4, 448 * 8192)
    a.i("buffer_load_dword v2, v1, s[8:11], s3 offen")
    a.i("s_endpgm")
    a.label("K0_STAT")
    a.i("s_load_dwordx2 s[4:5], s[0:1], 0"); a.i("s_load_dwordx2 s[6:7], s[0:1], 112")
    a.i("v_lshrrev_b32 v1, 3, v0"); a.i("s_sub_u32 s3, s2, 84"); a.i("s_lshl_b32 s3, s3, 5"); a.i("v_add_u32 v1, s3, v1")
    a.i("v_and_b32 v2, 7, v0"); a.i("v_mul_u32_u24 v3, 896, v1"); a.i("v_lshl_add_u32 v3, v2, 4, v3")
    a.i("s_waitcnt lgkmcnt(0)")
    srd(a, 8, 4, 2048 * 896); srd(a, 12, 6, 0x2000000)
    for i in range(7): a.i(f"buffer_load_dwordx4 {vr(8 + 4 * i, 4)}, v3, s[8:11], 0 offen offset:{128 * i}")
    a.i("s_cmp_lg_u32 s2, 84"); a.i("s_cbranch_scc1 K0_NZ")
    a.i("v_lshlrev_b32 v4, 7, v0"); a.i("v_mov_b32 v5, 0"); a.i(f"s_mov_b32 s16, {WS_SYNC}")
    a.i("v_cmp_gt_u32 vcc, 64, v0"); a.i("s_and_saveexec_b64 s[18:19], vcc")
    a.i("buffer_store_dword v5, v4, s[12:15], s16 offen")
    a.i("s_mov_b64 exec, s[18:19]")
    a.label("K0_NZ")
    a.i("s_cmp_lg_u32 s2, 85"); a.i("s_cbranch_scc1 K0_NF")
    a.i("v_lshlrev_b32 v4, 4, v0")
    for j in range(4): a.i(f"v_mov_b32 {vr(92 + j)}, -1")
    for j in range(7):
        a.i(f"s_mov_b32 s16, {WS_GU + 4096 * j}")
        a.i("buffer_store_dwordx4 v[92:95], v4, s[12:15], s16 offen")
    a.label("K0_NF")
    a.i("s_waitcnt vmcnt(0)")
    X = 40
    for i in range(7):
        for j in range(4):
            bf_lo(a, X + 8 * i + 2 * j, 8 + 4 * i + j); bf_hi(a, X + 8 * i + 2 * j + 1, 8 + 4 * i + j)
    def red8(v):
        for ctl in ("quad_perm:[1,0,3,2]", "quad_perm:[2,3,0,1]", "row_half_mirror"):
            a.i("s_nop 1"); a.i(f"v_add_f32_dpp {vr(v)}, {vr(v)}, {vr(v)} {ctl} row_mask:0xf bank_mask:0xf")
    a.i(f"v_pk_add_f32 v[4:5], {vr(X, 2)}, {vr(X + 2, 2)}")
    for k in range(4, 56, 2): a.i(f"v_pk_add_f32 v[4:5], v[4:5], {vr(X + k, 2)}")
    a.i("v_add_f32 v4, v4, v5"); red8(4)
    a.i(f"v_mul_f32 v4, {hex(f2u(-1.0 / 448))}, v4")
    for k in range(0, 56, 2): a.i(f"v_pk_add_f32 {vr(X + k, 2)}, {vr(X + k, 2)}, v[4:5] op_sel_hi:[1,0]")
    a.i(f"v_pk_mul_f32 v[6:7], {vr(X, 2)}, {vr(X, 2)}")
    for k in range(2, 56, 2): a.i(f"v_pk_fma_f32 v[6:7], {vr(X + k, 2)}, {vr(X + k, 2)}, v[6:7]")
    a.i("v_add_f32 v6, v6, v7"); red8(6)
    a.i(f"v_mul_f32 v6, {hex(f2u(1.0 / 448))}, v6"); a.i(f"v_add_f32 v6, {hex(f2u(1e-5))}, v6")
    a.i("v_rsq_f32 v6, v6"); a.i("s_nop 0"); a.i("v_mul_f32 v7, v4, v6")
    a.i("v_lshlrev_b32 v1, 3, v1"); a.i(f"s_mov_b32 s16, {WS_STAT}")
    a.i("v_cmp_eq_u32 vcc, 0, v2"); a.i("s_and_saveexec_b64 s[18:19], vcc")
    a.i("buffer_store_dwordx2 v[6:7], v1, s[12:15], s16 offen")
    a.i("s_endpgm")
    return kdesc(n, vgpr=96, accum=96, sgpr=40)

def gen_k2(a):
    n = "red_kernel"
    kstart(a, n)
    a.i("s_cmp_ge_u32 s2, 256"); a.i("s_cbranch_scc1 K2_DONE")
    a.i("s_load_dwordx2 s[4:5], s[0:1], 0")
    a.i("s_load_dwordx2 s[6:7], s[0:1], 48")
    a.i("s_load_dwordx2 s[8:9], s[0:1], 96")
    a.i("s_load_dwordx2 s[10:11], s[0:1], 112")
    a.i("v_lshrrev_b32 v1, 6, v0"); a.i("s_nop 0"); a.i("v_readfirstlane_b32 s3, v1")
    a.i("v_and_b32 v0, 63, v0")
    a.i("s_lshl_b32 s28, s2, 3"); a.i("s_add_u32 s28, s28, s3")
    a.i("s_mul_i32 s29, s28, 896")
    a.i("v_lshlrev_b32 v1, 4, v0")
    a.i("v_cmp_gt_u32 vcc, 56, v0"); a.i("v_mov_b32 v2, 0x7fff0000"); a.i("s_nop 0")
    a.i("v_cndmask_b32 v1, v2, v1, vcc")
    a.i("s_waitcnt lgkmcnt(0)")
    srd(a, 12, 4, 2048 * 896); srd(a, 16, 6, 896); srd(a, 20, 8, 2048 * 896); srd(a, 24, 10, 0x2000000)
    for g in range(8):
        a.i(f"s_add_u32 s30, s29, {WS_PART + g * 2048 * 896}")
        a.i(f"buffer_load_dwordx4 {vr(16 + 4 * g, 4)}, v1, s[24:27], s30 offen")
    a.i(f"buffer_load_dwordx4 v[48:51], v1, s[12:15], s29 offen")
    for k, off in enumerate((WS_GA, WS_A2, WS_SB, WS_GB)):
        a.i(f"s_mov_b32 s30, {off}")
        a.i(f"buffer_load_dwordx4 {vr(52 + 4 * k, 4)}, v1, s[24:27], s30 offen")
    a.i(f"buffer_load_dwordx4 v[68:71], v1, s[16:19], 0 offen")
    for g in range(8):
        a.i(f"s_waitcnt vmcnt({13 - g})")
        for j in range(4):
            if g == 0:
                bf_lo(a, 72 + 2 * j, 16 + j); bf_hi(a, 73 + 2 * j, 16 + j)
            else:
                bf_lo(a, 4, 16 + 4 * g + j); bf_hi(a, 5, 16 + 4 * g + j)
                a.i(f"v_add_f32 {vr(72 + 2 * j)}, {vr(72 + 2 * j)}, v4")
                a.i(f"v_add_f32 {vr(73 + 2 * j)}, {vr(73 + 2 * j)}, v5")
    a.i("s_waitcnt vmcnt(0)")
    def unpack(dst, src):
        for j in range(4):
            bf_lo(a, dst + 2 * j, src + j); bf_hi(a, dst + 2 * j + 1, src + j)
    unpack(80, 48)
    unpack(88, 52)
    for j in range(8):
        round_bf(a, 72 + j, 72 + j)
        a.i(f"v_mul_f32 {vr(72 + j)}, {vr(88 + j)}, {vr(72 + j)}")
        round_bf(a, 72 + j, 72 + j)
        a.i(f"v_add_f32 {vr(80 + j)}, {vr(80 + j)}, {vr(72 + j)}")
        round_bf(a, 80 + j, 80 + j)
    for j in range(4):
        a.i(f"v_cvt_pk_bf16_f32 {vr(16 + j)}, {vr(80 + 2 * j)}, {vr(81 + 2 * j)}")
    a.i(f"s_add_u32 s30, s29, {WS_X1}")
    a.i("buffer_store_dwordx4 v[16:19], v1, s[24:27], s30 offen")
    a.i("v_add_f32 v4, v80, v81")
    for j in range(2, 8): a.i(f"v_add_f32 v4, v4, {vr(80 + j)}")
    wave_sum(a, 4, 5)
    a.i(f"v_mul_f32 v4, {hex(f2u(1.0 / 448))}, v4")
    for j in range(8): a.i(f"v_sub_f32 {vr(96 + j)}, {vr(80 + j)}, v4")
    a.i("v_mul_f32 v6, v96, v96")
    for j in range(1, 8): a.i(f"v_fmac_f32 v6, {vr(96 + j)}, {vr(96 + j)}")
    a.i("v_cmp_gt_u32 vcc, 56, v0"); a.i("s_nop 1")
    a.i("v_cndmask_b32 v6, 0, v6, vcc")
    wave_sum(a, 6, 5)
    a.i(f"v_mul_f32 v6, {hex(f2u(1.0 / 448))}, v6")
    a.i(f"v_add_f32 v6, {hex(f2u(1e-5))}, v6")
    a.i("v_rsq_f32 v6, v6"); a.i("s_nop 0")
    unpack(88, 56)
    unpack(104, 60)
    for j in range(8):
        a.i(f"v_mul_f32 {vr(96 + j)}, {vr(96 + j)}, v6")
        a.i(f"v_fma_f32 {vr(96 + j)}, {vr(96 + j)}, {vr(88 + j)}, {vr(104 + j)}")
        round_bf(a, 96 + j, 96 + j)
    for j in range(4):
        a.i(f"v_cvt_pk_bf16_f32 {vr(20 + j)}, {vr(96 + 2 * j)}, {vr(97 + 2 * j)}")
    a.i(f"s_add_u32 s30, s29, {WS_H2}")
    a.i("buffer_store_dwordx4 v[20:23], v1, s[24:27], s30 offen")
    unpack(88, 68)
    a.i("v_mul_f32 v7, v96, v88")
    for j in range(1, 8): a.i(f"v_fmac_f32 v7, {vr(96 + j)}, {vr(88 + j)}")
    wave_sum(a, 7, 5)
    round_bf(a, 7, 7)
    unpack(88, 64)
    for j in range(8):
        a.i(f"v_mul_f32 {vr(88 + j)}, {vr(88 + j)}, {vr(96 + j)}")
        round_bf(a, 88 + j, 88 + j)
        a.i(f"v_add_f32 {vr(88 + j)}, {vr(88 + j)}, {vr(80 + j)}")
    for j in range(4):
        a.i(f"v_cvt_pk_bf16_f32 {vr(24 + j)}, {vr(88 + 2 * j)}, {vr(89 + 2 * j)}")
    a.i("buffer_store_dwordx4 v[24:27], v1, s[20:23], s29 offen")
    a.i("v_cmp_eq_u32 vcc, 0, v0"); a.i("s_and_saveexec_b64 s[32:33], vcc")
    a.i("s_lshl_b32 s30, s28, 2"); a.i(f"s_add_u32 s30, s30, {WS_R}")
    a.i("v_mov_b32 v8, 0")
    a.i("buffer_store_dword v7, v8, s[24:27], s30 offen")
    a.i("s_mov_b64 exec, s[32:33]")
    a.i("s_waitcnt vmcnt(0)")
    a.label("K2_DONE")
    a.i("s_endpgm")
    return kdesc(n, vgpr=128, accum=128, sgpr=48)

def wave_max_u32(a, v, t):
    for ctl in ("quad_perm:[1,0,3,2]", "quad_perm:[2,3,0,1]", "row_half_mirror", "row_mirror"):
        a.i("s_nop 1")
        a.i(f"v_max_u32_dpp {vr(v)}, {vr(v)}, {vr(v)} {ctl} row_mask:0xf bank_mask:0xf")
    for sw in ("v_permlane16_swap_b32", "v_permlane32_swap_b32"):
        a.i(f"v_mov_b32 {vr(t)}, {vr(v)}")
        a.i("s_nop 1")
        a.i(f"{sw} {vr(v)}, {vr(t)}")
        a.i("s_nop 1")
        a.i(f"v_max_u32 {vr(v)}, {vr(v)}, {vr(t)}")

def gen_k3(a):
    n = "gate_kernel"
    NWG = 112
    L_CAND = 28672; L_SEL = 28672 + 128
    kstart(a, n)
    a.i(f"s_cmp_ge_u32 s2, {NWG}"); a.i("s_cbranch_scc1 K3_DONE")
    a.i("s_load_dwordx4 s[4:7], s[0:1], 56")
    a.i("s_load_dwordx2 s[8:9], s[0:1], 112")
    a.i("v_lshrrev_b32 v1, 6, v0"); a.i("s_nop 0"); a.i("v_readfirstlane_b32 s3, v1")
    a.i("v_and_b32 v2, 63, v0")
    a.i("s_waitcnt lgkmcnt(0)")
    srd(a, 20, 8, 0x2000000)
    a.i("v_lshlrev_b32 v3, 5, v0")
    a.i(f"s_mov_b32 s24, {WS_R}")
    a.i("buffer_load_dwordx4 v[16:19], v3, s[20:23], s24 offen")
    a.i("buffer_load_dwordx4 v[20:23], v3, s[20:23], s24 offen offset:16")
    a.i("s_cmp_ge_u32 s3, 2")
    a.i("s_cselect_b32 s12, s6, s4"); a.i("s_cselect_b32 s13, s7, s5")
    a.i(f"s_mov_b32 s14, {448 * 3584}"); a.i("s_mov_b32 s15, 0x20000")
    a.i("v_lshrrev_b32 v4, 1, v2"); a.i("v_mul_u32_u24 v4, 3584, v4")
    a.i("v_and_b32 v5, 1, v2"); a.i("v_lshl_add_u32 v4, v5, 4, v4")
    a.i("s_lshl_b32 s25, s2, 5"); a.i("v_add_u32 v4, s25, v4")
    a.i("s_and_b32 s26, s3, 1"); a.i("s_mul_i32 s27, s26, 7")
    a.i("s_mul_i32 s28, s3, 7168")
    a.i(f"s_mul_i32 s27, s27, {32 * 3584}")
    for i in range(7):
        a.i(f"s_add_u32 m0, s28, {1024 * i}")
        a.i(f"s_add_u32 s29, s27, {32 * 3584 * i}")
        a.i("buffer_load_dwordx4 v4, s[12:15], s29 offen lds")
    a.i("s_waitcnt vmcnt(7)")
    a.i("v_lshlrev_b32 v6, 3, v0"); a.i("v_sub_u32 v6, 2047, v6")
    for j in range(8):
        k = 16 + j
        a.i(f"v_ashrrev_i32 v7, 31, {vr(k)}")
        a.i("v_or_b32 v7, 0x80000000, v7")
        a.i(f"v_xor_b32 {vr(k)}, {vr(k)}, v7")
        a.i(f"v_and_b32 {vr(k)}, 0xffff0000, {vr(k)}")
        a.i(f"v_subrev_u32 v7, {j}, v6")
        a.i(f"v_or_b32 {vr(k)}, {vr(k)}, v7")
    a.i("v_mov_b32 v9, 0")
    for rnd in range(8):
        a.i("v_max3_u32 v8, v16, v17, v18"); a.i("v_max3_u32 v8, v8, v19, v20")
        a.i("v_max3_u32 v8, v8, v21, v22"); a.i("v_max_u32 v8, v8, v23")
        wave_max_u32(a, 8, 7)
        a.i(f"v_cmp_eq_u32 s[30:31], {rnd}, v2")
        if rnd < 7:
            for j in range(0, 8, 2):
                a.i(f"v_cmp_eq_u32 s[32:33], {vr(16 + j)}, v8")
                a.i(f"v_cmp_eq_u32 s[34:35], {vr(17 + j)}, v8")
                a.i("s_nop 0")
                a.i(f"v_cndmask_b32 {vr(16 + j)}, {vr(16 + j)}, 0, s[32:33]")
                a.i(f"v_cndmask_b32 {vr(17 + j)}, {vr(17 + j)}, 0, s[34:35]")
        else:
            a.i("s_nop 1")
        a.i("v_cndmask_b32 v9, v9, v8, s[30:31]")
    a.i("s_lshl_b32 s29, s3, 5"); a.i("v_lshl_add_u32 v7, v2, 2, s29"); a.i(f"v_add_u32 v7, {L_CAND}, v7")
    a.i("v_cmp_gt_u32 vcc, 8, v2"); a.i("s_and_saveexec_b64 s[36:37], vcc")
    a.i("ds_write_b32 v7, v9")
    a.i("s_mov_b64 exec, s[36:37]")
    a.i("s_waitcnt lgkmcnt(0) vmcnt(0)"); a.i("s_barrier")
    a.i("s_cmp_lg_u32 s3, 0"); a.i("s_cbranch_scc1 K3_DONE")
    a.i("v_and_b32 v7, 31, v2"); a.i("v_lshlrev_b32 v7, 2, v7"); a.i(f"v_add_u32 v7, {L_CAND}, v7")
    a.i("ds_read_b32 v9, v7")
    a.i(f"v_mov_b32 v10, {L_CAND}")
    for j in range(8): a.i(f"ds_read_b128 {vr(16 + 4 * j, 4)}, v10 offset:{16 * j}")
    a.i("s_waitcnt lgkmcnt(0)")
    a.i("v_mov_b32 v11, 0")
    for j in range(0, 32, 2):
        a.i(f"v_cmp_gt_u32 s[32:33], {vr(16 + j)}, v9")
        a.i(f"v_cmp_gt_u32 s[34:35], {vr(17 + j)}, v9")
        a.i("s_nop 0")
        a.i("v_addc_co_u32 v11, vcc, 0, v11, s[32:33]")
        a.i("v_addc_co_u32 v11, vcc, 0, v11, s[34:35]")
    a.i("v_cmp_gt_u32 s[32:33], 8, v11"); a.i("v_cmp_gt_u32 s[34:35], 32, v2")
    a.i("s_and_b64 s[32:33], s[32:33], s[34:35]")
    a.i("v_lshlrev_b32 v11, 2, v11"); a.i(f"v_add_u32 v11, {L_SEL}, v11")
    a.i("s_and_saveexec_b64 s[36:37], s[32:33]")
    a.i("ds_write_b32 v11, v9")
    a.i("s_mov_b64 exec, s[36:37]")
    a.i("s_waitcnt lgkmcnt(0)")
    a.i("v_and_b32 v7, 7, v2"); a.i("v_lshlrev_b32 v7, 2, v7"); a.i(f"v_add_u32 v7, {L_SEL}, v7")
    a.i("ds_read_b32 v9, v7")
    a.i("s_waitcnt lgkmcnt(0)")
    a.i("v_and_b32 v10, 0xffff, v9"); a.i("v_sub_u32 v10, 2047, v10")
    a.i("v_mul_u32_u24 v11, 896, v10"); a.i("v_lshrrev_b32 v12, 4, v2"); a.i("v_lshl_add_u32 v11, v12, 4, v11")
    a.i(f"s_mov_b32 s24, {WS_H2}")
    for ks in range(14):
        a.i(f"buffer_load_dwordx4 {vr(16 + 4 * ks, 4)}, v11, s[20:23], s24 offen offset:{64 * ks}")
    a.i("s_cmp_lg_u32 s2, 0"); a.i("s_cbranch_scc1 K3_NOPUB")
    a.i("v_lshrrev_b32 v13, 16, v9")
    a.i("v_and_b32 v14, 0x8000, v13"); a.i("v_cmp_ne_u32 vcc, 0, v14")
    a.i("v_xor_b32 v14, 0x8000, v13"); a.i("v_xor_b32 v15, 0xffff, v13")
    a.i("v_cndmask_b32 v13, v15, v14, vcc"); a.i("v_lshlrev_b32 v13, 16, v13")
    a.i("v_lshlrev_b32 v14, 2, v2")
    a.i("v_cmp_gt_u32 vcc, 8, v2"); a.i("s_and_saveexec_b64 s[36:37], vcc")
    a.i(f"s_mov_b32 s24, {WS_IDX}")
    a.i("buffer_store_dword v10, v14, s[20:23], s24 offen")
    a.i("buffer_store_dword v13, v14, s[20:23], s24 offen offset:64")
    a.i("s_mov_b64 exec, s[36:37]")
    a.label("K3_NOPUB")
    a.i("v_bfe_u32 v13, v2, 2, 2"); a.i("v_lshl_add_u32 v13, v12, 3, v13"); a.i("v_lshlrev_b32 v13, 5, v13")
    a.i("v_and_b32 v14, 3, v2"); a.i("v_lshl_add_u32 v13, v14, 3, v13")
    for m in range(2):
        for ks in range(14):
            for r2 in range(2):
                a.i(f"ds_read_b64_tr_b16 {vr(80 + 56 * m + 4 * ks + 2 * r2, 2)}, v13 offset:{14336 * m + 1024 * ks + 128 * r2}")
            if ks % 7 == 6: a.i("s_waitcnt lgkmcnt(0)")
    a.i("s_waitcnt vmcnt(0)")
    for ks in range(14):
        for m in range(2):
            acc = vr(72 + 4 * m, 4)
            a.i(f"v_mfma_f32_16x16x32_bf16 {acc}, {vr(80 + 56 * m + 4 * ks, 4)}, {vr(16 + 4 * ks, 4)}, {'0' if ks == 0 else acc}")
    a.i("s_nop 15")
    for r in range(4):
        round_bf(a, 72 + r, 72 + r); round_bf(a, 76 + r, 76 + r)
        sigmoid(a, 5, 72 + r, 6)
        a.i(f"v_mul_f32 {vr(72 + r)}, {vr(72 + r)}, v5"); round_bf(a, 72 + r, 72 + r)
        a.i(f"v_mul_f32 {vr(72 + r)}, {vr(72 + r)}, {vr(76 + r)}")
    a.i("v_cvt_pk_bf16_f32 v76, v72, v73"); a.i("v_cvt_pk_bf16_f32 v77, v74, v75")
    a.i("v_and_b32 v5, 15, v2"); a.i("v_mul_u32_u24 v6, 3584, v5"); a.i("v_lshl_add_u32 v6, v12, 3, v6")
    a.i(f"s_lshl_b32 s24, s2, 5"); a.i(f"s_add_u32 s24, s24, {WS_GU}")
    a.i("v_cmp_gt_u32 vcc, 8, v5"); a.i("s_and_saveexec_b64 s[36:37], vcc")
    a.i("buffer_store_dwordx2 v[76:77], v6, s[20:23], s24 offen")
    a.i("s_mov_b64 exec, s[36:37]")
    a.i("s_waitcnt vmcnt(0)")
    a.label("K3_DONE")
    a.i("s_endpgm")
    return kdesc(n, vgpr=200, accum=200, sgpr=48), NWG, 28672 + 256

def gen_k4(a):
    n = "down_kernel"
    NWG = 28
    L_RED = 57344
    kstart(a, n)
    a.i(f"s_cmp_ge_u32 s2, {NWG}"); a.i("s_cbranch_scc1 K4_DONE")
    a.i("s_load_dwordx2 s[4:5], s[0:1], 72")
    a.i("s_load_dwordx2 s[6:7], s[0:1], 96")
    a.i("s_load_dwordx2 s[8:9], s[0:1], 112")
    a.i("v_lshrrev_b32 v1, 6, v0"); a.i("s_nop 0"); a.i("v_readfirstlane_b32 s3, v1")
    a.i("v_and_b32 v2, 63, v0")
    a.i("s_waitcnt lgkmcnt(0)")
    srd(a, 12, 4, 1792 * 896); srd(a, 16, 6, 2048 * 896); srd(a, 20, 8, 0x2000000)
    a.i("v_lshrrev_b32 v4, 1, v2"); a.i("v_mul_u32_u24 v4, 896, v4")
    a.i("v_and_b32 v5, 1, v2"); a.i("v_lshl_add_u32 v4, v5, 4, v4")
    a.i("s_lshl_b32 s25, s2, 5"); a.i("v_add_u32 v4, s25, v4")
    a.i(f"s_mul_i32 s27, s3, {448 * 896}"); a.i("s_mul_i32 s28, s3, 14336")
    for i in range(14):
        a.i(f"s_add_u32 m0, s28, {1024 * i}")
        a.i(f"s_add_u32 s29, s27, {32 * 896 * i}")
        a.i("buffer_load_dwordx4 v4, s[12:15], s29 offen lds")
    a.i("v_and_b32 v5, 7, v2"); a.i("v_mul_u32_u24 v6, 3584, v5"); a.i("v_lshrrev_b32 v12, 4, v2"); a.i("v_lshl_add_u32 v6, v12, 4, v6")
    a.i(f"s_mul_i32 s24, s3, 896"); a.i(f"s_add_u32 s24, s24, {WS_GU}")
    for ks in range(14):
        a.i(f"buffer_load_dwordx4 {vr(16 + 4 * ks, 4)}, v6, s[20:23], s24 offen offset:{64 * ks}")
    a.i("v_lshlrev_b32 v7, 2, v5"); a.i(f"s_mov_b32 s24, {WS_IDX}")
    a.i("buffer_load_dword v8, v7, s[20:23], s24 offen")
    a.i("buffer_load_dword v9, v7, s[20:23], s24 offen offset:64")
    a.i("v_bfe_u32 v13, v2, 2, 2"); a.i("v_lshl_add_u32 v13, v12, 3, v13"); a.i("v_lshlrev_b32 v13, 5, v13")
    a.i("v_and_b32 v14, 3, v2"); a.i("v_lshl_add_u32 v13, v14, 3, v13"); a.i("v_add_u32 v13, s28, v13")
    a.i("s_waitcnt vmcnt(0)")
    a.i("v_mul_u32_u24 v10, 896, v8"); a.i("v_lshl_add_u32 v10, v12, 3, v10"); a.i("v_add_u32 v10, s25, v10")
    a.i(f"s_mov_b32 s24, {WS_X1}"); a.i("buffer_load_dwordx2 v[76:77], v10, s[20:23], s24 offen")
    a.i(f"s_mov_b32 s24, {WS_H2}"); a.i("buffer_load_dwordx2 v[78:79], v10, s[20:23], s24 offen")
    a.i("v_lshlrev_b32 v11, 3, v12"); a.i("v_add_u32 v11, s25, v11")
    a.i(f"s_mov_b32 s24, {WS_GB}"); a.i("buffer_load_dwordx2 v[14:15], v11, s[20:23], s24 offen")
    for ks in range(14):
        for r2 in range(2):
            a.i(f"ds_read_b64_tr_b16 {vr(80 + 4 * ks + 2 * r2, 2)}, v13 offset:{1024 * ks + 128 * r2}")
        if ks % 7 == 6: a.i("s_waitcnt lgkmcnt(0)")
    for ks in range(14):
        a.i(f"v_mfma_f32_16x16x32_bf16 v[72:75], {vr(80 + 4 * ks, 4)}, {vr(16 + 4 * ks, 4)}, {'0' if ks == 0 else 'v[72:75]'}")
    a.i("s_nop 15")
    a.i("v_lshlrev_b32 v3, 4, v2"); a.i("s_lshl_b32 s24, s3, 10"); a.i(f"s_add_u32 s24, s24, {L_RED}"); a.i("v_add_u32 v3, s24, v3")
    a.i("ds_write_b128 v3, v[72:75]")
    a.i("s_waitcnt lgkmcnt(0)"); a.i("s_barrier")
    a.i("s_cmp_lg_u32 s3, 0"); a.i("s_cbranch_scc1 K4_DONE")
    for w in range(1, 4): a.i(f"ds_read_b128 {vr(16 + 4 * w, 4)}, v3 offset:{1024 * w}")
    a.i("s_waitcnt lgkmcnt(0) vmcnt(0)")
    sigmoid(a, 5, 9, 6); round_bf(a, 5, 5)
    for r in range(4):
        for w in range(1, 4): a.i(f"v_add_f32 {vr(72 + r)}, {vr(72 + r)}, {vr(16 + 4 * w + r)}")
        round_bf(a, 72 + r, 72 + r)
        a.i(f"v_mul_f32 {vr(72 + r)}, {vr(72 + r)}, v5"); round_bf(a, 72 + r, 72 + r)
    for half in range(2):
        bf_lo(a, 16 + 2 * half, 78 + half); bf_hi(a, 17 + 2 * half, 78 + half)
        bf_lo(a, 20 + 2 * half, 76 + half); bf_hi(a, 21 + 2 * half, 76 + half)
        bf_lo(a, 24 + 2 * half, 14 + half); bf_hi(a, 25 + 2 * half, 14 + half)
    for r in range(4):
        a.i(f"v_add_f32 {vr(72 + r)}, {vr(72 + r)}, {vr(16 + r)}"); round_bf(a, 72 + r, 72 + r)
        a.i(f"v_mul_f32 {vr(72 + r)}, {vr(72 + r)}, {vr(24 + r)}"); round_bf(a, 72 + r, 72 + r)
        a.i(f"v_add_f32 {vr(72 + r)}, {vr(72 + r)}, {vr(20 + r)}")
    a.i("v_cvt_pk_bf16_f32 v76, v72, v73"); a.i("v_cvt_pk_bf16_f32 v77, v74, v75")
    a.i("v_and_b32 v5, 15, v2")
    a.i("v_cmp_gt_u32 vcc, 8, v5"); a.i("s_and_saveexec_b64 s[36:37], vcc")
    a.i("buffer_store_dwordx2 v[76:77], v10, s[16:19], 0 offen")
    a.i("s_mov_b64 exec, s[36:37]")
    a.i("s_waitcnt vmcnt(0)")
    a.label("K4_DONE")
    a.i("s_endpgm")
    return kdesc(n, vgpr=144, accum=144, sgpr=48), NWG, L_RED + 4096

MST = []
def mstamp(a, on, name):
    if not on: return
    k = len(MST); MST.append(name)
    a.i(f"s_memrealtime s[{60 + 2 * k}:{61 + 2 * k}]")
def mstamps_out(a, on, which=0):
    if not on: return
    a.i("s_mov_b64 exec, -1")
    a.i("s_waitcnt lgkmcnt(0)")
    a.i("s_mov_b32 s52, s8"); a.i("s_mov_b32 s53, s9"); a.i("s_mov_b32 s54, 0x10000000"); a.i("s_mov_b32 s55, 0x20000")
    a.i("s_lshl_b32 s56, s2, 7"); a.i("s_add_u32 s56, s56, 0x6100000")
    a.i("v_mov_b32 v15, 0")
    for k in range(len(MST)):
        a.i(f"v_mov_b32 v14, s{60 + 2 * k}")
        a.i(f"buffer_store_dword v14, v15, s[52:55], s56 offen offset:{4 * k}")
        a.i("s_nop 1")

def gen_moe(a, st=False):
    n = "moe_kernel"
    NG = 112; NDOWN = 28; NWG = NG + NDOWN
    L_CAND = 57344; L_SEL = L_CAND + 128; L_RED = L_CAND + 256
    NSH = 8
    kstart(a, n)
    a.i(f"s_cmp_ge_u32 s2, {NWG}"); a.i("s_cbranch_scc1 KM_DONE")
    mstamp(a, st, 'start')
    a.i("s_load_dwordx4 s[4:7], s[0:1], 56")
    a.i("s_load_dwordx2 s[40:41], s[0:1], 72")
    a.i("s_load_dwordx2 s[42:43], s[0:1], 96")
    a.i("s_load_dwordx2 s[8:9], s[0:1], 112")
    a.i("v_lshrrev_b32 v1, 6, v0"); a.i("s_nop 0"); a.i("v_readfirstlane_b32 s3, v1")
    a.i("v_and_b32 v2, 63, v0")
    a.i("v_mov_b32 v201, 0x7fffffff")
    a.i("v_lshlrev_b32 v3, 5, v0")
    a.i("s_waitcnt lgkmcnt(0)")
    srd(a, 20, 8, 0x2000000)
    a.i(f"s_mov_b32 s24, {WS_R}")
    a.i("buffer_load_dwordx4 v[16:19], v3, s[20:23], s24 offen")
    a.i("buffer_load_dwordx4 v[20:23], v3, s[20:23], s24 offen offset:16")
    a.i("v_lshrrev_b32 v4, 1, v2"); a.i("v_and_b32 v6, 1, v2")
    a.i(f"s_cmp_ge_u32 s2, {NG}"); a.i("s_cbranch_scc1 KM_SD")
    a.i("s_cmp_ge_u32 s3, 2")
    a.i("s_cselect_b32 s12, s6, s4"); a.i("s_cselect_b32 s13, s7, s5")
    a.i(f"s_mov_b32 s14, {448 * 3584}"); a.i("s_mov_b32 s15, 0x20000")
    a.i("v_mul_u32_u24 v5, 3584, v4"); a.i("v_lshl_add_u32 v5, v6, 4, v5")
    a.i("s_lshl_b32 s25, s2, 5"); a.i("v_add_u32 v5, s25, v5")
    a.i("s_and_b32 s26, s3, 1"); a.i(f"s_mul_i32 s27, s26, {7 * 32 * 3584}")
    a.i("s_mul_i32 s28, s3, 7168"); a.i(f"s_mov_b32 s39, {32 * 3584}")
    a.i("s_branch KM_SJ")
    a.label("KM_SD")
    srd(a, 12, 40, 1792 * 896)
    a.i(f"s_sub_u32 s25, s2, {NG}"); a.i("s_lshl_b32 s25, s25, 5")
    a.i("v_mul_u32_u24 v5, 896, v4"); a.i("v_lshl_add_u32 v5, v6, 4, v5"); a.i("v_add_u32 v5, s25, v5")
    a.i(f"s_mul_i32 s27, s3, {448 * 896}"); a.i("s_mul_i32 s28, s3, 14336"); a.i(f"s_mov_b32 s39, {32 * 896}")
    a.label("KM_SJ")
    def wdma(i):
        a.i(f"s_add_u32 m0, s28, {1024 * i}")
        a.i("s_nop 0")
        a.i("buffer_load_dwordx4 v5, s[12:15], s27 offen lds")
        a.i("s_add_u32 s27, s27, s39")
    for i in range(7): wdma(i)
    a.i(f"s_cmp_lt_u32 s2, {NG}"); a.i("s_cbranch_scc1 KM_ND")
    a.i("s_waitcnt vmcnt(7)")
    for i in range(7, 14): wdma(i)
    a.i("s_branch KM_RA")
    a.label("KM_ND")
    a.i("s_waitcnt vmcnt(7)")
    a.label("KM_RA")
    mstamp(a, st, 'rarr')
    a.i("v_lshlrev_b32 v6, 3, v0"); a.i("v_sub_u32 v6, 2047, v6")
    for j in range(8):
        k = 16 + j
        a.i(f"v_ashrrev_i32 v7, 31, {vr(k)}")
        a.i("v_or_b32 v7, 0x80000000, v7")
        a.i(f"v_xor_b32 {vr(k)}, {vr(k)}, v7")
        a.i(f"v_and_b32 {vr(k)}, 0xffff0000, {vr(k)}")
        a.i(f"v_subrev_u32 v7, {j}, v6")
        a.i(f"v_or_b32 {vr(k)}, {vr(k)}, v7")
    net = [(0,1),(2,3),(4,5),(6,7),(0,2),(1,3),(4,6),(5,7),(1,2),(5,6),(0,4),(3,7),(1,5),(2,6),(1,4),(3,6),(2,4),(3,5),(3,4)]
    for x, y in net:
        a.i(f"v_max_u32 v7, {vr(16 + x)}, {vr(16 + y)}")
        a.i(f"v_min_u32 {vr(16 + y)}, {vr(16 + x)}, {vr(16 + y)}")
        a.i(f"v_mov_b32 {vr(16 + x)}, v7")
    a.i("v_mov_b32 v9, 0")
    for rnd in range(8):
        a.i("v_mov_b32 v8, v16")
        wave_max_u32(a, 8, 7)
        a.i(f"v_cmp_eq_u32 s[30:31], {rnd}, v2")
        if rnd < 7:
            a.i("v_cmp_eq_u32 vcc, v16, v8")
            a.i("s_nop 1")
            for j in range(7 - rnd):
                a.i(f"v_cndmask_b32 {vr(16 + j)}, {vr(16 + j)}, {vr(17 + j)}, vcc")
        else:
            a.i("s_nop 1")
        a.i("v_cndmask_b32 v9, v9, v8, s[30:31]")
    mstamp(a, st, 'rounds')
    a.i("s_lshl_b32 s29, s3, 5"); a.i("v_lshl_add_u32 v7, v2, 2, s29"); a.i(f"v_add_u32 v7, {L_CAND}, v7")
    a.i("v_cmp_gt_u32 vcc, 8, v2"); a.i("s_and_saveexec_b64 s[36:37], vcc")
    a.i("ds_write_b32 v7, v9")
    a.i("s_mov_b64 exec, s[36:37]")
    a.i("s_waitcnt lgkmcnt(0)")
    a.i("s_barrier")
    mstamp(a, st, 'bar1')
    a.i("s_cmp_lg_u32 s3, 0"); a.i("s_cbranch_scc1 KM_OTH")
    a.i("v_and_b32 v7, 31, v2"); a.i("v_lshlrev_b32 v7, 2, v7"); a.i(f"v_add_u32 v7, {L_CAND}, v7")
    a.i("ds_read_b32 v9, v7")
    a.i(f"v_mov_b32 v10, {L_CAND}")
    for j in range(8): a.i(f"ds_read_b128 {vr(16 + 4 * j, 4)}, v10 offset:{16 * j}")
    a.i("s_waitcnt lgkmcnt(0)")
    a.i("v_mov_b32 v11, 0")
    for j in range(0, 32, 2):
        a.i(f"v_cmp_gt_u32 s[32:33], {vr(16 + j)}, v9")
        a.i(f"v_cmp_gt_u32 s[34:35], {vr(17 + j)}, v9")
        a.i("s_nop 0")
        a.i("v_addc_co_u32 v11, vcc, 0, v11, s[32:33]")
        a.i("v_addc_co_u32 v11, vcc, 0, v11, s[34:35]")
    a.i("v_cmp_gt_u32 s[32:33], 8, v11"); a.i("v_cmp_gt_u32 s[34:35], 32, v2")
    a.i("s_and_b64 s[32:33], s[32:33], s[34:35]")
    a.i("v_lshlrev_b32 v11, 2, v11"); a.i(f"v_add_u32 v11, {L_SEL}, v11")
    a.i("s_and_saveexec_b64 s[36:37], s[32:33]")
    a.i("ds_write_b32 v11, v9")
    a.i("s_mov_b64 exec, s[36:37]")
    a.i("s_waitcnt lgkmcnt(0)")
    a.i("v_and_b32 v7, 7, v2"); a.i("v_lshlrev_b32 v7, 2, v7"); a.i(f"v_add_u32 v7, {L_SEL}, v7")
    a.i("ds_read_b32 v9, v7")
    a.i("s_waitcnt lgkmcnt(0)")
    mstamp(a, st, 'idx')
    a.i("v_and_b32 v10, 0xffff, v9"); a.i("v_sub_u32 v10, 2047, v10")
    a.i("v_mul_u32_u24 v11, 896, v10"); a.i("v_lshrrev_b32 v12, 4, v2")
    a.i(f"s_cmp_ge_u32 s2, {NG}"); a.i("s_cbranch_scc1 KM_DN0")
    a.i("v_lshl_add_u32 v200, v12, 4, v11")
    a.i(f"s_mov_b32 s24, {WS_H2}")
    for ks in range(14):
        a.i(f"buffer_load_dwordx4 {vr(16 + 4 * ks, 4)}, v200, s[20:23], s24 offen offset:{64 * ks}")
    a.i("s_waitcnt vmcnt(14)")
    a.i("s_barrier")
    a.i("v_bfe_u32 v13, v2, 2, 2"); a.i("v_lshl_add_u32 v13, v12, 3, v13"); a.i("v_lshlrev_b32 v13, 5, v13")
    a.i("v_and_b32 v14, 3, v2"); a.i("v_lshl_add_u32 v13, v14, 3, v13")
    for m in range(2):
        for ks in range(14):
            for r2 in range(2):
                a.i(f"ds_read_b64_tr_b16 {vr(80 + 56 * m + 4 * ks + 2 * r2, 2)}, v13 offset:{14336 * m + 1024 * ks + 128 * r2}")
            if ks % 7 == 6: a.i("s_waitcnt lgkmcnt(0)")
    a.i("s_waitcnt vmcnt(0)")
    mstamp(a, st, 'gath')
    for ks in range(14):
        for m in range(2):
            acc = vr(72 + 4 * m, 4)
            a.i(f"v_mfma_f32_16x16x32_bf16 {acc}, {vr(80 + 56 * m + 4 * ks, 4)}, {vr(16 + 4 * ks, 4)}, {'0' if ks == 0 else acc}")
    a.i("s_nop 7")
    for r in range(4):
        round_bf(a, 72 + r, 72 + r); round_bf(a, 76 + r, 76 + r)
        sigmoid(a, 5, 72 + r, 6)
        a.i(f"v_mul_f32 {vr(72 + r)}, {vr(72 + r)}, v5"); round_bf(a, 72 + r, 72 + r)
        a.i(f"v_mul_f32 {vr(72 + r)}, {vr(72 + r)}, {vr(76 + r)}")
    a.i("v_cvt_pk_bf16_f32 v76, v72, v73"); a.i("v_cvt_pk_bf16_f32 v77, v74, v75")
    a.i("v_and_b32 v5, 15, v2"); a.i("v_lshlrev_b32 v6, 4, v5")
    a.i("v_lshrrev_b32 v7, 1, v12"); a.i("v_lshl_add_u32 v6, v7, 7, v6"); a.i("v_and_b32 v7, 1, v12"); a.i("v_lshl_add_u32 v6, v7, 3, v6")
    a.i("s_lshr_b32 s24, s2, 1"); a.i("s_lshl_b32 s24, s24, 9"); a.i("s_and_b32 s26, s2, 1"); a.i("s_lshl_b32 s26, s26, 8")
    a.i("s_add_u32 s24, s24, s26"); a.i(f"s_add_u32 s24, s24, {WS_GU}")
    a.i("v_cmp_gt_u32 vcc, 8, v5"); a.i("s_and_saveexec_b64 s[36:37], vcc")
    a.i("buffer_store_dwordx2 v[76:77], v6, s[20:23], s24 offen sc1")
    a.i("s_mov_b64 exec, s[36:37]")
    mstamp(a, st, 'gust')
    mstamps_out(a, st, 0)
    a.i("s_endpgm")
    a.label("KM_OTH")
    a.i(f"s_cmp_ge_u32 s2, {NG}"); a.i("s_cbranch_scc1 KM_PH2")
    a.i("s_waitcnt vmcnt(0)"); a.i("s_barrier")
    a.i("s_endpgm")
    a.label("KM_DN0")
    a.i("v_lshl_add_u32 v201, v12, 3, v11"); a.i("v_add_u32 v201, s25, v201")
    a.i(f"s_mov_b32 s24, {WS_X1}"); a.i("buffer_load_dwordx2 v[202:203], v201, s[20:23], s24 offen")
    a.i(f"s_mov_b32 s24, {WS_H2}"); a.i("buffer_load_dwordx2 v[204:205], v201, s[20:23], s24 offen")
    a.i("v_lshlrev_b32 v13, 3, v12"); a.i("v_add_u32 v13, s25, v13")
    a.i(f"s_mov_b32 s24, {WS_GB}"); a.i("buffer_load_dwordx2 v[206:207], v13, s[20:23], s24 offen")
    a.i("v_lshrrev_b32 v13, 16, v9")
    a.i("v_and_b32 v14, 0x8000, v13"); a.i("v_cmp_ne_u32 vcc, 0, v14")
    a.i("v_xor_b32 v14, 0x8000, v13"); a.i("v_xor_b32 v15, 0xffff, v13")
    a.i("v_cndmask_b32 v13, v15, v14, vcc"); a.i("v_lshlrev_b32 v208, 16, v13")
    a.label("KM_PH2")
    mstamp(a, st, 'polled')
    a.i("s_waitcnt vmcnt(0)")
    a.i("v_lshrrev_b32 v12, 4, v2")
    a.i("v_bfe_u32 v13, v2, 2, 2"); a.i("v_lshl_add_u32 v13, v12, 3, v13"); a.i("v_lshlrev_b32 v13, 5, v13")
    a.i("v_and_b32 v14, 3, v2"); a.i("v_lshl_add_u32 v13, v14, 3, v13"); a.i("v_add_u32 v13, s28, v13")
    for ks in range(14):
        for r2 in range(2):
            a.i(f"ds_read_b64_tr_b16 {vr(80 + 4 * ks + 2 * r2, 2)}, v13 offset:{1024 * ks + 128 * r2}")
        if ks % 7 == 6: a.i("s_waitcnt lgkmcnt(0)")
    a.i("v_and_b32 v5, 7, v2"); a.i("v_lshlrev_b32 v6, 4, v5"); a.i("v_lshl_add_u32 v6, v12, 7, v6")
    a.i(f"s_mul_i32 s24, s3, {14 * 512}"); a.i(f"s_add_u32 s24, s24, {WS_GU}"); a.i("s_add_u32 s29, s24, 4096")
    a.i("s_mov_b32 s26, 0x40000")
    a.label("KM_POLL")
    for ks in range(14):
        a.i(f"buffer_load_dwordx4 {vr(16 + 4 * ks, 4)}, v6, s[20:23], {'s24' if ks < 8 else 's29'} offen offset:{512 * (ks % 8)} sc1")
    a.i("s_waitcnt vmcnt(0)")
    a.i("v_max3_u32 v7, v16, v17, v18")
    for k in range(19, 71, 2): a.i(f"v_max3_u32 v7, v7, {vr(k)}, {vr(k + 1)}")
    a.i("v_max_u32 v7, v7, v71")
    a.i("v_cmp_eq_u32 vcc, -1, v7")
    a.i("s_sub_u32 s26, s26, 1"); a.i("s_cbranch_scc1 KM_GOT")
    a.i("s_cbranch_vccnz KM_POLL")
    a.label("KM_GOT")
    mstamp(a, st, 'guld')
    for ks in range(14):
        a.i(f"v_mfma_f32_16x16x32_bf16 v[72:75], {vr(80 + 4 * ks, 4)}, {vr(16 + 4 * ks, 4)}, {'0' if ks == 0 else 'v[72:75]'}")
    a.i("s_nop 7")
    a.i("v_lshlrev_b32 v3, 4, v2"); a.i("s_lshl_b32 s24, s3, 10"); a.i(f"s_add_u32 s24, s24, {L_RED}"); a.i("v_add_u32 v3, s24, v3")
    a.i("ds_write_b128 v3, v[72:75]")
    a.i("s_waitcnt lgkmcnt(0)"); a.i("s_barrier")
    a.i("s_cmp_lg_u32 s3, 0"); a.i("s_cbranch_scc1 KM_DONE")
    for w in range(1, 4): a.i(f"ds_read_b128 {vr(16 + 4 * w, 4)}, v3 offset:{1024 * w}")
    srd(a, 16, 42, 2048 * 896)
    sigmoid(a, 5, 208, 6); round_bf(a, 5, 5)
    a.i("s_waitcnt lgkmcnt(0)")
    for r in range(4):
        for w in range(1, 4): a.i(f"v_add_f32 {vr(72 + r)}, {vr(72 + r)}, {vr(16 + 4 * w + r)}")
        round_bf(a, 72 + r, 72 + r)
        a.i(f"v_mul_f32 {vr(72 + r)}, {vr(72 + r)}, v5"); round_bf(a, 72 + r, 72 + r)
    for half in range(2):
        bf_lo(a, 16 + 2 * half, 204 + half); bf_hi(a, 17 + 2 * half, 204 + half)
        bf_lo(a, 20 + 2 * half, 202 + half); bf_hi(a, 21 + 2 * half, 202 + half)
        bf_lo(a, 24 + 2 * half, 206 + half); bf_hi(a, 25 + 2 * half, 206 + half)
    for r in range(4):
        a.i(f"v_add_f32 {vr(72 + r)}, {vr(72 + r)}, {vr(16 + r)}"); round_bf(a, 72 + r, 72 + r)
        a.i(f"v_mul_f32 {vr(72 + r)}, {vr(72 + r)}, {vr(24 + r)}"); round_bf(a, 72 + r, 72 + r)
        a.i(f"v_add_f32 {vr(72 + r)}, {vr(72 + r)}, {vr(20 + r)}")
    a.i("v_cvt_pk_bf16_f32 v76, v72, v73"); a.i("v_cvt_pk_bf16_f32 v77, v74, v75")
    a.i("v_and_b32 v5, 15, v2")
    a.i("v_cmp_gt_u32 vcc, 8, v5"); a.i("s_and_saveexec_b64 s[36:37], vcc")
    a.i("buffer_store_dwordx2 v[76:77], v201, s[16:19], 0 offen")
    a.i("s_mov_b64 exec, s[36:37]")
    if st:
        a.i("s_waitcnt vmcnt(0)")
        mstamp(a, st, 'end')
        mstamps_out(a, st, 1)
    a.label("KM_DONE")
    a.i("s_endpgm")
    return kdesc(n, vgpr=216, accum=216, sgpr=96 if st else 56), NWG, L_RED + 4096
```

```python
import sys
from asmlib import *
import kern_small as ks, kern_attn as ka
from core16 import Cfg

HEADER = open('adaLN_cond__gqa_block_cached__moe_arch_mod__prompt.s.ref').read().split('; Override launch geometry')[0]

def gen(cfg):
    ks.HD = getattr(cfg, 'stamps', 0) == 2
    ka.WARM_MOE = getattr(cfg, 'warm_moe', True)
    a = Asm()
    body = Asm()
    descs = []
    descs.append(ks.gen_k0(body, getattr(cfg, 'codewarm', 0)))
    d, n1, l1 = ka.gen_k1(body, cfg); descs.append(d)
    descs.append(ks.gen_k2(body))
    d, n3, l3 = ks.gen_moe(body, getattr(cfg, 'mst', False)); descs.append(d)
    body.label('ALL_END')
    hdr = HEADER
    hdr += "; @launch kernel=mod_kernel grid=(260,1,1) block=(256,1,1) lds=8192\n"
    hdr += f"; @launch kernel=attn_kernel grid=({n1},1,1) block=(256,1,1) lds={l1}\n"
    hdr += "; @launch kernel=red_kernel grid=(256,1,1) block=(512,1,1) lds=0\n"
    hdr += f"; @launch kernel=moe_kernel grid=({n3},1,1) block=(256,1,1) lds={l3}\n"
    hdr += '.amdgcn_target "amdgcn-amd-amdhsa--gfx950"\n.text\n'
    txt = hdr + body.text()
    for d in descs: txt += d
    return txt

if __name__ == "__main__":
    cfg = Cfg()
    for o in sys.argv[2:]:
        k, v = o.split("="); setattr(cfg, k, eval(v))
    open(sys.argv[1], "w").write(gen(cfg))
```

```python
from asmlib import *
from core16 import *
import core16 as c16
from kern_small import (srd, kstart, bf_lo, bf_hi, f2u, sigmoid, round_bf, QSCALE, WS_A1, WS_S1, WS_GA, WS_A2, WS_SB, WS_GB, WS_PART, WS_SIZE, WS_STAT)

SRD_X = 12
SRD_WS = 16
SRD_WQ = 68
S_KH = 32; S_RG = 33; S_G = 34; S_QW = 35
T0, T1, T2, T3 = 36, 37, 38, 39
S_WOFF = 40; S_WOFF2 = 41; S_WM0 = 42

WT = 33792
PHYS = [2 * WT, 1 * WT, 0 * WT, 3 * WT]
HB = 102912
MODB = 160256
QX = 98304
ST = 57344
XB = 67584
OX = 67584
WOT = 28672
WOSLOT = [0, WOT, 133120, 67584]
TB = 0; TSTR = 912

DBG = {}
WARM_MOE = True

def k1_setup(a):
    a.i("s_load_dwordx2 s[44:45], s[0:1], 0")
    a.i("s_load_dwordx4 s[48:51], s[0:1], 8")
    a.i("s_load_dwordx4 s[52:55], s[0:1], 24")
    a.i("s_load_dwordx2 s[56:57], s[0:1], 112")
    a.i("s_load_dwordx4 s[60:63], s[0:1], 56")
    a.i("s_load_dwordx2 s[64:65], s[0:1], 72")
    a.i("v_lshrrev_b32 v1, 6, v0"); a.i("s_nop 0")
    a.i(f"v_readfirstlane_b32 {sr(S_W)}, v1")
    a.i("v_and_b32 v0, 63, v0")
    a.i(f"s_and_b32 {sr(S_KH)}, {sr(S_W)}, 1")
    a.i(f"s_lshr_b32 {sr(S_RG)}, {sr(S_W)}, 1")
    a.i(f"s_and_b32 {sr(S_G)}, s2, 7")
    a.i(f"s_lshr_b32 {sr(S_QW)}, s2, 3")

def k1_srds(a):
    a.i("s_waitcnt lgkmcnt(0)")
    srd(a, SRD_X, 44, 2048 * 896)
    srd(a, SRD_WS, 56, 0x2000000)
    a.i(f"s_lshl_b32 {sr(T0)}, {sr(S_G)}, 10")
    a.i(f"s_add_u32 {sr(SRD_WQ)}, s52, {sr(T0)}"); a.i(f"s_addc_u32 {sr(SRD_WQ + 1)}, s53, 0")
    a.i(f"s_sub_u32 {sr(SRD_WQ + 2)}, {448 * 8192}, {sr(T0)}"); a.i(f"s_mov_b32 {sr(SRD_WQ + 3)}, 0x20000")

def kv_srds(a):
    a.i(f"s_lshl_b32 {sr(T0)}, {sr(S_G)}, 20")
    for d, p, bias in ((SRD_K, 48, 128), (SRD_V, 50, 256)):
        a.i(f"s_add_u32 {sr(d)}, {sr(p)}, {sr(T0)}"); a.i(f"s_addc_u32 {sr(d + 1)}, {sr(p + 1)}, 0")
        a.i(f"s_sub_u32 {sr(d)}, {sr(d)}, {bias}"); a.i(f"s_subb_u32 {sr(d + 1)}, {sr(d + 1)}, 0")
        a.i(f"s_mov_b32 {sr(d + 2)}, {0x100000 + bias}"); a.i(f"s_mov_b32 {sr(d + 3)}, 0x20000")

WQV = 4
def wq_setup(a):
    a.i(f"s_lshl_b32 {sr(T0)}, {sr(S_KH)}, 3"); a.i(f"v_xor_b32 v1, {sr(T0)}, v0")
    a.i("v_lshlrev_b32 v1, 4, v1")
    a.i(f"s_lshl_b32 {sr(T0)}, {sr(S_W)}, 16")
    a.i(f"v_add_u32 v1, {sr(T0)}, v1")
    for j in range(4):
        a.i(f"v_add_u32 {vr(WQV + j)}, {j * (8192 - 1056)}, v1")
    a.i(f"s_mul_i32 {sr(S_WM0)}, {sr(S_W)}, 8448")
    a.i(f"s_mov_b32 {sr(S_WOFF)}, 0"); a.i(f"s_mov_b32 {sr(S_WOFF2)}, {4 * 8192}")

def wq_tile(s):
    base = PHYS[s % 4]
    groups = []
    for i in range(8):
        pre = [f"s_add_u32 m0, {sr(S_WM0)}, {base + (i // 4) * 4224}"] if i % 4 == 0 else []
        so = (S_WOFF, S_WOFF2)[i // 4]
        ins = [f"buffer_load_dwordx4 {vr(WQV + (i & 3))}, {sr(SRD_WQ, 4)}, {sr(so)} offen offset:{1056 * (i & 3)} lds"]
        post = [f"s_add_u32 {sr(so)}, {sr(so)}, {32 * 8192}"] if i % 4 == 3 else []
        groups.append((pre, ins, post))
    return groups

def emit_groups(a, groups):
    for pre, ins, post in groups:
        for s in pre: a.i(s); a.i("s_nop 0")
        for s in ins + post: a.i(s)

def attn_setup(a):
    kh, rg = sr(S_KH), sr(S_RG)
    t = sr(T0)
    a.i(f"s_mul_i32 {sr(S_KM0)}, {kh}, {KSLOT}"); a.i(f"s_mul_i32 {t}, {rg}, {8 * 1056}"); a.i(f"s_add_u32 {sr(S_KM0)}, {sr(S_KM0)}, {t}")
    a.i(f"s_mul_i32 {sr(S_VM0)}, {kh}, {VSLOT}"); a.i(f"s_mul_i32 {t}, {rg}, {8 * 1088}"); a.i(f"s_add_u32 {sr(S_VM0)}, {sr(S_VM0)}, {t}")
    a.i(f"s_lshl_b32 {sr(S_KOFF)}, {kh}, 19"); a.i(f"s_add_u32 {sr(S_KOFF2)}, {sr(S_KOFF)}, 4096")
    a.i(f"s_mov_b32 {sr(S_VOFF)}, {sr(S_KOFF)}"); a.i(f"s_mov_b32 {sr(S_VOFF2)}, {sr(S_KOFF2)}")
    a.i(f"s_mov_b32 {sr(S_THR)}, 0x46800000")
    a.i("v_lshrrev_b32 v2, 5, v0"); a.i("v_and_b32 v1, 31, v0")
    a.i("v_xor_b32 v3, v1, v2"); a.i("v_lshlrev_b32 v3, 4, v3"); a.i("v_lshl_add_u32 v3, v2, 9, v3")
    a.i(f"s_lshl_b32 {t}, {rg}, 13"); a.i(f"v_add_u32 v3, {t}, v3")
    for j in range(4): a.i(f"v_add_u32 {vr(DK + j)}, {128 - 32 * j}, v3")

def attn_setup2(a):
    kh, rg = sr(S_KH), sr(S_RG); t = sr(T0)
    a.i("v_and_b32 v1, 15, v0"); a.i("v_lshrrev_b32 v2, 4, v0"); a.i("v_and_b32 v3, 1, v0")
    a.i("v_lshrrev_b32 v4, 1, v1"); a.i("v_mul_u32_u24 v4, 1056, v4"); a.i("v_lshl_add_u32 v4, v3, 9, v4")
    a.i("v_xor_b32 v5, v2, v3"); a.i("v_lshl_add_u32 v4, v5, 4, v4")
    a.i(f"s_mul_i32 {t}, {kh}, {KSLOT}"); a.i(f"v_add_u32 {vr(KB)}, {t}, v4")
    a.i("v_bfe_u32 v3, v0, 2, 1"); a.i("v_bfe_u32 v4, v0, 3, 1"); a.i("v_lshl_add_u32 v4, v2, 1, v4")
    a.i("v_mul_u32_u24 v4, 1088, v4"); a.i("v_lshl_add_u32 v4, v3, 9, v4")
    a.i("v_and_b32 v5, 3, v0"); a.i("v_lshl_add_u32 v4, v5, 3, v4")
    a.i(f"s_mul_i32 {t}, {kh}, {VSLOT}"); a.i(f"s_add_u32 {t}, {t}, {VRING}")
    a.i(f"v_add_u32 v4, {t}, v4")
    a.i(f"v_lshl_add_u32 {vr(VB)}, v3, 5, v4")
    a.i("v_xor_b32 v5, 1, v3"); a.i(f"v_lshl_add_u32 {vr(VB + 1)}, v5, 5, v4")
    a.i("v_lshrrev_b32 v2, 5, v0"); a.i("v_and_b32 v1, 31, v0")
    a.i("v_lshlrev_b32 v3, 1, v2"); a.i("v_xor_b32 v3, v1, v3"); a.i("v_lshlrev_b32 v3, 4, v3"); a.i("v_lshl_add_u32 v3, v2, 9, v3")
    a.i(f"s_lshl_b32 {t}, {rg}, 13"); a.i(f"v_add_u32 v3, {t}, v3")
    for j in range(4): a.i(f"v_add_u32 {vr(DV + j)}, {256 - 64 * j}, v3")

XF = 16
XR = 128
MV = 184
def x_issue(a):
    a.i("v_and_b32 v1, 15, v0"); a.i("v_lshrrev_b32 v2, 4, v0")
    a.i(f"s_lshl_b32 {sr(T0)}, {sr(S_QW)}, 6"); a.i(f"s_lshl_b32 {sr(T1)}, {sr(S_W)}, 4"); a.i(f"s_add_u32 {sr(T0)}, {sr(T0)}, {sr(T1)}")
    a.i(f"v_add_u32 v3, {sr(T0)}, v1")
    a.i("v_lshlrev_b32 v9, 3, v3"); a.i(f"s_mov_b32 {sr(T1)}, {WS_STAT}")
    a.i(f"buffer_load_dwordx2 v[14:15], v9, {sr(SRD_WS, 4)}, {sr(T1)} offen")
    a.i("v_lshlrev_b32 v8, 4, v0")
    a.i(f"s_lshl_b32 {sr(T0)}, {sr(S_W)}, 10"); a.i(f"s_add_u32 m0, {sr(T0)}, {MODB}")
    a.i(f"s_cmp_eq_u32 {sr(S_W)}, 3"); a.i("s_cselect_b32 exec_hi, 0, -1")
    a.i(f"buffer_load_dwordx4 v8, {sr(SRD_WS, 4)}, {sr(T0)} offen lds")
    a.i("s_mov_b32 exec_hi, -1")
    a.i("v_mul_u32_u24 v3, 896, v3"); a.i("v_lshl_add_u32 v3, v2, 4, v3")
    for i in range(14):
        a.i(f"buffer_load_dwordx4 {vr(XR + 4 * i, 4)}, v3, {sr(SRD_X, 4)}, 0 offen offset:{64 * i}")
    a.i(f"s_lshl_b32 {sr(T0)}, {sr(S_W)}, 5"); a.i(f"v_and_b32 v9, 31, v0"); a.i(f"v_add_u32 v9, {sr(T0)}, v9")
    a.i("v_lshrrev_b32 v10, 3, v9"); a.i(f"s_mul_i32 {sr(T0)}, {sr(S_QW)}, 14"); a.i(f"v_add_u32 v10, {sr(T0)}, v10")
    a.i("v_lshlrev_b32 v10, 13, v10"); a.i("v_and_b32 v9, 7, v9"); a.i("v_lshl_add_u32 v9, v9, 7, v10")
    a.i(f"buffer_load_dword v250, v9, {sr(SRD_WQ, 4)}, 0 offen")

def code_warm(a):
    a.i(f"s_cmp_gt_u32 {sr(S_QW)}, 9"); a.i("s_cbranch_scc1 K1_NCW")
    a.i(f"s_cmp_lg_u32 {sr(S_W)}, 3"); a.i("s_cbranch_scc1 K1_NCW")
    a.i("s_getpc_b64 s[92:93]")
    a.label("K1_PC")
    a.i("s_mov_b32 s94, K1_END - K1_PC"); a.i("s_mov_b32 s95, 0x20000")
    a.i(f"s_lshl_b32 {sr(T0)}, {sr(S_QW)}, 13"); a.i("v_lshlrev_b32 v9, 7, v0")
    a.i(f"buffer_load_dword v253, v9, s[92:95], {sr(T0)} offen")
    a.label("K1_NCW")

def prologue(a, cfg):
    if getattr(cfg, 'codewarm', 0) & 1: code_warm(a)
    x_issue(a)
    wq_setup(a)
    kv_srds(a)
    wqq = []
    for s in range(3):
        for pre, ins, post in wq_tile(s): wqq.append((pre, ins, post))
    def drip(n=1):
        for _ in range(n):
            if wqq:
                pre, ins, post = wqq.pop(0)
                for t in pre: a.i(t); a.i("s_nop 0")
                for t in ins + post: a.i(t)
    a.i("s_waitcnt vmcnt(15)"); a.i("s_barrier")
    stamp(a, cfg, 'modv')
    a.i("v_lshrrev_b32 v2, 4, v0"); a.i("v_lshlrev_b32 v2, 5, v2"); a.i(f"v_add_u32 v2, {MODB}, v2")
    a.i("v_lshlrev_b32 v1, 4, v0"); a.i(f"s_lshl_b32 {sr(T0)}, {sr(S_W)}, 10"); a.i(f"s_add_u32 {sr(T0)}, {sr(T0)}, {HB}")
    a.i(f"v_add_u32 v1, {sr(T0)}, v1")
    def mv_read(i):
        b = MV + 16 * (i & 1)
        for k in range(2):
            a.lds(f"ds_read_b128 {vr(b + 4 * k, 4)}, v2 offset:{128 * i + 16 * k}", ("mv", i))
            a.lds(f"ds_read_b128 {vr(b + 8 + 4 * k, 4)}, v2 offset:{1792 + 128 * i + 16 * k}", ("mv", i))
    mv_read(0)
    a.i("v_mov_b32 v12, v15")
    ndrip = 0
    for i in range(14):
        if i + 1 < 14: mv_read(i + 1)
        a.i(f"s_waitcnt vmcnt({13 - i + 1 + ndrip})")
        if i == 0: stamp(a, cfg, 'xarr')
        for j in range(4):
            x = XF + 8 * (i & 1) + 2 * j
            bf_lo(a, x, XR + 4 * i + j); bf_hi(a, x + 1, XR + 4 * i + j)
        a.need(("mv", i))
        b = MV + 16 * (i & 1)
        for k in range(0, 8, 2):
            x = XF + 8 * (i & 1) + k
            a.i(f"v_pk_fma_f32 {vr(x, 2)}, {vr(x, 2)}, v[14:15], v[12:13] op_sel_hi:[1,0,0]")
            a.i(f"v_pk_fma_f32 {vr(x, 2)}, {vr(x, 2)}, {vr(b + k, 2)}, {vr(b + 8 + k, 2)}")
            a.i(f"v_cvt_pk_bf16_f32 {vr(XR + 4 * i + k // 2)}, {vr(x)}, {vr(x + 1)}")
        a.lds(f"ds_write_b128 v1, {vr(XR + 4 * i, 4)} offset:{4096 * i}")
        if i >= 2: drip(2); ndrip += 2
    assert not wqq
    stamp(a, cfg, 'ln')
    a.lds_drain(); a.i("s_barrier")
    a.i(f"v_lshlrev_b32 v14, 4, v0"); a.i(f"v_add_u32 v14, {HB}, v14")
    for ks in range(8):
        for qb in range(4):
            a.lds(f"ds_read_b128 {ar((ks * 4 + qb) * 4, 4)}, v14 offset:{(ks * 4 + qb) * 1024}", ("hf", ks))
        if ks % 3 == 2: a.lds_drain()
    a.lds_drain()

WA = 8
WAH = 12
QACC = 128
def qproj(a):
    attn_setup(a)
    a.i("v_lshrrev_b32 v1, 4, v0"); a.i("v_bfe_u32 v2, v0, 2, 2"); a.i("v_lshl_add_u32 v2, v1, 3, v2"); a.i("v_mul_u32_u24 v2, 1056, v2")
    a.i("v_and_b32 v3, 3, v0"); a.i("v_lshl_add_u32 v2, v3, 3, v2")
    a.i(f"s_lshl_b32 {sr(T0)}, {sr(S_W)}, 8")
    a.i(f"v_add_u32 v2, {sr(T0)}, v2")
    a.i("v_and_b32 v3, 1, v1"); a.i("v_lshlrev_b32 v3, 7, v3")
    a.i(f"v_add_u32 {vr(WA)}, v2, v3"); a.i(f"v_sub_u32 {vr(WA + 1)}, v2, v3")
    a.i(f"v_add_u32 {vr(WAH)}, {2 * WT}, {vr(WA)}"); a.i(f"v_add_u32 {vr(WAH + 1)}, {2 * WT}, {vr(WA + 1)}")
    a.i("s_waitcnt vmcnt(16)"); a.i("s_barrier")
    PF = 3
    def fread(absf):
        s, db = absf // 8, absf % 8
        ph = PHYS[s % 4]
        breg, off = (WA, ph) if ph < 2 * WT else (WAH, ph - 2 * WT)
        breg += db >> 2
        r = FR + 4 * (absf % 4)
        return [(f"ds_read_b64_tr_b16 {vr(r + 2 * r2, 2)}, {vr(breg)} offset:{off + 4224 * r2 + 32 * db}", ("wf", absf)) for r2 in range(2)]
    for f in range(PF):
        for s, tag in fread(f): a.lds(s, tag)
    pend = []
    for s in range(14):
        plan = {}
        def put(g, t): plan.setdefault(g, []).append(t)
        if s + 1 < 14:
            vm = 8
            put(1, f"s_waitcnt vmcnt({vm})"); put(1, "s_barrier")
        else:
            put(1, "s_barrier")
        groups = None
        if s + 3 < 14: groups = wq_tile(s + 3)
        elif s == 11: groups = dma_tile('K', 0)
        if groups:
            for (pre, ins, post), g in zip(groups, [3, 6, 10, 14, 18, 22, 26, 30]):
                for t in pre: put(g - 1, t)
                for t in ins + post: put(g, t)
        hq = []
        if s < 6:
            hq = [(f"ds_read_b128 {ar(((8 + s) * 4 + qb) * 4, 4)}, v14 offset:{((8 + s) * 4 + qb) * 1024}", ("hf", 8 + s)) for qb in range(4)]
        for i in range(32):
            db, qb = i >> 2, i & 3
            absf = 8 * s + db
            if qb == 0: a.need(("wf", absf))
            if i == 0 and s >= 8: a.need(("hf", s))
            if hq and i % 8 == 3:
                t, tag = hq.pop(0); a.lds(t, tag)
            acc = vr(QACC + 16 * db + 4 * qb, 4)
            a.i(f"v_mfma_f32_16x16x32_bf16 {acc}, {vr(FR + 4 * (absf % 4), 4)}, {ar((s * 4 + qb) * 4, 4)}, {'0' if s == 0 else acc}")
            if qb == 0 and absf + PF < 8 * 14: pend += fread(absf + PF)
            for t in plan.pop(i, []): a.i(t)
            k = 0
            while pend and k < 2:
                t, tag = pend.pop(0); a.lds(t, tag); k += 1
        assert not plan

def qexchange(a):
    a.i("s_nop 7")
    a.i("v_and_b32 v1, 15, v0"); a.i("v_lshlrev_b32 v1, 4, v1"); a.i("v_bfe_u32 v2, v0, 4, 1"); a.i("v_lshl_add_u32 v1, v2, 3, v1")
    a.i("v_lshrrev_b32 v2, 5, v0"); a.i("v_lshl_add_u32 v1, v2, 8, v1")
    a.i(f"s_lshl_b32 {sr(T0)}, {sr(S_RG)}, 15"); a.i(f"s_add_u32 {sr(T0)}, {sr(T0)}, {QX}")
    a.i(f"s_lshl_b32 {sr(T1)}, {sr(S_KH)}, 12"); a.i(f"s_add_u32 {sr(T1)}, {sr(T1)}, {sr(T0)}")
    a.i(f"v_add_u32 v3, {sr(T1)}, v1")
    n = 0
    for db in range(8):
        for qb in range(4):
            x = QACC + 16 * db + 4 * qb
            t = 96 + 2 * (n % 8); n += 1
            a.i(f"v_cvt_pk_bf16_f32 {vr(t)}, {vr(x)}, {vr(x + 1)}")
            a.i(f"v_cvt_pk_bf16_f32 {vr(t + 1)}, {vr(x + 2)}, {vr(x + 3)}")
            a.lds(f"ds_write_b64 v3, {vr(t, 2)} offset:{8192 * qb + 1024 * (db >> 1) + 512 * (db & 1)}")
    a.i("v_lshlrev_b32 v3, 4, v0"); a.i(f"v_add_u32 v3, {sr(T0)}, v3")
    a.lds_drain(); a.i("s_barrier")
    kq = []
    for pre, ins, post in dma_tile('K', 1):
        kq.append([t for t in pre] + (["s_nop 0"] if pre else []) + ins + post)
    for ks in range(8):
        for qb in range(4):
            a.lds(f"ds_read_b128 {vr(Q + 32 * qb + 4 * ks, 4)}, v3 offset:{8192 * qb + 1024 * ks}", ("qf", ks))
        for t in kq.pop(0): a.i(t)
        if ks % 2 == 1: a.need(("qf", ks - 1))
    attn_setup2(a)
    a.lds_drain()
    a.i("s_waitcnt vmcnt(8)"); a.i("s_barrier")
    emit_groups(a, dma_tile('V', 0))

def attention(a, cfg):
    core = Core16(a, cfg)
    for f in range(16):
        for s in frag_reads(f, 0, 0): a.lds(s)
        if f % 4 == 3:
            a.lds_drain()
            for f2 in range(f - 3, f + 1):
                kb, ks = f2 >> 3, f2 & 7
                for qb in range(4):
                    d = vr(Sreg(kb, qb), 4)
                    a.i(f"v_mfma_f32_16x16x32_bf16 {d}, {vr(FR + 4 * (f2 % 4), 4)}, {vr(Q + 32 * qb + 4 * ks, 4)}, {'0' if ks == 0 else d}")
    a.i("s_nop 7")
    for qb in range(4):
        core.rowmax4(qb, TA, TB_)
        for r in range(4):
            a.i(f"v_sub_f32 {vr(NEGM + 4 * qb + r)}, 0, {vr(TA)}")
            for kb in range(2):
                a.i(f"v_sub_f32 {vr(Sreg(kb, qb) + r)}, {vr(Sreg(kb, qb) + r)}, {vr(TA)}")
        a.i(f"v_mov_b32 {vr(L + qb)}, 0")
    for kb in range(2):
        for c, s in softmax_ops(kb, P0):
            a.i(s)
            if c == 2: a.i("s_nop 0")
    for qb in range(4):
        a.i(f"v_add_f32 {vr(L + qb)}, {vr(L + qb)}, {vr(PS + qb)}")
    a.i("s_waitcnt vmcnt(8)"); a.i("s_barrier")
    emit_groups(a, dma_tile('K', 0)[:2])
    core.prefetch_first(0)
    core.iteration(0, first=True)
    a.i(f"s_mov_b32 {sr(S_CNT)}, 14")
    st0 = a.lds_state(); base0 = core.fidx
    st0 = {k: v for k, v in st0.items() if k[0] == 'f'}
    a.lds_done = a.tag_last[("f", core.fidx)] - 1
    a.raw(".p2align 3")
    a.label("K1_LOOP")
    core.pend_l = True
    core.iteration(1); core.iteration(2)
    a.i(f"s_sub_u32 {sr(S_CNT)}, {sr(S_CNT)}, 1")
    a.i(f"s_cmp_lg_u32 {sr(S_CNT)}, 0")
    a.i("s_cbranch_scc1 K1_LOOP")
    st1 = {k: v for k, v in a.lds_state().items() if k[0] == 'f'}
    rel0 = {k[1] - base0: v for k, v in st0.items()}; rel1 = {k[1] - core.fidx: v for k, v in st1.items()}
    assert all(rel0.get(k) == v for k, v in rel1.items()), (rel0, rel1)
    a.i(f"s_mul_i32 {sr(T2)}, {sr(S_G)}, {512 * 896}")
    a.i(f"s_add_u32 {sr(SRD_X)}, s54, {sr(T2)}"); a.i(f"s_addc_u32 {sr(SRD_X + 1)}, s55, 0")
    a.i(f"s_mov_b32 {sr(SRD_X + 2)}, {512 * 896}"); a.i(f"s_mov_b32 {sr(SRD_X + 3)}, 0x20000")
    a.i(f"s_mul_i32 {sr(T2)}, {sr(S_QW)}, {112 * 128}"); a.i(f"s_lshl_b32 {sr(T3)}, {sr(S_W)}, 12"); a.i(f"s_add_u32 {sr(T2)}, {sr(T2)}, {sr(T3)}")
    a.i(f"v_and_b32 {vr(TA)}, 31, v0"); a.i(f"v_lshlrev_b32 {vr(TA)}, 7, {vr(TA)}")
    a.i(f"buffer_load_dword v15, {vr(TA)}, {sr(SRD_X, 4)}, {sr(T2)} offen")
    core.iteration(1, dmaKt=False)
    core.iteration(2, dmaKh=False, dmaKt=False, nxt='B', vmA=0, vmB=0)
    class L_:
        def __init__(self): self.q = []
        def i(self, t): self.q.append(t)
    lq = L_(); wo_setup(lq)
    for s_ in range(2):
        for pre, ins, post in wo_tile(s_):
            for t in pre: lq.i(t); lq.i("s_nop 0")
            for t in ins + post: lq.i(t)
    core.iteration(3, do_A=False, do_soft=False, dmaV=False, dmaKh=False, dmaKt=False, nxt=None, barB=False, extra_q=lq.q, extra_start=64)
    return core

TB_ = c16.TB

def merge(a, core, cfg):
    for qb in range(4): core.xreduce(L + qb, TA, "v_add_f32")
    a.i("v_lshlrev_b32 v1, 2, v0"); a.i(f"s_lshl_b32 {sr(T0)}, {sr(S_W)}, 11"); a.i(f"s_add_u32 {sr(T1)}, {sr(T0)}, {ST}")
    a.i(f"v_add_u32 v2, {sr(T1)}, v1")
    for qb in range(4):
        a.lds(f"ds_write_b32 v2, {vr(NEGM + 4 * qb)} offset:{256 * qb}")
        a.lds(f"ds_write_b32 v2, {vr(L + qb)} offset:{1024 + 256 * qb}")
    a.i(f"s_xor_b32 {sr(T0)}, {sr(T0)}, 2048"); a.i(f"s_add_u32 {sr(T1)}, {sr(T0)}, {ST}")
    a.i(f"v_add_u32 v2, {sr(T1)}, v1")
    a.lds_drain(); a.i("s_barrier")
    for qb in range(4):
        a.lds(f"ds_read_b32 {vr(16 + qb)}, v2 offset:{256 * qb}")
        a.lds(f"ds_read_b32 {vr(20 + qb)}, v2 offset:{1024 + 256 * qb}", "st")
    a.i("v_lshlrev_b32 v1, 4, v0")
    a.i(f"s_lshl_b32 {sr(T0)}, {sr(S_W)}, 14"); a.i(f"s_add_u32 {sr(T1)}, {sr(T0)}, {XB}"); a.i(f"v_add_u32 v6, {sr(T1)}, v1")
    a.i(f"s_xor_b32 {sr(T0)}, {sr(T0)}, 16384"); a.i(f"s_add_u32 {sr(T1)}, {sr(T0)}, {XB}"); a.i(f"v_add_u32 v7, {sr(T1)}, v1")
    emit_groups(a, wo_tile(2))
    a.need("st")
    for qb in range(4):
        no, np_ = NEGM + 4 * qb, 16 + qb
        a.i(f"v_min_f32 v4, {vr(no)}, {vr(np_)}")
        a.i(f"v_sub_f32 v5, v4, {vr(no)}"); a.i("v_exp_f32 v5, v5")
        a.i(f"v_sub_f32 v3, v4, {vr(np_)}"); a.i("v_exp_f32 v3, v3")
        a.i("s_nop 0")
        a.i(f"v_mul_f32 v2, v5, {vr(L + qb)}"); a.i(f"v_fmac_f32 v2, v3, {vr(20 + qb)}")
        a.i("v_rcp_f32 v2, v2"); a.i("s_nop 0")
        a.i(f"v_mul_f32 {vr(24 + 2 * qb)}, v5, v2"); a.i(f"v_mul_f32 {vr(32 + 2 * qb)}, v3, v2")
    R = 72; OWN = 128
    a.i(f"s_cmp_eq_u32 {sr(S_KH)}, 0"); a.i("s_cbranch_scc0 K1_MG1")
    for kh in range(2):
        if kh == 1: a.label("K1_MG1")
        ownq = []
        for dbp in range(8):
            for qb in range(4):
                k = dbp * 4 + qb; x = 16 * (8 * kh + dbp) + 4 * qb; o = OWN + 4 * k
                ownq.append([f"v_accvgpr_read_b32 {vr(o + j)}, {ar(x + j)}" for j in range(4)] +
                            [f"v_pk_mul_f32 {vr(o + j, 2)}, {vr(o + j, 2)}, {vr(24 + 2 * qb, 2)} op_sel_hi:[1,0]" for j in (0, 2)])
        for rho in range(2):
            if rho == 1: a.i("s_barrier")
            for d4 in range(4):
                db = 8 * (1 - kh) + 4 * rho + d4
                for qb in range(4):
                    a.lds(f"ds_write_b128 v6, {ar(16 * db + 4 * qb, 4)} offset:{(d4 * 4 + qb) * 1024}")
                    if ownq:
                        for t in ownq.pop(0): a.i(t)
            a.lds_drain(); a.i("s_barrier")
            for half in range(2):
                for kk in range(8):
                    t16 = 8 * half + kk
                    a.lds(f"ds_read_b128 {vr(R + 4 * kk, 4)}, v7 offset:{t16 * 1024}", ("mg", kh, rho, t16))
                for kk in range(8):
                    t16 = 8 * half + kk
                    k = 16 * rho + t16; qb = k & 3; rr = R + 4 * kk; o = OWN + 4 * k
                    a.need(("mg", kh, rho, t16))
                    for j in (0, 2):
                        a.i(f"v_pk_fma_f32 {vr(o + j, 2)}, {vr(rr + j, 2)}, {vr(32 + 2 * qb, 2)}, {vr(o + j, 2)} op_sel_hi:[1,0,1]")
                    a.i(f"v_cvt_pk_bf16_f32 {vr(o)}, {vr(o)}, {vr(o + 1)}")
                    a.i(f"v_cvt_pk_bf16_f32 {vr(o + 1)}, {vr(o + 2)}, {vr(o + 3)}")
        if kh == 0: a.i("s_branch K1_MGJ")
    a.label("K1_MGJ")
    a.i("v_and_b32 v1, 15, v0"); a.i("v_lshlrev_b32 v1, 4, v1"); a.i("v_bfe_u32 v2, v0, 4, 1"); a.i("v_lshl_add_u32 v1, v2, 3, v1")
    a.i("v_lshrrev_b32 v2, 5, v0"); a.i("v_lshl_add_u32 v1, v2, 8, v1")
    a.i(f"s_lshl_b32 {sr(T0)}, {sr(S_W)}, 14"); a.i(f"s_add_u32 {sr(T0)}, {sr(T0)}, {OX}"); a.i(f"v_add_u32 v3, {sr(T0)}, v1")
    a.i("s_barrier")
    for dbp in range(8):
        for qb in range(4):
            a.lds(f"ds_write_b64 v3, {vr(OWN + 4 * (dbp * 4 + qb), 2)} offset:{(dbp >> 1) * 4096 + qb * 1024 + 512 * (dbp & 1)}")
    a.i(f"v_lshlrev_b32 v14, 4, v0"); a.i(f"v_add_u32 v14, {OX}, v14")
    a.lds_drain(); a.i("s_barrier")
    for ks in range(8):
        for qb in range(4):
            a.lds(f"ds_read_b128 {ar((ks * 4 + qb) * 4, 4)}, v14 offset:{(ks * 4 + qb) * 1024}", ("ox", ks))
        if ks % 2 == 1: a.need(("ox", ks - 1))

WOV = 64
WOA = 16
OACC = 128
S_OOFF = 40; S_OM0 = 42
def wo_setup(a):
    a.i(f"s_mul_i32 {sr(S_OM0)}, {sr(S_W)}, 7168"); a.i(f"s_mov_b32 {sr(S_OOFF)}, 0")
    for i in range(7):
        d = WOV + i
        a.i(f"s_mul_i32 {sr(T2)}, {sr(S_W)}, 448"); a.i(f"s_add_u32 {sr(T2)}, {sr(T2)}, {64 * i}")
        a.i(f"v_add_u32 {vr(d)}, {sr(T2)}, v0")
        a.i(f"v_mul_u32_u24 v2, 18725, {vr(d)}"); a.i("v_lshrrev_b32 v2, 20, v2")
        a.i("v_bfe_u32 v3, v2, 1, 1"); a.i("v_bfe_u32 v2, v2, 3, 1"); a.i("v_lshl_or_b32 v3, v2, 1, v3")
        a.i("v_lshlrev_b32 v3, 5, v3"); a.i(f"v_lshlrev_b32 {vr(d)}, 4, {vr(d)}"); a.i(f"v_xor_b32 {vr(d)}, {vr(d)}, v3")
        if i & 3: a.i(f"v_subrev_u32 {vr(d)}, {1024 * (i & 3)}, {vr(d)}")

def wo_tile(s):
    base = WOSLOT[s % 4]
    groups = []
    for i in range(7):
        pre = [f"s_add_u32 m0, {sr(S_OM0)}, {base + (i // 4) * 4096}"] if i % 4 == 0 else []
        ins = [f"buffer_load_dwordx4 {vr(WOV + i)}, {sr(SRD_X, 4)}, {sr(S_OOFF)} offen offset:{1024 * (i & 3)} lds"]
        post = [f"s_add_u32 {sr(S_OOFF)}, {sr(S_OOFF)}, {WOT}"] if i == 6 else []
        groups.append((pre, ins, post))
    return groups

def oproj(a):
    a.i("v_lshrrev_b32 v1, 4, v0"); a.i("v_bfe_u32 v2, v0, 2, 2"); a.i("v_lshl_add_u32 v2, v1, 3, v2"); a.i("v_mul_u32_u24 v2, 896, v2")
    a.i("v_and_b32 v3, 3, v0"); a.i("v_lshl_add_u32 v2, v3, 3, v2")
    a.i("v_bfe_u32 v3, v0, 3, 1"); a.i("v_bfe_u32 v4, v0, 4, 1"); a.i("v_lshl_or_b32 v3, v4, 1, v3")
    a.i(f"s_mul_i32 {sr(T0)}, {sr(S_W)}, 7")
    for j in range(7):
        a.i(f"s_add_u32 {sr(T1)}, {sr(T0)}, {j}")
        a.i(f"v_xor_b32 v4, {sr(T1)}, v3"); a.i(f"v_lshl_add_u32 {vr(WOA + j)}, v4, 5, v2")
        a.i(f"v_add_u32 {vr(WOA + 7 + j)}, {WOSLOT[3]}, {vr(WOA + j)}")
        a.i(f"v_add_u32 {vr(WOA + 14 + j)}, {WOSLOT[2]}, {vr(WOA + j)}")
    a.lds_drain()
    a.i("s_waitcnt vmcnt(14)"); a.i("s_barrier")
    emit_groups(a, wo_tile(3))
    PF = 3
    NF = 7 * 16
    def fread(absf):
        s, j = absf // 7, absf % 7
        sl = s % 4
        breg, off = {0: (WOA + j, 0), 1: (WOA + j, WOT), 2: (WOA + 14 + j, 0), 3: (WOA + 7 + j, 0)}[sl]
        r = FR + 4 * (absf % 4)
        return [(f"ds_read_b64_tr_b16 {vr(r + 2 * r2, 2)}, {vr(breg)} offset:{off + 3584 * r2}", ("of", absf)) for r2 in range(2)]
    for f in range(PF):
        for s, tag in fread(f): a.lds(s, tag)
    pend = []
    for s in range(16):
        plan = {}
        def put(g, t): plan.setdefault(g, []).append(t)
        if s + 1 < 16:
            vm = 14 if s == 0 else (7 if s + 2 <= 15 else 0)
            put(1, f"s_waitcnt vmcnt({vm})"); put(1, "s_barrier")
        if s >= 1 and s + 3 < 16:
            for (pre, ins, post), g in zip(wo_tile(s + 3), [3, 6, 10, 14, 18, 22, 26]):
                for t in pre: put(g - 1, t)
                for t in ins + post: put(g, t)
        if s == 15 and WARM_MOE:
            put(2, f"s_cmp_eq_u32 {sr(S_W)}, 1"); put(2, "s_cselect_b32 s4, s62, s60"); put(2, "s_cselect_b32 s5, s63, s61")
            put(3, f"s_cmp_ge_u32 {sr(S_W)}, 2"); put(3, "s_cselect_b32 s4, s64, s4"); put(3, "s_cselect_b32 s5, s65, s5")
            put(4, f"s_mov_b32 s6, {448 * 3584}"); put(4, "s_mov_b32 s7, 0x20000")
            put(5, f"s_mul_i32 {sr(T2)}, s2, {49 * 128}"); put(5, "v_lshlrev_b32 v4, 7, v0")
            put(7, f"buffer_load_dword v5, v4, s[4:7], {sr(T2)} offen")
        hq = []
        if s < 8:
            hq = [(f"ds_read_b128 {ar(((8 + s) * 4 + qb) * 4, 4)}, v14 offset:{((8 + s) * 4 + qb) * 1024}", ("ox", 8 + s)) for qb in range(4)]
        for i in range(28):
            j, qb = i >> 2, i & 3
            absf = 7 * s + j
            if qb == 0: a.need(("of", absf))
            if i == 0 and s >= 8: a.need(("ox", s))
            if hq and i % 7 == 3:
                t, tag = hq.pop(0); a.lds(t, tag)
            acc = vr(OACC + 16 * j + 4 * qb, 4)
            a.i(f"v_mfma_f32_16x16x32_bf16 {acc}, {vr(FR + 4 * (absf % 4), 4)}, {ar((s * 4 + qb) * 4, 4)}, {'0' if s == 0 else acc}")
            if qb == 0 and absf + PF < NF: pend += fread(absf + PF)
            for t in plan.pop(i, []): a.i(t)
            k = 0
            while pend and k < 2:
                t, tag = pend.pop(0); a.lds(t, tag); k += 1
        assert not plan, plan

def store_partials(a):
    a.i("s_barrier")
    a.i("s_nop 7")
    a.i("v_and_b32 v1, 15, v0"); a.i(f"v_mul_u32_u24 v1, {TSTR}, v1"); a.i("v_lshrrev_b32 v2, 4, v0"); a.i("v_lshl_add_u32 v1, v2, 3, v1")
    a.i(f"s_mul_i32 {sr(T0)}, {sr(S_W)}, 224"); a.i(f"v_add_u32 v1, {sr(T0)}, v1")
    n = 0
    for j in range(7):
        for qb in range(4):
            x = OACC + 16 * j + 4 * qb; t = 96 + 2 * (n % 8); n += 1
            a.i(f"v_cvt_pk_bf16_f32 {vr(t)}, {vr(x)}, {vr(x + 1)}")
            a.i(f"v_cvt_pk_bf16_f32 {vr(t + 1)}, {vr(x + 2)}, {vr(x + 3)}")
            a.lds(f"ds_write_b64 v1, {vr(t, 2)} offset:{TB + 16 * TSTR * qb + 32 * j}")
    a.lds_drain(); a.i("s_barrier")
    a.i("v_lshlrev_b32 v1, 4, v0")
    a.i(f"s_mul_i32 {sr(T0)}, {sr(S_W)}, {16 * TSTR}"); a.i(f"v_add_u32 v2, {sr(T0)}, v1")
    a.i(f"s_lshl_b32 {sr(T0)}, {sr(S_QW)}, 6"); a.i(f"s_lshl_b32 {sr(T1)}, {sr(S_W)}, 4"); a.i(f"s_add_u32 {sr(T0)}, {sr(T0)}, {sr(T1)}")
    a.i(f"s_lshl_b32 {sr(T1)}, {sr(S_G)}, 11"); a.i(f"s_add_u32 {sr(T0)}, {sr(T0)}, {sr(T1)}")
    a.i(f"s_mul_i32 {sr(T0)}, {sr(T0)}, 896"); a.i(f"s_add_u32 {sr(T0)}, {sr(T0)}, {WS_PART}")
    a.i("v_cmp_gt_u32 vcc, 56, v0"); a.i(f"s_and_saveexec_b64 s[46:47], vcc")
    for i in range(16):
        a.lds(f"ds_read_b128 {vr(128 + 4 * i, 4)}, v2 offset:{TB + TSTR * i}", ("tb", i))
    for i in range(16):
        a.need(("tb", i))
        a.i(f"s_add_u32 {sr(T1)}, {sr(T0)}, {896 * i}")
        a.i(f"buffer_store_dwordx4 {vr(128 + 4 * i, 4)}, v1, {sr(SRD_WS, 4)}, {sr(T1)} offen")
    a.i("s_mov_b64 exec, s[46:47]")

def dump_regs(a, kind, first, n, slot):
    a.i("s_nop 15")
    a.i("s_mov_b32 s60, s56"); a.i("s_mov_b32 s61, s57"); a.i("s_mov_b32 s62, 0x10000000"); a.i("s_mov_b32 s63, 0x20000")
    a.i(f"s_lshl_b32 s58, s2, 2"); a.i(f"s_add_u32 s58, s58, {sr(S_W)}"); a.i("s_lshl_b32 s58, s58, 16")
    a.i(f"s_add_u32 s58, s58, {0x8000000 + slot * 0x4000000}")
    a.i("v_lshlrev_b32 v15, 2, v0")
    for r in range(n):
        a.i(f"s_add_u32 s59, s58, {256 * r}")
        if kind == 'a':
            a.i(f"v_accvgpr_read_b32 v1, {ar(first + r)}"); a.i(f"buffer_store_dword v1, v15, s[60:63], s59 offen"); a.i("s_nop 1")
        else:
            a.i(f"buffer_store_dword {vr(first + r)}, v15, s[60:63], s59 offen")
    a.i("s_waitcnt vmcnt(0)")

STAMPS = []
def stamp(a, cfg, name):
    if not getattr(cfg, 'stamps', 0): return
    k = len(STAMPS); STAMPS.append(name)
    a.i(f"s_memrealtime s[{72 + 2 * k}:{73 + 2 * k}]")

def stamps_out(a, cfg):
    if not getattr(cfg, 'stamps', 0): return
    a.i("s_waitcnt lgkmcnt(0)")
    a.i("s_mov_b32 s60, s56"); a.i("s_mov_b32 s61, s57"); a.i("s_mov_b32 s62, 0x10000000"); a.i("s_mov_b32 s63, 0x20000")
    a.i(f"s_lshl_b32 s58, s2, 2"); a.i(f"s_add_u32 s58, s58, {sr(S_W)}"); a.i("s_lshl_b32 s58, s58, 7"); a.i("s_add_u32 s58, s58, 0x6000000")
    a.i("v_mov_b32 v15, 0")
    for k in range(len(STAMPS)):
        a.i(f"v_mov_b32 v14, s{72 + 2 * k}")
        a.i(f"buffer_store_dword v14, v15, s[60:63], s58 offen offset:{4 * k}")
        a.i("s_nop 1")

def gen_k1(a, cfg, stop=None):
    n = "attn_kernel"
    kstart(a, n)
    a.i("s_cmp_ge_u32 s2, 256"); a.i("s_cbranch_scc1 K1_DONE")
    stamp(a, cfg, 'start')
    k1_setup(a); k1_srds(a)
    prologue(a, cfg)
    if getattr(cfg, 'dbg', 0): dump_regs(a, 'a', 0, 224, 0)
    stamp(a, cfg, 'hfrag')
    qproj(a)
    stamp(a, cfg, 'qproj')
    qexchange(a)
    if getattr(cfg, 'dbg', 0): dump_regs(a, 'v', 128, 128, 1)
    stamp(a, cfg, 'qx')
    core = attention(a, cfg)
    stamp(a, cfg, 'attn')
    merge(a, core, cfg)
    oproj(a)
    stamp(a, cfg, 'oproj')
    store_partials(a)
    a.i("s_waitcnt vmcnt(0)")
    stamp(a, cfg, 'store')
    stamps_out(a, cfg)
    a.label("K1_DONE")
    a.i("s_endpgm")
    core.emit_rare()
    a.label("K1_END")
    return kdesc(n, vgpr=512, accum=256, sgpr=102), 256, 163840
```

```python
from asmlib import *

WS_A1 = 0
WS_S1 = 1792
WS_GA = 4096; WS_A2 = 5120; WS_SB = 6144; WS_GB = 7168
WS_R = 8192
WS_IDX = 16384
WS_RSEL = 16448
WS_GU = 20480
WS_STAT = 0x10000
WS_SYNC = 0x18000
WS_X1 = 0x100000
WS_H2 = 0x300000
WS_PART = 0x800000
WS_SIZE = 0x10000000
QSCALE = 1.4426950408889634 / 16

import struct
def f2u(x): return struct.unpack('<I', struct.pack('<f', x))[0]

def kstart(a, name):
    a.raw(f".globl {name}\n.p2align 8\n.type {name},@function\n{name}:")

def srd(a, dst, ptr, size, off=0):
    if off == 0:
        a.i(f"s_mov_b32 {sr(dst)}, {sr(ptr)}"); a.i(f"s_mov_b32 {sr(dst + 1)}, {sr(ptr + 1)}")
    else:
        a.i(f"s_add_u32 {sr(dst)}, {sr(ptr)}, {off}"); a.i(f"s_addc_u32 {sr(dst + 1)}, {sr(ptr + 1)}, 0")
    a.i(f"s_mov_b32 {sr(dst + 2)}, {size}"); a.i(f"s_mov_b32 {sr(dst + 3)}, 0x20000")

def bf_lo(a, d, s): a.i(f"v_lshlrev_b32 {vr(d)}, 16, {vr(s)}")
def bf_hi(a, d, s): a.i(f"v_and_b32 {vr(d)}, 0xffff0000, {vr(s)}")
def round_bf(a, d, s, tmp=None):
    a.i(f"v_cvt_pk_bf16_f32 {vr(d)}, {vr(s)}, {vr(s)}")
    a.i(f"v_lshlrev_b32 {vr(d)}, 16, {vr(d)}")

def wave_sum(a, v, t, n=1):
    for ctl in ("quad_perm:[1,0,3,2]", "quad_perm:[2,3,0,1]", "row_half_mirror", "row_mirror"):
        a.i("s_nop 1")
        a.i(f"v_add_f32_dpp {vr(v)}, {vr(v)}, {vr(v)} {ctl} row_mask:0xf bank_mask:0xf")
    for sw in ("v_permlane16_swap_b32", "v_permlane32_swap_b32"):
        a.i(f"v_mov_b32 {vr(t)}, {vr(v)}")
        a.i("s_nop 1")
        a.i(f"{sw} {vr(v)}, {vr(t)}")
        a.i("s_nop 1")
        a.i(f"v_add_f32 {vr(v)}, {vr(v)}, {vr(t)}")

def sigmoid(a, d, x, t):
    a.i(f"v_mul_f32 {vr(t)}, {hex(f2u(-1.4426950408889634))}, {vr(x)}")
    a.i(f"v_exp_f32 {vr(t)}, {vr(t)}")
    a.i("s_nop 0")
    a.i(f"v_add_f32 {vr(t)}, 1.0, {vr(t)}")
    a.i(f"v_rcp_f32 {vr(d)}, {vr(t)}")
    a.i("s_nop 0")

def gen_k0(a, codewarm=0):
    n = "mod_kernel"
    kstart(a, n)
    a.i("s_cmp_ge_u32 s2, 260"); a.i("s_cbranch_scc1 K0_DONE")
    a.i("s_cmp_ge_u32 s2, 148"); a.i("s_cbranch_scc1 K0_WARM")
    a.i("s_cmp_ge_u32 s2, 84"); a.i("s_cbranch_scc1 K0_STAT")
    a.i("s_load_dwordx4 s[4:7], s[0:1], 80")
    a.i("s_load_dwordx2 s[8:9], s[0:1], 112")
    a.i("v_and_b32 v1, 3, v0")
    a.i("v_lshrrev_b32 v2, 2, v0")
    a.i("v_mul_u32_u24 v3, 14, v2")
    a.i("v_mul_u32_u24 v4, 37632, v2")
    a.i("v_lshl_add_u32 v4, v1, 4, v4")
    a.i("s_lshl_b32 s3, s2, 6")
    a.i("v_add_u32 v4, s3, v4")
    a.i("s_waitcnt lgkmcnt(0)")
    srd(a, 12, 4, 896); srd(a, 16, 6, 448 * 5376); srd(a, 20, 8, WS_SIZE)
    for i in range(7):
        a.i(f"buffer_load_ushort {vr(8 + i)}, v3, s[12:15], 0 offen offset:{2 * i}")
    for i in range(7):
        a.i(f"s_mov_b32 s24, {5376 * i}")
        a.i(f"buffer_load_dwordx4 {vr(16 + 4 * i, 4)}, v4, s[16:19], s24 offen")
    a.i("s_waitcnt vmcnt(7)")
    for i in range(7):
        x = 8 + i
        a.i(f"v_lshlrev_b32 {vr(x)}, 16, {vr(x)}")
        sigmoid(a, 5, x, 6)
        a.i(f"v_mul_f32 {vr(x)}, {vr(x)}, v5")
        round_bf(a, x, x)
    for j in range(8): a.i(f"v_mov_b32 {vr(48 + j)}, 0")
    for i in range(7):
        a.i(f"s_waitcnt vmcnt({6 - i})")
        for j in range(4):
            bf_lo(a, 5, 16 + 4 * i + j); bf_hi(a, 6, 16 + 4 * i + j)
            a.i(f"v_fmac_f32 {vr(48 + 2 * j)}, {vr(8 + i)}, v5")
            a.i(f"v_fmac_f32 {vr(48 + 2 * j + 1)}, {vr(8 + i)}, v6")
    a.i("v_lshlrev_b32 v7, 7, v2"); a.i("v_lshl_add_u32 v7, v1, 5, v7")
    a.i("ds_write_b128 v7, v[48:51]"); a.i("ds_write_b128 v7, v[52:55] offset:16")
    a.i("s_waitcnt lgkmcnt(0)"); a.i("s_barrier")
    a.i("v_cmp_gt_u32 vcc, 32, v0"); a.i("s_and_saveexec_b64 s[26:27], vcc")
    a.i("s_cbranch_execz K0_DONE")
    a.i("v_lshlrev_b32 v7, 2, v0")
    for b in range(4):
        for j in range(16):
            a.i(f"ds_read_b32 {vr(16 + j)}, v7 offset:{128 * (16 * b + j)}")
        a.i("s_waitcnt lgkmcnt(0)")
        if b == 0: a.i("v_mov_b32 v8, 0")
        for j in range(0, 16, 4):
            a.i(f"v_add_f32 {vr(16 + j)}, {vr(16 + j)}, {vr(17 + j)}")
            a.i(f"v_add_f32 {vr(18 + j)}, {vr(18 + j)}, {vr(19 + j)}")
            a.i(f"v_add_f32 {vr(16 + j)}, {vr(16 + j)}, {vr(18 + j)}")
            a.i(f"v_add_f32 v8, v8, {vr(16 + j)}")
    round_bf(a, 8, 8)
    a.i("s_mul_i32 s24, s2, 4682"); a.i("s_lshr_b32 s24, s24, 16")
    a.i("s_mul_i32 s25, s24, 14"); a.i("s_sub_u32 s25, s2, s25"); a.i("s_lshl_b32 s25, s25, 5")
    a.i("v_add_u32 v9, s25, v0")
    a.i("v_add_f32 v10, 1.0, v8"); round_bf(a, 10, 10)
    a.i(f"s_mov_b32 s28, {hex(f2u(QSCALE))}")
    a.i("s_cmp_eq_u32 s24, 0"); a.i("s_cbranch_scc1 K0_S0")
    a.i("s_cmp_eq_u32 s24, 1"); a.i("s_cbranch_scc1 K0_S1")
    a.i("s_cmp_eq_u32 s24, 4")
    a.i("s_cbranch_scc0 K0_NB")
    a.i("v_mov_b32 v8, v10")
    a.label("K0_NB")
    a.i("v_lshrrev_b32 v8, 16, v8")
    a.i(f"s_mov_b32 s29, {WS_GA}")
    a.i("s_cmp_eq_u32 s24, 3"); a.i(f"s_cselect_b32 s29, {WS_SB}, s29")
    a.i("s_cmp_eq_u32 s24, 4"); a.i(f"s_cselect_b32 s29, {WS_A2}, s29")
    a.i("s_cmp_eq_u32 s24, 5"); a.i(f"s_cselect_b32 s29, {WS_GB}, s29")
    a.i("v_lshlrev_b32 v9, 1, v9")
    a.i("buffer_store_short v8, v9, s[20:23], s29 offen")
    a.i("s_branch K0_END")
    a.label("K0_S0")
    a.i("v_mul_f32 v8, s28, v8"); a.i("v_lshlrev_b32 v9, 2, v9")
    a.i(f"buffer_store_dword v8, v9, s[20:23], 0 offen offset:{WS_S1}")
    a.i("s_branch K0_END")
    a.label("K0_S1")
    a.i("v_mul_f32 v8, s28, v10"); a.i("v_lshlrev_b32 v9, 2, v9")
    a.i(f"buffer_store_dword v8, v9, s[20:23], 0 offen offset:{WS_A1}")
    a.label("K0_END")
    a.i("s_waitcnt vmcnt(0)")
    a.label("K0_DONE")
    a.i("s_endpgm")
    a.label("K0_WARM")
    a.i("s_load_dwordx2 s[4:5], s[0:1], 24")
    a.i("s_sub_u32 s3, s2, 148"); a.i("s_lshl_b32 s3, s3, 15"); a.i("v_lshlrev_b32 v1, 7, v0")
    a.i("s_waitcnt lgkmcnt(0)")
    srd(a, 8, 4, 448 * 8192)
    a.i("buffer_load_dword v2, v1, s[8:11], s3 offen")
    if codewarm & 2:
        a.i("s_cmp_ge_u32 s2, 151"); a.i("s_cbranch_scc1 K0_WE")
        a.i("s_getpc_b64 s[12:13]")
        a.label("K0_PC")
        a.i("s_mov_b32 s14, ALL_END - K0_PC"); a.i("s_mov_b32 s15, 0x20000")
        a.i("buffer_load_dword v3, v1, s[12:15], s3 offen")
        a.label("K0_WE")
    a.i("s_endpgm")
    a.label("K0_STAT")
    a.i("s_load_dwordx2 s[4:5], s[0:1], 0"); a.i("s_load_dwordx2 s[6:7], s[0:1], 112")
    a.i("v_lshrrev_b32 v1, 3, v0"); a.i("s_sub_u32 s3, s2, 84"); a.i("s_lshl_b32 s3, s3, 5"); a.i("v_add_u32 v1, s3, v1")
    a.i("v_and_b32 v2, 7, v0"); a.i("v_mul_u32_u24 v3, 896, v1"); a.i("v_lshl_add_u32 v3, v2, 4, v3")
    a.i("s_waitcnt lgkmcnt(0)")
    srd(a, 8, 4, 2048 * 896); srd(a, 12, 6, 0x2000000)
    for i in range(7): a.i(f"buffer_load_dwordx4 {vr(8 + 4 * i, 4)}, v3, s[8:11], 0 offen offset:{128 * i}")
    a.i("s_cmp_lg_u32 s2, 84"); a.i("s_cbranch_scc1 K0_NZ")
    a.i("v_lshlrev_b32 v4, 7, v0"); a.i("v_mov_b32 v5, 0"); a.i(f"s_mov_b32 s16, {WS_SYNC}")
    a.i("v_cmp_gt_u32 vcc, 64, v0"); a.i("s_and_saveexec_b64 s[18:19], vcc")
    a.i("buffer_store_dword v5, v4, s[12:15], s16 offen")
    a.i("s_mov_b64 exec, s[18:19]")
    a.label("K0_NZ")
    a.i("s_cmp_lg_u32 s2, 85"); a.i("s_cbranch_scc1 K0_NF")
    a.i("v_lshlrev_b32 v4, 4, v0")
    for j in range(4): a.i(f"v_mov_b32 {vr(92 + j)}, -1")
    for j in range(7):
        a.i(f"s_mov_b32 s16, {WS_GU + 4096 * j}")
        a.i("buffer_store_dwordx4 v[92:95], v4, s[12:15], s16 offen")
    a.label("K0_NF")
    a.i("s_waitcnt vmcnt(0)")
    X = 40
    for i in range(7):
        for j in range(4):
            bf_lo(a, X + 8 * i + 2 * j, 8 + 4 * i + j); bf_hi(a, X + 8 * i + 2 * j + 1, 8 + 4 * i + j)
    def red8(v):
        for ctl in ("quad_perm:[1,0,3,2]", "quad_perm:[2,3,0,1]", "row_half_mirror"):
            a.i("s_nop 1"); a.i(f"v_add_f32_dpp {vr(v)}, {vr(v)}, {vr(v)} {ctl} row_mask:0xf bank_mask:0xf")
    a.i(f"v_pk_add_f32 v[4:5], {vr(X, 2)}, {vr(X + 2, 2)}")
    for k in range(4, 56, 2): a.i(f"v_pk_add_f32 v[4:5], v[4:5], {vr(X + k, 2)}")
    a.i("v_add_f32 v4, v4, v5"); red8(4)
    a.i(f"v_mul_f32 v4, {hex(f2u(-1.0 / 448))}, v4")
    for k in range(0, 56, 2): a.i(f"v_pk_add_f32 {vr(X + k, 2)}, {vr(X + k, 2)}, v[4:5] op_sel_hi:[1,0]")
    a.i(f"v_pk_mul_f32 v[6:7], {vr(X, 2)}, {vr(X, 2)}")
    for k in range(2, 56, 2): a.i(f"v_pk_fma_f32 v[6:7], {vr(X + k, 2)}, {vr(X + k, 2)}, v[6:7]")
    a.i("v_add_f32 v6, v6, v7"); red8(6)
    a.i(f"v_mul_f32 v6, {hex(f2u(1.0 / 448))}, v6"); a.i(f"v_add_f32 v6, {hex(f2u(1e-5))}, v6")
    a.i("v_rsq_f32 v6, v6"); a.i("s_nop 0"); a.i("v_mul_f32 v7, v4, v6")
    a.i("v_lshlrev_b32 v1, 3, v1"); a.i(f"s_mov_b32 s16, {WS_STAT}")
    a.i("v_cmp_eq_u32 vcc, 0, v2"); a.i("s_and_saveexec_b64 s[18:19], vcc")
    a.i("buffer_store_dwordx2 v[6:7], v1, s[12:15], s16 offen")
    a.i("s_endpgm")
    return kdesc(n, vgpr=96, accum=96, sgpr=40)

def gen_k2(a):
    n = "red_kernel"
    kstart(a, n)
    a.i("s_cmp_ge_u32 s2, 256"); a.i("s_cbranch_scc1 K2_DONE")
    a.i("s_load_dwordx2 s[4:5], s[0:1], 0")
    a.i("s_load_dwordx2 s[6:7], s[0:1], 48")
    a.i("s_load_dwordx2 s[8:9], s[0:1], 96")
    a.i("s_load_dwordx2 s[10:11], s[0:1], 112")
    a.i("v_lshrrev_b32 v1, 6, v0"); a.i("s_nop 0"); a.i("v_readfirstlane_b32 s3, v1")
    a.i("v_and_b32 v0, 63, v0")
    a.i("s_lshl_b32 s28, s2, 3"); a.i("s_add_u32 s28, s28, s3")
    a.i("s_mul_i32 s29, s28, 896")
    a.i("v_lshlrev_b32 v1, 4, v0")
    a.i("v_cmp_gt_u32 vcc, 56, v0"); a.i("v_mov_b32 v2, 0x7fff0000"); a.i("s_nop 0")
    a.i("v_cndmask_b32 v1, v2, v1, vcc")
    a.i("s_waitcnt lgkmcnt(0)")
    srd(a, 12, 4, 2048 * 896); srd(a, 16, 6, 896); srd(a, 20, 8, 2048 * 896); srd(a, 24, 10, 0x2000000)
    for g in range(8):
        a.i(f"s_add_u32 s30, s29, {WS_PART + g * 2048 * 896}")
        a.i(f"buffer_load_dwordx4 {vr(16 + 4 * g, 4)}, v1, s[24:27], s30 offen")
    a.i(f"buffer_load_dwordx4 v[48:51], v1, s[12:15], s29 offen")
    for k, off in enumerate((WS_GA, WS_A2, WS_SB, WS_GB)):
        a.i(f"s_mov_b32 s30, {off}")
        a.i(f"buffer_load_dwordx4 {vr(52 + 4 * k, 4)}, v1, s[24:27], s30 offen")
    a.i(f"buffer_load_dwordx4 v[68:71], v1, s[16:19], 0 offen")
    for g in range(8):
        a.i(f"s_waitcnt vmcnt({13 - g})")
        for j in range(4):
            if g == 0:
                bf_lo(a, 72 + 2 * j, 16 + j); bf_hi(a, 73 + 2 * j, 16 + j)
            else:
                bf_lo(a, 4, 16 + 4 * g + j); bf_hi(a, 5, 16 + 4 * g + j)
                a.i(f"v_add_f32 {vr(72 + 2 * j)}, {vr(72 + 2 * j)}, v4")
                a.i(f"v_add_f32 {vr(73 + 2 * j)}, {vr(73 + 2 * j)}, v5")
    a.i("s_waitcnt vmcnt(0)")
    def unpack(dst, src):
        for j in range(4):
            bf_lo(a, dst + 2 * j, src + j); bf_hi(a, dst + 2 * j + 1, src + j)
    unpack(80, 48)
    unpack(88, 52)
    for j in range(8):
        round_bf(a, 72 + j, 72 + j)
        a.i(f"v_mul_f32 {vr(72 + j)}, {vr(88 + j)}, {vr(72 + j)}")
        round_bf(a, 72 + j, 72 + j)
        a.i(f"v_add_f32 {vr(80 + j)}, {vr(80 + j)}, {vr(72 + j)}")
        round_bf(a, 80 + j, 80 + j)
    for j in range(4):
        a.i(f"v_cvt_pk_bf16_f32 {vr(16 + j)}, {vr(80 + 2 * j)}, {vr(81 + 2 * j)}")
    a.i(f"s_add_u32 s30, s29, {WS_X1}")
    a.i("buffer_store_dwordx4 v[16:19], v1, s[24:27], s30 offen")
    a.i("v_add_f32 v4, v80, v81")
    for j in range(2, 8): a.i(f"v_add_f32 v4, v4, {vr(80 + j)}")
    wave_sum(a, 4, 5)
    a.i(f"v_mul_f32 v4, {hex(f2u(1.0 / 448))}, v4")
    for j in range(8): a.i(f"v_sub_f32 {vr(96 + j)}, {vr(80 + j)}, v4")
    a.i("v_mul_f32 v6, v96, v96")
    for j in range(1, 8): a.i(f"v_fmac_f32 v6, {vr(96 + j)}, {vr(96 + j)}")
    a.i("v_cmp_gt_u32 vcc, 56, v0"); a.i("s_nop 1")
    a.i("v_cndmask_b32 v6, 0, v6, vcc")
    wave_sum(a, 6, 5)
    a.i(f"v_mul_f32 v6, {hex(f2u(1.0 / 448))}, v6")
    a.i(f"v_add_f32 v6, {hex(f2u(1e-5))}, v6")
    a.i("v_rsq_f32 v6, v6"); a.i("s_nop 0")
    unpack(88, 56)
    unpack(104, 60)
    for j in range(8):
        a.i(f"v_mul_f32 {vr(96 + j)}, {vr(96 + j)}, v6")
        a.i(f"v_fma_f32 {vr(96 + j)}, {vr(96 + j)}, {vr(88 + j)}, {vr(104 + j)}")
        round_bf(a, 96 + j, 96 + j)
    for j in range(4):
        a.i(f"v_cvt_pk_bf16_f32 {vr(20 + j)}, {vr(96 + 2 * j)}, {vr(97 + 2 * j)}")
    a.i(f"s_add_u32 s30, s29, {WS_H2}")
    a.i("buffer_store_dwordx4 v[20:23], v1, s[24:27], s30 offen")
    unpack(88, 68)
    a.i("v_mul_f32 v7, v96, v88")
    for j in range(1, 8): a.i(f"v_fmac_f32 v7, {vr(96 + j)}, {vr(88 + j)}")
    wave_sum(a, 7, 5)
    round_bf(a, 7, 7)
    unpack(88, 64)
    for j in range(8):
        a.i(f"v_mul_f32 {vr(88 + j)}, {vr(88 + j)}, {vr(96 + j)}")
        round_bf(a, 88 + j, 88 + j)
        a.i(f"v_add_f32 {vr(88 + j)}, {vr(88 + j)}, {vr(80 + j)}")
    for j in range(4):
        a.i(f"v_cvt_pk_bf16_f32 {vr(24 + j)}, {vr(88 + 2 * j)}, {vr(89 + 2 * j)}")
    a.i("buffer_store_dwordx4 v[24:27], v1, s[20:23], s29 offen")
    a.i("v_cmp_eq_u32 vcc, 0, v0"); a.i("s_and_saveexec_b64 s[32:33], vcc")
    a.i("s_lshl_b32 s30, s28, 2"); a.i(f"s_add_u32 s30, s30, {WS_R}")
    a.i("v_mov_b32 v8, 0")
    a.i("buffer_store_dword v7, v8, s[24:27], s30 offen")
    a.i("s_mov_b64 exec, s[32:33]")
    a.i("s_waitcnt vmcnt(0)")
    a.label("K2_DONE")
    a.i("s_endpgm")
    return kdesc(n, vgpr=128, accum=128, sgpr=48)

def wave_max_u32(a, v, t):
    for ctl in ("quad_perm:[1,0,3,2]", "quad_perm:[2,3,0,1]", "row_half_mirror", "row_mirror"):
        a.i("s_nop 1")
        a.i(f"v_max_u32_dpp {vr(v)}, {vr(v)}, {vr(v)} {ctl} row_mask:0xf bank_mask:0xf")
    for sw in ("v_permlane16_swap_b32", "v_permlane32_swap_b32"):
        a.i(f"v_mov_b32 {vr(t)}, {vr(v)}")
        a.i("s_nop 1")
        a.i(f"{sw} {vr(v)}, {vr(t)}")
        a.i("s_nop 1")
        a.i(f"v_max_u32 {vr(v)}, {vr(v)}, {vr(t)}")

def gen_k3(a):
    n = "gate_kernel"
    NWG = 112
    L_CAND = 28672; L_SEL = 28672 + 128
    kstart(a, n)
    a.i(f"s_cmp_ge_u32 s2, {NWG}"); a.i("s_cbranch_scc1 K3_DONE")
    a.i("s_load_dwordx4 s[4:7], s[0:1], 56")
    a.i("s_load_dwordx2 s[8:9], s[0:1], 112")
    a.i("v_lshrrev_b32 v1, 6, v0"); a.i("s_nop 0"); a.i("v_readfirstlane_b32 s3, v1")
    a.i("v_and_b32 v2, 63, v0")
    a.i("s_waitcnt lgkmcnt(0)")
    srd(a, 20, 8, 0x2000000)
    a.i("v_lshlrev_b32 v3, 5, v0")
    a.i(f"s_mov_b32 s24, {WS_R}")
    a.i("buffer_load_dwordx4 v[16:19], v3, s[20:23], s24 offen")
    a.i("buffer_load_dwordx4 v[20:23], v3, s[20:23], s24 offen offset:16")
    a.i("s_cmp_ge_u32 s3, 2")
    a.i("s_cselect_b32 s12, s6, s4"); a.i("s_cselect_b32 s13, s7, s5")
    a.i(f"s_mov_b32 s14, {448 * 3584}"); a.i("s_mov_b32 s15, 0x20000")
    a.i("v_lshrrev_b32 v4, 1, v2"); a.i("v_mul_u32_u24 v4, 3584, v4")
    a.i("v_and_b32 v5, 1, v2"); a.i("v_lshl_add_u32 v4, v5, 4, v4")
    a.i("s_lshl_b32 s25, s2, 5"); a.i("v_add_u32 v4, s25, v4")
    a.i("s_and_b32 s26, s3, 1"); a.i("s_mul_i32 s27, s26, 7")
    a.i("s_mul_i32 s28, s3, 7168")
    a.i(f"s_mul_i32 s27, s27, {32 * 3584}")
    for i in range(7):
        a.i(f"s_add_u32 m0, s28, {1024 * i}")
        a.i(f"s_add_u32 s29, s27, {32 * 3584 * i}")
        a.i("buffer_load_dwordx4 v4, s[12:15], s29 offen lds")
    a.i("s_waitcnt vmcnt(7)")
    a.i("v_lshlrev_b32 v6, 3, v0"); a.i("v_sub_u32 v6, 2047, v6")
    for j in range(8):
        k = 16 + j
        a.i(f"v_ashrrev_i32 v7, 31, {vr(k)}")
        a.i("v_or_b32 v7, 0x80000000, v7")
        a.i(f"v_xor_b32 {vr(k)}, {vr(k)}, v7")
        a.i(f"v_and_b32 {vr(k)}, 0xffff0000, {vr(k)}")
        a.i(f"v_subrev_u32 v7, {j}, v6")
        a.i(f"v_or_b32 {vr(k)}, {vr(k)}, v7")
    a.i("v_mov_b32 v9, 0")
    for rnd in range(8):
        a.i("v_max3_u32 v8, v16, v17, v18"); a.i("v_max3_u32 v8, v8, v19, v20")
        a.i("v_max3_u32 v8, v8, v21, v22"); a.i("v_max_u32 v8, v8, v23")
        wave_max_u32(a, 8, 7)
        a.i(f"v_cmp_eq_u32 s[30:31], {rnd}, v2")
        if rnd < 7:
            for j in range(0, 8, 2):
                a.i(f"v_cmp_eq_u32 s[32:33], {vr(16 + j)}, v8")
                a.i(f"v_cmp_eq_u32 s[34:35], {vr(17 + j)}, v8")
                a.i("s_nop 0")
                a.i(f"v_cndmask_b32 {vr(16 + j)}, {vr(16 + j)}, 0, s[32:33]")
                a.i(f"v_cndmask_b32 {vr(17 + j)}, {vr(17 + j)}, 0, s[34:35]")
        else:
            a.i("s_nop 1")
        a.i("v_cndmask_b32 v9, v9, v8, s[30:31]")
    a.i("s_lshl_b32 s29, s3, 5"); a.i("v_lshl_add_u32 v7, v2, 2, s29"); a.i(f"v_add_u32 v7, {L_CAND}, v7")
    a.i("v_cmp_gt_u32 vcc, 8, v2"); a.i("s_and_saveexec_b64 s[36:37], vcc")
    a.i("ds_write_b32 v7, v9")
    a.i("s_mov_b64 exec, s[36:37]")
    a.i("s_waitcnt lgkmcnt(0) vmcnt(0)"); a.i("s_barrier")
    a.i("s_cmp_lg_u32 s3, 0"); a.i("s_cbranch_scc1 K3_DONE")
    a.i("v_and_b32 v7, 31, v2"); a.i("v_lshlrev_b32 v7, 2, v7"); a.i(f"v_add_u32 v7, {L_CAND}, v7")
    a.i("ds_read_b32 v9, v7")
    a.i(f"v_mov_b32 v10, {L_CAND}")
    for j in range(8): a.i(f"ds_read_b128 {vr(16 + 4 * j, 4)}, v10 offset:{16 * j}")
    a.i("s_waitcnt lgkmcnt(0)")
    a.i("v_mov_b32 v11, 0")
    for j in range(0, 32, 2):
        a.i(f"v_cmp_gt_u32 s[32:33], {vr(16 + j)}, v9")
        a.i(f"v_cmp_gt_u32 s[34:35], {vr(17 + j)}, v9")
        a.i("s_nop 0")
        a.i("v_addc_co_u32 v11, vcc, 0, v11, s[32:33]")
        a.i("v_addc_co_u32 v11, vcc, 0, v11, s[34:35]")
    a.i("v_cmp_gt_u32 s[32:33], 8, v11"); a.i("v_cmp_gt_u32 s[34:35], 32, v2")
    a.i("s_and_b64 s[32:33], s[32:33], s[34:35]")
    a.i("v_lshlrev_b32 v11, 2, v11"); a.i(f"v_add_u32 v11, {L_SEL}, v11")
    a.i("s_and_saveexec_b64 s[36:37], s[32:33]")
    a.i("ds_write_b32 v11, v9")
    a.i("s_mov_b64 exec, s[36:37]")
    a.i("s_waitcnt lgkmcnt(0)")
    a.i("v_and_b32 v7, 7, v2"); a.i("v_lshlrev_b32 v7, 2, v7"); a.i(f"v_add_u32 v7, {L_SEL}, v7")
    a.i("ds_read_b32 v9, v7")
    a.i("s_waitcnt lgkmcnt(0)")
    a.i("v_and_b32 v10, 0xffff, v9"); a.i("v_sub_u32 v10, 2047, v10")
    a.i("v_mul_u32_u24 v11, 896, v10"); a.i("v_lshrrev_b32 v12, 4, v2"); a.i("v_lshl_add_u32 v11, v12, 4, v11")
    a.i(f"s_mov_b32 s24, {WS_H2}")
    for ks in range(14):
        a.i(f"buffer_load_dwordx4 {vr(16 + 4 * ks, 4)}, v11, s[20:23], s24 offen offset:{64 * ks}")
    a.i("s_cmp_lg_u32 s2, 0"); a.i("s_cbranch_scc1 K3_NOPUB")
    a.i("v_lshrrev_b32 v13, 16, v9")
    a.i("v_and_b32 v14, 0x8000, v13"); a.i("v_cmp_ne_u32 vcc, 0, v14")
    a.i("v_xor_b32 v14, 0x8000, v13"); a.i("v_xor_b32 v15, 0xffff, v13")
    a.i("v_cndmask_b32 v13, v15, v14, vcc"); a.i("v_lshlrev_b32 v13, 16, v13")
    a.i("v_lshlrev_b32 v14, 2, v2")
    a.i("v_cmp_gt_u32 vcc, 8, v2"); a.i("s_and_saveexec_b64 s[36:37], vcc")
    a.i(f"s_mov_b32 s24, {WS_IDX}")
    a.i("buffer_store_dword v10, v14, s[20:23], s24 offen")
    a.i("buffer_store_dword v13, v14, s[20:23], s24 offen offset:64")
    a.i("s_mov_b64 exec, s[36:37]")
    a.label("K3_NOPUB")
    a.i("v_bfe_u32 v13, v2, 2, 2"); a.i("v_lshl_add_u32 v13, v12, 3, v13"); a.i("v_lshlrev_b32 v13, 5, v13")
    a.i("v_and_b32 v14, 3, v2"); a.i("v_lshl_add_u32 v13, v14, 3, v13")
    for m in range(2):
        for ks in range(14):
            for r2 in range(2):
                a.i(f"ds_read_b64_tr_b16 {vr(80 + 56 * m + 4 * ks + 2 * r2, 2)}, v13 offset:{14336 * m + 1024 * ks + 128 * r2}")
            if ks % 7 == 6: a.i("s_waitcnt lgkmcnt(0)")
    a.i("s_waitcnt vmcnt(0)")
    for ks in range(14):
        for m in range(2):
            acc = vr(72 + 4 * m, 4)
            a.i(f"v_mfma_f32_16x16x32_bf16 {acc}, {vr(80 + 56 * m + 4 * ks, 4)}, {vr(16 + 4 * ks, 4)}, {'0' if ks == 0 else acc}")
    a.i("s_nop 15")
    for r in range(4):
        round_bf(a, 72 + r, 72 + r); round_bf(a, 76 + r, 76 + r)
        sigmoid(a, 5, 72 + r, 6)
        a.i(f"v_mul_f32 {vr(72 + r)}, {vr(72 + r)}, v5"); round_bf(a, 72 + r, 72 + r)
        a.i(f"v_mul_f32 {vr(72 + r)}, {vr(72 + r)}, {vr(76 + r)}")
    a.i("v_cvt_pk_bf16_f32 v76, v72, v73"); a.i("v_cvt_pk_bf16_f32 v77, v74, v75")
    a.i("v_and_b32 v5, 15, v2"); a.i("v_mul_u32_u24 v6, 3584, v5"); a.i("v_lshl_add_u32 v6, v12, 3, v6")
    a.i(f"s_lshl_b32 s24, s2, 5"); a.i(f"s_add_u32 s24, s24, {WS_GU}")
    a.i("v_cmp_gt_u32 vcc, 8, v5"); a.i("s_and_saveexec_b64 s[36:37], vcc")
    a.i("buffer_store_dwordx2 v[76:77], v6, s[20:23], s24 offen")
    a.i("s_mov_b64 exec, s[36:37]")
    a.i("s_waitcnt vmcnt(0)")
    a.label("K3_DONE")
    a.i("s_endpgm")
    return kdesc(n, vgpr=200, accum=200, sgpr=48), NWG, 28672 + 256

def gen_k4(a):
    n = "down_kernel"
    NWG = 28
    L_RED = 57344
    kstart(a, n)
    a.i(f"s_cmp_ge_u32 s2, {NWG}"); a.i("s_cbranch_scc1 K4_DONE")
    a.i("s_load_dwordx2 s[4:5], s[0:1], 72")
    a.i("s_load_dwordx2 s[6:7], s[0:1], 96")
    a.i("s_load_dwordx2 s[8:9], s[0:1], 112")
    a.i("v_lshrrev_b32 v1, 6, v0"); a.i("s_nop 0"); a.i("v_readfirstlane_b32 s3, v1")
    a.i("v_and_b32 v2, 63, v0")
    a.i("s_waitcnt lgkmcnt(0)")
    srd(a, 12, 4, 1792 * 896); srd(a, 16, 6, 2048 * 896); srd(a, 20, 8, 0x2000000)
    a.i("v_lshrrev_b32 v4, 1, v2"); a.i("v_mul_u32_u24 v4, 896, v4")
    a.i("v_and_b32 v5, 1, v2"); a.i("v_lshl_add_u32 v4, v5, 4, v4")
    a.i("s_lshl_b32 s25, s2, 5"); a.i("v_add_u32 v4, s25, v4")
    a.i(f"s_mul_i32 s27, s3, {448 * 896}"); a.i("s_mul_i32 s28, s3, 14336")
    for i in range(14):
        a.i(f"s_add_u32 m0, s28, {1024 * i}")
        a.i(f"s_add_u32 s29, s27, {32 * 896 * i}")
        a.i("buffer_load_dwordx4 v4, s[12:15], s29 offen lds")
    a.i("v_and_b32 v5, 7, v2"); a.i("v_mul_u32_u24 v6, 3584, v5"); a.i("v_lshrrev_b32 v12, 4, v2"); a.i("v_lshl_add_u32 v6, v12, 4, v6")
    a.i(f"s_mul_i32 s24, s3, 896"); a.i(f"s_add_u32 s24, s24, {WS_GU}")
    for ks in range(14):
        a.i(f"buffer_load_dwordx4 {vr(16 + 4 * ks, 4)}, v6, s[20:23], s24 offen offset:{64 * ks}")
    a.i("v_lshlrev_b32 v7, 2, v5"); a.i(f"s_mov_b32 s24, {WS_IDX}")
    a.i("buffer_load_dword v8, v7, s[20:23], s24 offen")
    a.i("buffer_load_dword v9, v7, s[20:23], s24 offen offset:64")
    a.i("v_bfe_u32 v13, v2, 2, 2"); a.i("v_lshl_add_u32 v13, v12, 3, v13"); a.i("v_lshlrev_b32 v13, 5, v13")
    a.i("v_and_b32 v14, 3, v2"); a.i("v_lshl_add_u32 v13, v14, 3, v13"); a.i("v_add_u32 v13, s28, v13")
    a.i("s_waitcnt vmcnt(0)")
    a.i("v_mul_u32_u24 v10, 896, v8"); a.i("v_lshl_add_u32 v10, v12, 3, v10"); a.i("v_add_u32 v10, s25, v10")
    a.i(f"s_mov_b32 s24, {WS_X1}"); a.i("buffer_load_dwordx2 v[76:77], v10, s[20:23], s24 offen")
    a.i(f"s_mov_b32 s24, {WS_H2}"); a.i("buffer_load_dwordx2 v[78:79], v10, s[20:23], s24 offen")
    a.i("v_lshlrev_b32 v11, 3, v12"); a.i("v_add_u32 v11, s25, v11")
    a.i(f"s_mov_b32 s24, {WS_GB}"); a.i("buffer_load_dwordx2 v[14:15], v11, s[20:23], s24 offen")
    for ks in range(14):
        for r2 in range(2):
            a.i(f"ds_read_b64_tr_b16 {vr(80 + 4 * ks + 2 * r2, 2)}, v13 offset:{1024 * ks + 128 * r2}")
        if ks % 7 == 6: a.i("s_waitcnt lgkmcnt(0)")
    for ks in range(14):
        a.i(f"v_mfma_f32_16x16x32_bf16 v[72:75], {vr(80 + 4 * ks, 4)}, {vr(16 + 4 * ks, 4)}, {'0' if ks == 0 else 'v[72:75]'}")
    a.i("s_nop 15")
    a.i("v_lshlrev_b32 v3, 4, v2"); a.i("s_lshl_b32 s24, s3, 10"); a.i(f"s_add_u32 s24, s24, {L_RED}"); a.i("v_add_u32 v3, s24, v3")
    a.i("ds_write_b128 v3, v[72:75]")
    a.i("s_waitcnt lgkmcnt(0)"); a.i("s_barrier")
    a.i("s_cmp_lg_u32 s3, 0"); a.i("s_cbranch_scc1 K4_DONE")
    for w in range(1, 4): a.i(f"ds_read_b128 {vr(16 + 4 * w, 4)}, v3 offset:{1024 * w}")
    a.i("s_waitcnt lgkmcnt(0) vmcnt(0)")
    sigmoid(a, 5, 9, 6); round_bf(a, 5, 5)
    for r in range(4):
        for w in range(1, 4): a.i(f"v_add_f32 {vr(72 + r)}, {vr(72 + r)}, {vr(16 + 4 * w + r)}")
        round_bf(a, 72 + r, 72 + r)
        a.i(f"v_mul_f32 {vr(72 + r)}, {vr(72 + r)}, v5"); round_bf(a, 72 + r, 72 + r)
    for half in range(2):
        bf_lo(a, 16 + 2 * half, 78 + half); bf_hi(a, 17 + 2 * half, 78 + half)
        bf_lo(a, 20 + 2 * half, 76 + half); bf_hi(a, 21 + 2 * half, 76 + half)
        bf_lo(a, 24 + 2 * half, 14 + half); bf_hi(a, 25 + 2 * half, 14 + half)
    for r in range(4):
        a.i(f"v_add_f32 {vr(72 + r)}, {vr(72 + r)}, {vr(16 + r)}"); round_bf(a, 72 + r, 72 + r)
        a.i(f"v_mul_f32 {vr(72 + r)}, {vr(72 + r)}, {vr(24 + r)}"); round_bf(a, 72 + r, 72 + r)
        a.i(f"v_add_f32 {vr(72 + r)}, {vr(72 + r)}, {vr(20 + r)}")
    a.i("v_cvt_pk_bf16_f32 v76, v72, v73"); a.i("v_cvt_pk_bf16_f32 v77, v74, v75")
    a.i("v_and_b32 v5, 15, v2")
    a.i("v_cmp_gt_u32 vcc, 8, v5"); a.i("s_and_saveexec_b64 s[36:37], vcc")
    a.i("buffer_store_dwordx2 v[76:77], v10, s[16:19], 0 offen")
    a.i("s_mov_b64 exec, s[36:37]")
    a.i("s_waitcnt vmcnt(0)")
    a.label("K4_DONE")
    a.i("s_endpgm")
    return kdesc(n, vgpr=144, accum=144, sgpr=48), NWG, L_RED + 4096

MST = []
def mstamp(a, on, name):
    if not on: return
    k = len(MST); MST.append(name)
    a.i(f"s_memrealtime s[{60 + 2 * k}:{61 + 2 * k}]")
def mstamps_out(a, on, which=0):
    if not on: return
    a.i("s_mov_b64 exec, -1")
    a.i("s_waitcnt lgkmcnt(0)")
    a.i("s_mov_b32 s52, s8"); a.i("s_mov_b32 s53, s9"); a.i("s_mov_b32 s54, 0x10000000"); a.i("s_mov_b32 s55, 0x20000")
    a.i("s_lshl_b32 s56, s2, 7"); a.i("s_add_u32 s56, s56, 0x6100000")
    a.i("v_mov_b32 v15, 0")
    for k in range(len(MST)):
        a.i(f"v_mov_b32 v14, s{60 + 2 * k}")
        a.i(f"buffer_store_dword v14, v15, s[52:55], s56 offen offset:{4 * k}")
        a.i("s_nop 1")

def gen_moe(a, st=False):
    n = "moe_kernel"
    NG = 112; NDOWN = 28; NWG = NG + NDOWN
    L_CAND = 57344; L_SEL = L_CAND + 128; L_RED = L_CAND + 256
    NSH = 8
    kstart(a, n)
    a.i(f"s_cmp_ge_u32 s2, {NWG}"); a.i("s_cbranch_scc1 KM_DONE")
    mstamp(a, st, 'start')
    a.i("s_load_dwordx4 s[4:7], s[0:1], 56")
    a.i("s_load_dwordx2 s[40:41], s[0:1], 72")
    a.i("s_load_dwordx2 s[42:43], s[0:1], 96")
    a.i("s_load_dwordx2 s[8:9], s[0:1], 112")
    a.i("v_lshrrev_b32 v1, 6, v0"); a.i("s_nop 0"); a.i("v_readfirstlane_b32 s3, v1")
    a.i("v_and_b32 v2, 63, v0")
    a.i("v_mov_b32 v201, 0x7fffffff")
    a.i("v_lshlrev_b32 v3, 5, v0")
    a.i("s_waitcnt lgkmcnt(0)")
    srd(a, 20, 8, 0x2000000)
    a.i(f"s_mov_b32 s24, {WS_R}")
    a.i("buffer_load_dwordx4 v[16:19], v3, s[20:23], s24 offen")
    a.i("buffer_load_dwordx4 v[20:23], v3, s[20:23], s24 offen offset:16")
    a.i("v_lshrrev_b32 v4, 1, v2"); a.i("v_and_b32 v6, 1, v2")
    a.i(f"s_cmp_ge_u32 s2, {NG}"); a.i("s_cbranch_scc1 KM_SD")
    a.i("s_cmp_ge_u32 s3, 2")
    a.i("s_cselect_b32 s12, s6, s4"); a.i("s_cselect_b32 s13, s7, s5")
    a.i(f"s_mov_b32 s14, {448 * 3584}"); a.i("s_mov_b32 s15, 0x20000")
    a.i("v_mul_u32_u24 v5, 3584, v4"); a.i("v_lshl_add_u32 v5, v6, 4, v5")
    a.i("s_lshl_b32 s25, s2, 5"); a.i("v_add_u32 v5, s25, v5")
    a.i("s_and_b32 s26, s3, 1"); a.i(f"s_mul_i32 s27, s26, {7 * 32 * 3584}")
    a.i("s_mul_i32 s28, s3, 7168"); a.i(f"s_mov_b32 s39, {32 * 3584}")
    a.i("s_branch KM_SJ")
    a.label("KM_SD")
    srd(a, 12, 40, 1792 * 896)
    a.i(f"s_sub_u32 s25, s2, {NG}"); a.i("s_lshl_b32 s25, s25, 5")
    a.i("v_mul_u32_u24 v5, 896, v4"); a.i("v_lshl_add_u32 v5, v6, 4, v5"); a.i("v_add_u32 v5, s25, v5")
    a.i(f"s_mul_i32 s27, s3, {448 * 896}"); a.i("s_mul_i32 s28, s3, 14336"); a.i(f"s_mov_b32 s39, {32 * 896}")
    a.label("KM_SJ")
    def wdma(i):
        a.i(f"s_add_u32 m0, s28, {1024 * i}")
        a.i("s_nop 0")
        a.i("buffer_load_dwordx4 v5, s[12:15], s27 offen lds")
        a.i("s_add_u32 s27, s27, s39")
    for i in range(7): wdma(i)
    a.i(f"s_cmp_lt_u32 s2, {NG}"); a.i("s_cbranch_scc1 KM_ND")
    a.i("s_waitcnt vmcnt(7)")
    for i in range(7, 14): wdma(i)
    a.i("s_branch KM_RA")
    a.label("KM_ND")
    a.i("s_waitcnt vmcnt(7)")
    a.label("KM_RA")
    mstamp(a, st, 'rarr')
    a.i("v_lshlrev_b32 v6, 3, v0"); a.i("v_sub_u32 v6, 2047, v6")
    for j in range(8):
        k = 16 + j
        a.i(f"v_ashrrev_i32 v7, 31, {vr(k)}")
        a.i("v_or_b32 v7, 0x80000000, v7")
        a.i(f"v_xor_b32 {vr(k)}, {vr(k)}, v7")
        a.i(f"v_and_b32 {vr(k)}, 0xffff0000, {vr(k)}")
        a.i(f"v_subrev_u32 v7, {j}, v6")
        a.i(f"v_or_b32 {vr(k)}, {vr(k)}, v7")
    net = [(0,1),(2,3),(4,5),(6,7),(0,2),(1,3),(4,6),(5,7),(1,2),(5,6),(0,4),(3,7),(1,5),(2,6),(1,4),(3,6),(2,4),(3,5),(3,4)]
    for x, y in net:
        a.i(f"v_max_u32 v7, {vr(16 + x)}, {vr(16 + y)}")
        a.i(f"v_min_u32 {vr(16 + y)}, {vr(16 + x)}, {vr(16 + y)}")
        a.i(f"v_mov_b32 {vr(16 + x)}, v7")
    a.i("v_mov_b32 v9, 0")
    for rnd in range(8):
        a.i("v_mov_b32 v8, v16")
        wave_max_u32(a, 8, 7)
        a.i(f"v_cmp_eq_u32 s[30:31], {rnd}, v2")
        if rnd < 7:
            a.i("v_cmp_eq_u32 vcc, v16, v8")
            a.i("s_nop 1")
            for j in range(7 - rnd):
                a.i(f"v_cndmask_b32 {vr(16 + j)}, {vr(16 + j)}, {vr(17 + j)}, vcc")
        else:
            a.i("s_nop 1")
        a.i("v_cndmask_b32 v9, v9, v8, s[30:31]")
    mstamp(a, st, 'rounds')
    a.i("s_lshl_b32 s29, s3, 5"); a.i("v_lshl_add_u32 v7, v2, 2, s29"); a.i(f"v_add_u32 v7, {L_CAND}, v7")
    a.i("v_cmp_gt_u32 vcc, 8, v2"); a.i("s_and_saveexec_b64 s[36:37], vcc")
    a.i("ds_write_b32 v7, v9")
    a.i("s_mov_b64 exec, s[36:37]")
    a.i("s_waitcnt lgkmcnt(0)")
    a.i("s_barrier")
    mstamp(a, st, 'bar1')
    a.i("s_cmp_lg_u32 s3, 0"); a.i("s_cbranch_scc1 KM_OTH")
    a.i("v_and_b32 v7, 31, v2"); a.i("v_lshlrev_b32 v7, 2, v7"); a.i(f"v_add_u32 v7, {L_CAND}, v7")
    a.i("ds_read_b32 v9, v7")
    a.i(f"v_mov_b32 v10, {L_CAND}")
    for j in range(8): a.i(f"ds_read_b128 {vr(16 + 4 * j, 4)}, v10 offset:{16 * j}")
    a.i("s_waitcnt lgkmcnt(0)")
    a.i("v_mov_b32 v11, 0")
    for j in range(0, 32, 2):
        a.i(f"v_cmp_gt_u32 s[32:33], {vr(16 + j)}, v9")
        a.i(f"v_cmp_gt_u32 s[34:35], {vr(17 + j)}, v9")
        a.i("s_nop 0")
        a.i("v_addc_co_u32 v11, vcc, 0, v11, s[32:33]")
        a.i("v_addc_co_u32 v11, vcc, 0, v11, s[34:35]")
    a.i("v_cmp_gt_u32 s[32:33], 8, v11"); a.i("v_cmp_gt_u32 s[34:35], 32, v2")
    a.i("s_and_b64 s[32:33], s[32:33], s[34:35]")
    a.i("v_lshlrev_b32 v11, 2, v11"); a.i(f"v_add_u32 v11, {L_SEL}, v11")
    a.i("s_and_saveexec_b64 s[36:37], s[32:33]")
    a.i("ds_write_b32 v11, v9")
    a.i("s_mov_b64 exec, s[36:37]")
    a.i("s_waitcnt lgkmcnt(0)")
    a.i("v_and_b32 v7, 7, v2"); a.i("v_lshlrev_b32 v7, 2, v7"); a.i(f"v_add_u32 v7, {L_SEL}, v7")
    a.i("ds_read_b32 v9, v7")
    a.i("s_waitcnt lgkmcnt(0)")
    mstamp(a, st, 'idx')
    a.i("v_and_b32 v10, 0xffff, v9"); a.i("v_sub_u32 v10, 2047, v10")
    a.i("v_mul_u32_u24 v11, 896, v10"); a.i("v_lshrrev_b32 v12, 4, v2")
    a.i(f"s_cmp_ge_u32 s2, {NG}"); a.i("s_cbranch_scc1 KM_DN0")
    a.i("v_lshl_add_u32 v200, v12, 4, v11")
    a.i(f"s_mov_b32 s24, {WS_H2}")
    for ks in range(14):
        a.i(f"buffer_load_dwordx4 {vr(16 + 4 * ks, 4)}, v200, s[20:23], s24 offen offset:{64 * ks}")
    a.i("s_waitcnt vmcnt(14)")
    a.i("s_barrier")
    a.i("v_bfe_u32 v13, v2, 2, 2"); a.i("v_lshl_add_u32 v13, v12, 3, v13"); a.i("v_lshlrev_b32 v13, 5, v13")
    a.i("v_and_b32 v14, 3, v2"); a.i("v_lshl_add_u32 v13, v14, 3, v13")
    for m in range(2):
        for ks in range(14):
            for r2 in range(2):
                a.i(f"ds_read_b64_tr_b16 {vr(80 + 56 * m + 4 * ks + 2 * r2, 2)}, v13 offset:{14336 * m + 1024 * ks + 128 * r2}")
            if ks % 7 == 6: a.i("s_waitcnt lgkmcnt(0)")
    a.i("s_waitcnt vmcnt(0)")
    mstamp(a, st, 'gath')
    for ks in range(14):
        for m in range(2):
            acc = vr(72 + 4 * m, 4)
            a.i(f"v_mfma_f32_16x16x32_bf16 {acc}, {vr(80 + 56 * m + 4 * ks, 4)}, {vr(16 + 4 * ks, 4)}, {'0' if ks == 0 else acc}")
    a.i("s_nop 7")
    for r in range(4):
        round_bf(a, 72 + r, 72 + r); round_bf(a, 76 + r, 76 + r)
        sigmoid(a, 5, 72 + r, 6)
        a.i(f"v_mul_f32 {vr(72 + r)}, {vr(72 + r)}, v5"); round_bf(a, 72 + r, 72 + r)
        a.i(f"v_mul_f32 {vr(72 + r)}, {vr(72 + r)}, {vr(76 + r)}")
    a.i("v_cvt_pk_bf16_f32 v76, v72, v73"); a.i("v_cvt_pk_bf16_f32 v77, v74, v75")
    a.i("v_and_b32 v5, 15, v2"); a.i("v_lshlrev_b32 v6, 4, v5")
    a.i("v_lshrrev_b32 v7, 1, v12"); a.i("v_lshl_add_u32 v6, v7, 7, v6"); a.i("v_and_b32 v7, 1, v12"); a.i("v_lshl_add_u32 v6, v7, 3, v6")
    a.i("s_lshr_b32 s24, s2, 1"); a.i("s_lshl_b32 s24, s24, 9"); a.i("s_and_b32 s26, s2, 1"); a.i("s_lshl_b32 s26, s26, 8")
    a.i("s_add_u32 s24, s24, s26"); a.i(f"s_add_u32 s24, s24, {WS_GU}")
    a.i("v_cmp_gt_u32 vcc, 8, v5"); a.i("s_and_saveexec_b64 s[36:37], vcc")
    a.i("buffer_store_dwordx2 v[76:77], v6, s[20:23], s24 offen sc1")
    a.i("s_mov_b64 exec, s[36:37]")
    mstamp(a, st, 'gust')
    mstamps_out(a, st, 0)
    a.i("s_endpgm")
    a.label("KM_OTH")
    a.i(f"s_cmp_ge_u32 s2, {NG}"); a.i("s_cbranch_scc1 KM_PH2")
    a.i("s_waitcnt vmcnt(0)"); a.i("s_barrier")
    a.i("s_endpgm")
    a.label("KM_DN0")
    a.i("v_lshl_add_u32 v201, v12, 3, v11"); a.i("v_add_u32 v201, s25, v201")
    a.i(f"s_mov_b32 s24, {WS_X1}"); a.i("buffer_load_dwordx2 v[202:203], v201, s[20:23], s24 offen")
    a.i(f"s_mov_b32 s24, {WS_H2}"); a.i("buffer_load_dwordx2 v[204:205], v201, s[20:23], s24 offen")
    a.i("v_lshlrev_b32 v13, 3, v12"); a.i("v_add_u32 v13, s25, v13")
    a.i(f"s_mov_b32 s24, {WS_GB}"); a.i("buffer_load_dwordx2 v[206:207], v13, s[20:23], s24 offen")
    a.i("v_lshrrev_b32 v13, 16, v9")
    a.i("v_and_b32 v14, 0x8000, v13"); a.i("v_cmp_ne_u32 vcc, 0, v14")
    a.i("v_xor_b32 v14, 0x8000, v13"); a.i("v_xor_b32 v15, 0xffff, v13")
    a.i("v_cndmask_b32 v13, v15, v14, vcc"); a.i("v_lshlrev_b32 v208, 16, v13")
    a.label("KM_PH2")
    mstamp(a, st, 'polled')
    a.i("s_waitcnt vmcnt(0)")
    a.i("v_lshrrev_b32 v12, 4, v2")
    a.i("v_bfe_u32 v13, v2, 2, 2"); a.i("v_lshl_add_u32 v13, v12, 3, v13"); a.i("v_lshlrev_b32 v13, 5, v13")
    a.i("v_and_b32 v14, 3, v2"); a.i("v_lshl_add_u32 v13, v14, 3, v13"); a.i("v_add_u32 v13, s28, v13")
    for ks in range(14):
        for r2 in range(2):
            a.i(f"ds_read_b64_tr_b16 {vr(80 + 4 * ks + 2 * r2, 2)}, v13 offset:{1024 * ks + 128 * r2}")
        if ks % 7 == 6: a.i("s_waitcnt lgkmcnt(0)")
    a.i("v_and_b32 v5, 7, v2"); a.i("v_lshlrev_b32 v6, 4, v5"); a.i("v_lshl_add_u32 v6, v12, 7, v6")
    a.i(f"s_mul_i32 s24, s3, {14 * 512}"); a.i(f"s_add_u32 s24, s24, {WS_GU}"); a.i("s_add_u32 s29, s24, 4096")
    a.i("s_mov_b32 s26, 0x40000")
    a.label("KM_POLL")
    for ks in range(14):
        a.i(f"buffer_load_dwordx4 {vr(16 + 4 * ks, 4)}, v6, s[20:23], {'s24' if ks < 8 else 's29'} offen offset:{512 * (ks % 8)} sc1")
    a.i("s_waitcnt vmcnt(0)")
    a.i("v_max3_u32 v7, v16, v17, v18")
    for k in range(19, 71, 2): a.i(f"v_max3_u32 v7, v7, {vr(k)}, {vr(k + 1)}")
    a.i("v_max_u32 v7, v7, v71")
    a.i("v_cmp_eq_u32 vcc, -1, v7")
    a.i("s_sub_u32 s26, s26, 1"); a.i("s_cbranch_scc1 KM_GOT")
    a.i("s_cbranch_vccnz KM_POLL")
    a.label("KM_GOT")
    mstamp(a, st, 'guld')
    for ks in range(14):
        a.i(f"v_mfma_f32_16x16x32_bf16 v[72:75], {vr(80 + 4 * ks, 4)}, {vr(16 + 4 * ks, 4)}, {'0' if ks == 0 else 'v[72:75]'}")
    a.i("s_nop 7")
    a.i("v_lshlrev_b32 v3, 4, v2"); a.i("s_lshl_b32 s24, s3, 10"); a.i(f"s_add_u32 s24, s24, {L_RED}"); a.i("v_add_u32 v3, s24, v3")
    a.i("ds_write_b128 v3, v[72:75]")
    a.i("s_waitcnt lgkmcnt(0)"); a.i("s_barrier")
    a.i("s_cmp_lg_u32 s3, 0"); a.i("s_cbranch_scc1 KM_DONE")
    for w in range(1, 4): a.i(f"ds_read_b128 {vr(16 + 4 * w, 4)}, v3 offset:{1024 * w}")
    srd(a, 16, 42, 2048 * 896)
    sigmoid(a, 5, 208, 6); round_bf(a, 5, 5)
    a.i("s_waitcnt lgkmcnt(0)")
    for r in range(4):
        for w in range(1, 4): a.i(f"v_add_f32 {vr(72 + r)}, {vr(72 + r)}, {vr(16 + 4 * w + r)}")
        round_bf(a, 72 + r, 72 + r)
        a.i(f"v_mul_f32 {vr(72 + r)}, {vr(72 + r)}, v5"); round_bf(a, 72 + r, 72 + r)
    for half in range(2):
        bf_lo(a, 16 + 2 * half, 204 + half); bf_hi(a, 17 + 2 * half, 204 + half)
        bf_lo(a, 20 + 2 * half, 202 + half); bf_hi(a, 21 + 2 * half, 202 + half)
        bf_lo(a, 24 + 2 * half, 206 + half); bf_hi(a, 25 + 2 * half, 206 + half)
    for r in range(4):
        a.i(f"v_add_f32 {vr(72 + r)}, {vr(72 + r)}, {vr(16 + r)}"); round_bf(a, 72 + r, 72 + r)
        a.i(f"v_mul_f32 {vr(72 + r)}, {vr(72 + r)}, {vr(24 + r)}"); round_bf(a, 72 + r, 72 + r)
        a.i(f"v_add_f32 {vr(72 + r)}, {vr(72 + r)}, {vr(20 + r)}")
    a.i("v_cvt_pk_bf16_f32 v76, v72, v73"); a.i("v_cvt_pk_bf16_f32 v77, v74, v75")
    a.i("v_and_b32 v5, 15, v2")
    a.i("v_cmp_gt_u32 vcc, 8, v5"); a.i("s_and_saveexec_b64 s[36:37], vcc")
    a.i("buffer_store_dwordx2 v[76:77], v201, s[16:19], 0 offen")
    a.i("s_mov_b64 exec, s[36:37]")
    if st:
        a.i("s_waitcnt vmcnt(0)")
        mstamp(a, st, 'end')
        mstamps_out(a, st, 1)
    a.label("KM_DONE")
    a.i("s_endpgm")
    return kdesc(n, vgpr=216, accum=216, sgpr=96 if st else 56), NWG, L_RED + 4096
```

```python
class Asm:
    def __init__(self):
        self.lines = []
        self.lds_seq = 0
        self.lds_done = 0
        self.tag_last = {}
        self.ninst = 0
        self.uid = 0
    def raw(self, s):
        self.lines.append(s)
    def c(self, s):
        self.lines.append("  ; " + s)
    def label(self, s):
        self.lines.append(s + ":")
    def i(self, s):
        self.lines.append("  " + s)
        self.ninst += 1
    def i_many(self, lst):
        for s in lst:
            self.i(s)
    def lds(self, s, tag=None):
        self.i(s)
        self.lds_seq += 1
        if tag is not None:
            self.tag_last[tag] = self.lds_seq
    def need(self, *tags):
        idx = 0
        for t in tags:
            idx = max(idx, self.tag_last[t])
        if idx > self.lds_done:
            n = self.lds_seq - idx
            assert n <= 15, f"lgkmcnt {n} too large"
            self.i(f"s_waitcnt lgkmcnt({n})")
            self.lds_done = idx
    def lds_drain(self):
        self.i("s_waitcnt lgkmcnt(0)")
        self.lds_done = self.lds_seq
    def lds_state(self):
        out = {}
        for t, v in self.tag_last.items():
            if v > self.lds_done:
                out[t] = self.lds_seq - v
        return out
    def newlabel(self, base):
        self.uid += 1
        return f"{base}_{self.uid}"
    def text(self):
        return "\n".join(self.lines) + "\n"

def vr(a, n=1):
    return f"v{a}" if n == 1 else f"v[{a}:{a+n-1}]"
def ar(a, n=1):
    return f"a{a}" if n == 1 else f"a[{a}:{a+n-1}]"
def sr(a, n=1):
    return f"s{a}" if n == 1 else f"s[{a}:{a+n-1}]"

def kdesc(name, vgpr=512, accum=256, sgpr=102, extra=""):
    return f""".section .rodata,"a"
.p2align 6
.amdhsa_kernel {name}
  .amdhsa_next_free_vgpr {vgpr}
  .amdhsa_next_free_sgpr {sgpr}
  .amdhsa_accum_offset {accum}
  .amdhsa_group_segment_fixed_size 0
  .amdhsa_kernarg_size 120
  .amdhsa_user_sgpr_count 2
  .amdhsa_user_sgpr_kernarg_segment_ptr 1
  .amdhsa_system_sgpr_workgroup_id_x 1
  .amdhsa_float_denorm_mode_32 3
{extra}.end_amdhsa_kernel
.text
"""

def dbgstamp(a, launch_idx, word, cond_wg=0, sbase=96, label=None):
    L = label or a.newlabel("DS")
    a.i(f"s_cmp_lg_u32 s2, {cond_wg}"); a.i(f"s_cbranch_scc1 {L}")
    a.i(f"s_memrealtime s[{sbase + 4}:{sbase + 5}]")
    a.i(f"s_load_dwordx2 s[{sbase}:{sbase + 1}], s[0:1], 104")
    a.i("s_waitcnt lgkmcnt(0)")
    a.i(f"s_sub_u32 s{sbase}, s{sbase}, {512 * launch_idx}"); a.i(f"s_subb_u32 s{sbase + 1}, s{sbase + 1}, 0")
    a.i(f"s_mov_b32 s{sbase + 2}, 256"); a.i(f"s_mov_b32 s{sbase + 3}, 0x20000")
    a.i(f"v_mov_b32 VA, {4 * word}"); a.i(f"v_mov_b32 VB, s{sbase + 4}")
    a.i(f"buffer_store_dword VB, VA, s[{sbase}:{sbase + 3}], 0 offen")
    a.label(L)
```

```python
from asmlib import *
from core16 import *
import core16 as c16
from kern_small import (hdbg, srd, kstart, bf_lo, bf_hi, f2u, sigmoid, round_bf, QSCALE, WS_A1, WS_S1, WS_GA, WS_A2, WS_SB, WS_GB, WS_PART, WS_SIZE, WS_STAT)

SRD_X = 12
SRD_WS = 16
SRD_WQ = 68
S_KH = 32; S_RG = 33; S_G = 34; S_QW = 35
T0, T1, T2, T3 = 36, 37, 38, 39
S_WOFF = 40; S_WOFF2 = 41; S_WM0 = 42

WT = 33792
PHYS = [2 * WT, 1 * WT, 0 * WT, 3 * WT]
HB = 102912
MODB = 160256
QX = 98304
ST = 57344
XB = 67584
OX = 67584
WOT = 28672
WOSLOT = [0, WOT, 133120, 67584]
TB = 0; TSTR = 912

DBG = {}
WARM_MOE = True

def k1_setup(a):
    a.i("s_load_dwordx2 s[44:45], s[0:1], 0")
    a.i("s_load_dwordx4 s[48:51], s[0:1], 8")
    a.i("s_load_dwordx4 s[52:55], s[0:1], 24")
    a.i("s_load_dwordx2 s[56:57], s[0:1], 112")
    a.i("s_load_dwordx4 s[60:63], s[0:1], 56")
    a.i("s_load_dwordx2 s[64:65], s[0:1], 72")
    a.i("v_lshrrev_b32 v1, 6, v0"); a.i("s_nop 0")
    a.i(f"v_readfirstlane_b32 {sr(S_W)}, v1")
    a.i("v_and_b32 v0, 63, v0")
    a.i(f"s_and_b32 {sr(S_KH)}, {sr(S_W)}, 1")
    a.i(f"s_lshr_b32 {sr(S_RG)}, {sr(S_W)}, 1")
    a.i(f"s_and_b32 {sr(S_G)}, s2, 7")
    a.i(f"s_lshr_b32 {sr(S_QW)}, s2, 3")

def k1_srds(a):
    a.i("s_waitcnt lgkmcnt(0)")
    srd(a, SRD_X, 44, 2048 * 896)
    srd(a, SRD_WS, 56, 0x2000000)
    a.i(f"s_lshl_b32 {sr(T0)}, {sr(S_G)}, 10")
    a.i(f"s_add_u32 {sr(SRD_WQ)}, s52, {sr(T0)}"); a.i(f"s_addc_u32 {sr(SRD_WQ + 1)}, s53, 0")
    a.i(f"s_sub_u32 {sr(SRD_WQ + 2)}, {448 * 8192}, {sr(T0)}"); a.i(f"s_mov_b32 {sr(SRD_WQ + 3)}, 0x20000")

def kv_srds(a):
    a.i(f"s_lshl_b32 {sr(T0)}, {sr(S_G)}, 20")
    for d, p, bias in ((SRD_K, 48, 128), (SRD_V, 50, 256)):
        a.i(f"s_add_u32 {sr(d)}, {sr(p)}, {sr(T0)}"); a.i(f"s_addc_u32 {sr(d + 1)}, {sr(p + 1)}, 0")
        a.i(f"s_sub_u32 {sr(d)}, {sr(d)}, {bias}"); a.i(f"s_subb_u32 {sr(d + 1)}, {sr(d + 1)}, 0")
        a.i(f"s_mov_b32 {sr(d + 2)}, {0x100000 + bias}"); a.i(f"s_mov_b32 {sr(d + 3)}, 0x20000")

WQV = 4
def wq_setup(a):
    a.i(f"s_lshl_b32 {sr(T0)}, {sr(S_KH)}, 3"); a.i(f"v_xor_b32 v1, {sr(T0)}, v0")
    a.i("v_lshlrev_b32 v1, 4, v1")
    a.i(f"s_lshl_b32 {sr(T0)}, {sr(S_W)}, 16")
    a.i(f"v_add_u32 v1, {sr(T0)}, v1")
    for j in range(4):
        a.i(f"v_add_u32 {vr(WQV + j)}, {j * (8192 - 1056)}, v1")
    a.i(f"s_mul_i32 {sr(S_WM0)}, {sr(S_W)}, 8448")
    a.i(f"s_mov_b32 {sr(S_WOFF)}, 0"); a.i(f"s_mov_b32 {sr(S_WOFF2)}, {4 * 8192}")

def wq_tile(s):
    base = PHYS[s % 4]
    groups = []
    for i in range(8):
        pre = [f"s_add_u32 m0, {sr(S_WM0)}, {base + (i // 4) * 4224}"] if i % 4 == 0 else []
        so = (S_WOFF, S_WOFF2)[i // 4]
        ins = [f"buffer_load_dwordx4 {vr(WQV + (i & 3))}, {sr(SRD_WQ, 4)}, {sr(so)} offen offset:{1056 * (i & 3)} lds"]
        post = [f"s_add_u32 {sr(so)}, {sr(so)}, {32 * 8192}"] if i % 4 == 3 else []
        groups.append((pre, ins, post))
    return groups

def emit_groups(a, groups):
    for pre, ins, post in groups:
        for s in pre: a.i(s); a.i("s_nop 0")
        for s in ins + post: a.i(s)

def attn_setup(a):
    kh, rg = sr(S_KH), sr(S_RG)
    t = sr(T0)
    a.i(f"s_mul_i32 {sr(S_KM0)}, {kh}, {KSLOT}"); a.i(f"s_mul_i32 {t}, {rg}, {8 * 1056}"); a.i(f"s_add_u32 {sr(S_KM0)}, {sr(S_KM0)}, {t}")
    a.i(f"s_mul_i32 {sr(S_VM0)}, {kh}, {VSLOT}"); a.i(f"s_mul_i32 {t}, {rg}, {8 * 1088}"); a.i(f"s_add_u32 {sr(S_VM0)}, {sr(S_VM0)}, {t}")
    a.i(f"s_lshl_b32 {sr(S_KOFF)}, {kh}, 19"); a.i(f"s_add_u32 {sr(S_KOFF2)}, {sr(S_KOFF)}, 4096")
    a.i(f"s_mov_b32 {sr(S_VOFF)}, {sr(S_KOFF)}"); a.i(f"s_mov_b32 {sr(S_VOFF2)}, {sr(S_KOFF2)}")
    a.i(f"s_mov_b32 {sr(S_THR)}, 0x46800000")
    a.i("v_lshrrev_b32 v2, 5, v0"); a.i("v_and_b32 v1, 31, v0")
    a.i("v_xor_b32 v3, v1, v2"); a.i("v_lshlrev_b32 v3, 4, v3"); a.i("v_lshl_add_u32 v3, v2, 9, v3")
    a.i(f"s_lshl_b32 {t}, {rg}, 13"); a.i(f"v_add_u32 v3, {t}, v3")
    for j in range(4): a.i(f"v_add_u32 {vr(DK + j)}, {128 - 32 * j}, v3")

def attn_setup2(a):
    kh, rg = sr(S_KH), sr(S_RG); t = sr(T0)
    a.i("v_and_b32 v1, 15, v0"); a.i("v_lshrrev_b32 v2, 4, v0"); a.i("v_and_b32 v3, 1, v0")
    a.i("v_lshrrev_b32 v4, 1, v1"); a.i("v_mul_u32_u24 v4, 1056, v4"); a.i("v_lshl_add_u32 v4, v3, 9, v4")
    a.i("v_xor_b32 v5, v2, v3"); a.i("v_lshl_add_u32 v4, v5, 4, v4")
    a.i(f"s_mul_i32 {t}, {kh}, {KSLOT}"); a.i(f"v_add_u32 {vr(KB)}, {t}, v4")
    a.i("v_bfe_u32 v3, v0, 2, 1"); a.i("v_bfe_u32 v4, v0, 3, 1"); a.i("v_lshl_add_u32 v4, v2, 1, v4")
    a.i("v_mul_u32_u24 v4, 1088, v4"); a.i("v_lshl_add_u32 v4, v3, 9, v4")
    a.i("v_and_b32 v5, 3, v0"); a.i("v_lshl_add_u32 v4, v5, 3, v4")
    a.i(f"s_mul_i32 {t}, {kh}, {VSLOT}"); a.i(f"s_add_u32 {t}, {t}, {VRING}")
    a.i(f"v_add_u32 v4, {t}, v4")
    a.i(f"v_lshl_add_u32 {vr(VB)}, v3, 5, v4")
    a.i("v_xor_b32 v5, 1, v3"); a.i(f"v_lshl_add_u32 {vr(VB + 1)}, v5, 5, v4")
    a.i("v_lshrrev_b32 v2, 5, v0"); a.i("v_and_b32 v1, 31, v0")
    a.i("v_lshlrev_b32 v3, 1, v2"); a.i("v_xor_b32 v3, v1, v3"); a.i("v_lshlrev_b32 v3, 4, v3"); a.i("v_lshl_add_u32 v3, v2, 9, v3")
    a.i(f"s_lshl_b32 {t}, {rg}, 13"); a.i(f"v_add_u32 v3, {t}, v3")
    for j in range(4): a.i(f"v_add_u32 {vr(DV + j)}, {256 - 64 * j}, v3")

XF = 16
XR = 128
MV = 184
def x_issue(a):
    a.i("v_and_b32 v1, 15, v0"); a.i("v_lshrrev_b32 v2, 4, v0")
    a.i(f"s_lshl_b32 {sr(T0)}, {sr(S_QW)}, 6"); a.i(f"s_lshl_b32 {sr(T1)}, {sr(S_W)}, 4"); a.i(f"s_add_u32 {sr(T0)}, {sr(T0)}, {sr(T1)}")
    a.i(f"v_add_u32 v3, {sr(T0)}, v1")
    a.i("v_lshlrev_b32 v9, 3, v3"); a.i(f"s_mov_b32 {sr(T1)}, {WS_STAT}")
    a.i(f"buffer_load_dwordx2 v[14:15], v9, {sr(SRD_WS, 4)}, {sr(T1)} offen")
    a.i("v_lshlrev_b32 v8, 4, v0")
    a.i(f"s_lshl_b32 {sr(T0)}, {sr(S_W)}, 10"); a.i(f"s_add_u32 m0, {sr(T0)}, {MODB}")
    a.i(f"s_cmp_eq_u32 {sr(S_W)}, 3"); a.i("s_cselect_b32 exec_hi, 0, -1")
    a.i(f"buffer_load_dwordx4 v8, {sr(SRD_WS, 4)}, {sr(T0)} offen lds")
    a.i("s_mov_b32 exec_hi, -1")
    a.i("v_mul_u32_u24 v3, 896, v3"); a.i("v_lshl_add_u32 v3, v2, 4, v3")
    for i in range(14):
        a.i(f"buffer_load_dwordx4 {vr(XR + 4 * i, 4)}, v3, {sr(SRD_X, 4)}, 0 offen offset:{64 * i}")
    a.i(f"s_lshl_b32 {sr(T0)}, {sr(S_W)}, 5"); a.i(f"v_and_b32 v9, 31, v0"); a.i(f"v_add_u32 v9, {sr(T0)}, v9")
    a.i("v_lshrrev_b32 v10, 3, v9"); a.i(f"s_mul_i32 {sr(T0)}, {sr(S_QW)}, 14"); a.i(f"v_add_u32 v10, {sr(T0)}, v10")
    a.i("v_lshlrev_b32 v10, 13, v10"); a.i("v_and_b32 v9, 7, v9"); a.i("v_lshl_add_u32 v9, v9, 7, v10")
    a.i(f"buffer_load_dword v250, v9, {sr(SRD_WQ, 4)}, 0 offen")

def code_warm(a):
    a.i(f"s_cmp_gt_u32 {sr(S_QW)}, 9"); a.i("s_cbranch_scc1 K1_NCW")
    a.i(f"s_cmp_lg_u32 {sr(S_W)}, 3"); a.i("s_cbranch_scc1 K1_NCW")
    a.i("s_getpc_b64 s[92:93]")
    a.label("K1_PC")
    a.i("s_mov_b32 s94, K1_END - K1_PC"); a.i("s_mov_b32 s95, 0x20000")
    a.i(f"s_lshl_b32 {sr(T0)}, {sr(S_QW)}, 13"); a.i("v_lshlrev_b32 v9, 7, v0")
    a.i(f"buffer_load_dword v253, v9, s[92:95], {sr(T0)} offen")
    a.label("K1_NCW")

def prologue(a, cfg):
    if getattr(cfg, 'codewarm', 0) & 1: code_warm(a)
    x_issue(a)
    wq_setup(a)
    kv_srds(a)
    wqq = []
    for s in range(3):
        for pre, ins, post in wq_tile(s): wqq.append((pre, ins, post))
    def drip(n=1):
        for _ in range(n):
            if wqq:
                pre, ins, post = wqq.pop(0)
                for t in pre: a.i(t); a.i("s_nop 0")
                for t in ins + post: a.i(t)
    a.i("s_waitcnt vmcnt(15)"); a.i("s_barrier")
    stamp(a, cfg, 'modv')
    a.i("v_lshrrev_b32 v2, 4, v0"); a.i("v_lshlrev_b32 v2, 5, v2"); a.i(f"v_add_u32 v2, {MODB}, v2")
    a.i("v_lshlrev_b32 v1, 4, v0"); a.i(f"s_lshl_b32 {sr(T0)}, {sr(S_W)}, 10"); a.i(f"s_add_u32 {sr(T0)}, {sr(T0)}, {HB}")
    a.i(f"v_add_u32 v1, {sr(T0)}, v1")
    def mv_read(i):
        b = MV + 16 * (i & 1)
        for k in range(2):
            a.lds(f"ds_read_b128 {vr(b + 4 * k, 4)}, v2 offset:{128 * i + 16 * k}", ("mv", i))
            a.lds(f"ds_read_b128 {vr(b + 8 + 4 * k, 4)}, v2 offset:{1792 + 128 * i + 16 * k}", ("mv", i))
    mv_read(0)
    a.i("v_mov_b32 v12, v15")
    ndrip = 0
    for i in range(14):
        if i + 1 < 14: mv_read(i + 1)
        a.i(f"s_waitcnt vmcnt({13 - i + 1 + ndrip})")
        if i == 0: stamp(a, cfg, 'xarr')
        for j in range(4):
            x = XF + 8 * (i & 1) + 2 * j
            bf_lo(a, x, XR + 4 * i + j); bf_hi(a, x + 1, XR + 4 * i + j)
        a.need(("mv", i))
        b = MV + 16 * (i & 1)
        for k in range(0, 8, 2):
            x = XF + 8 * (i & 1) + k
            a.i(f"v_pk_fma_f32 {vr(x, 2)}, {vr(x, 2)}, v[14:15], v[12:13] op_sel_hi:[1,0,0]")
            a.i(f"v_pk_fma_f32 {vr(x, 2)}, {vr(x, 2)}, {vr(b + k, 2)}, {vr(b + 8 + k, 2)}")
            a.i(f"v_cvt_pk_bf16_f32 {vr(XR + 4 * i + k // 2)}, {vr(x)}, {vr(x + 1)}")
        a.lds(f"ds_write_b128 v1, {vr(XR + 4 * i, 4)} offset:{4096 * i}")
        if i >= 2: drip(2); ndrip += 2
    assert not wqq
    stamp(a, cfg, 'ln')
    a.lds_drain(); a.i("s_barrier")
    a.i(f"v_lshlrev_b32 v14, 4, v0"); a.i(f"v_add_u32 v14, {HB}, v14")
    for ks in range(8):
        for qb in range(4):
            a.lds(f"ds_read_b128 {ar((ks * 4 + qb) * 4, 4)}, v14 offset:{(ks * 4 + qb) * 1024}", ("hf", ks))
        if ks % 3 == 2: a.lds_drain()
    a.lds_drain()

WA = 8
WAH = 12
QACC = 128
def qproj(a):
    attn_setup(a)
    a.i("v_lshrrev_b32 v1, 4, v0"); a.i("v_bfe_u32 v2, v0, 2, 2"); a.i("v_lshl_add_u32 v2, v1, 3, v2"); a.i("v_mul_u32_u24 v2, 1056, v2")
    a.i("v_and_b32 v3, 3, v0"); a.i("v_lshl_add_u32 v2, v3, 3, v2")
    a.i(f"s_lshl_b32 {sr(T0)}, {sr(S_W)}, 8")
    a.i(f"v_add_u32 v2, {sr(T0)}, v2")
    a.i("v_and_b32 v3, 1, v1"); a.i("v_lshlrev_b32 v3, 7, v3")
    a.i(f"v_add_u32 {vr(WA)}, v2, v3"); a.i(f"v_sub_u32 {vr(WA + 1)}, v2, v3")
    a.i(f"v_add_u32 {vr(WAH)}, {2 * WT}, {vr(WA)}"); a.i(f"v_add_u32 {vr(WAH + 1)}, {2 * WT}, {vr(WA + 1)}")
    a.i("s_waitcnt vmcnt(16)"); a.i("s_barrier")
    PF = 3
    def fread(absf):
        s, db = absf // 8, absf % 8
        ph = PHYS[s % 4]
        breg, off = (WA, ph) if ph < 2 * WT else (WAH, ph - 2 * WT)
        breg += db >> 2
        r = FR + 4 * (absf % 4)
        return [(f"ds_read_b64_tr_b16 {vr(r + 2 * r2, 2)}, {vr(breg)} offset:{off + 4224 * r2 + 32 * db}", ("wf", absf)) for r2 in range(2)]
    for f in range(PF):
        for s, tag in fread(f): a.lds(s, tag)
    pend = []
    for s in range(14):
        plan = {}
        def put(g, t): plan.setdefault(g, []).append(t)
        if s + 1 < 14:
            vm = 8
            put(1, f"s_waitcnt vmcnt({vm})"); put(1, "s_barrier")
        else:
            put(1, "s_barrier")
        groups = None
        if s + 3 < 14: groups = wq_tile(s + 3)
        elif s == 11: groups = dma_tile('K', 0)
        if groups:
            for (pre, ins, post), g in zip(groups, [3, 6, 10, 14, 18, 22, 26, 30]):
                for t in pre: put(g - 1, t)
                for t in ins + post: put(g, t)
        hq = []
        if s < 6:
            hq = [(f"ds_read_b128 {ar(((8 + s) * 4 + qb) * 4, 4)}, v14 offset:{((8 + s) * 4 + qb) * 1024}", ("hf", 8 + s)) for qb in range(4)]
        for i in range(32):
            db, qb = i >> 2, i & 3
            absf = 8 * s + db
            if qb == 0: a.need(("wf", absf))
            if i == 0 and s >= 8: a.need(("hf", s))
            if hq and i % 8 == 3:
                t, tag = hq.pop(0); a.lds(t, tag)
            acc = vr(QACC + 16 * db + 4 * qb, 4)
            a.i(f"v_mfma_f32_16x16x32_bf16 {acc}, {vr(FR + 4 * (absf % 4), 4)}, {ar((s * 4 + qb) * 4, 4)}, {'0' if s == 0 else acc}")
            if qb == 0 and absf + PF < 8 * 14: pend += fread(absf + PF)
            for t in plan.pop(i, []): a.i(t)
            k = 0
            while pend and k < 2:
                t, tag = pend.pop(0); a.lds(t, tag); k += 1
        assert not plan

def qexchange(a):
    a.i("s_nop 7")
    a.i("v_and_b32 v1, 15, v0"); a.i("v_lshlrev_b32 v1, 4, v1"); a.i("v_bfe_u32 v2, v0, 4, 1"); a.i("v_lshl_add_u32 v1, v2, 3, v1")
    a.i("v_lshrrev_b32 v2, 5, v0"); a.i("v_lshl_add_u32 v1, v2, 8, v1")
    a.i(f"s_lshl_b32 {sr(T0)}, {sr(S_RG)}, 15"); a.i(f"s_add_u32 {sr(T0)}, {sr(T0)}, {QX}")
    a.i(f"s_lshl_b32 {sr(T1)}, {sr(S_KH)}, 12"); a.i(f"s_add_u32 {sr(T1)}, {sr(T1)}, {sr(T0)}")
    a.i(f"v_add_u32 v3, {sr(T1)}, v1")
    n = 0
    for db in range(8):
        for qb in range(4):
            x = QACC + 16 * db + 4 * qb
            t = 96 + 2 * (n % 8); n += 1
            a.i(f"v_cvt_pk_bf16_f32 {vr(t)}, {vr(x)}, {vr(x + 1)}")
            a.i(f"v_cvt_pk_bf16_f32 {vr(t + 1)}, {vr(x + 2)}, {vr(x + 3)}")
            a.lds(f"ds_write_b64 v3, {vr(t, 2)} offset:{8192 * qb + 1024 * (db >> 1) + 512 * (db & 1)}")
    a.i("v_lshlrev_b32 v3, 4, v0"); a.i(f"v_add_u32 v3, {sr(T0)}, v3")
    a.lds_drain(); a.i("s_barrier")
    kq = []
    for pre, ins, post in dma_tile('K', 1):
        kq.append([t for t in pre] + (["s_nop 0"] if pre else []) + ins + post)
    for ks in range(8):
        for qb in range(4):
            a.lds(f"ds_read_b128 {vr(Q + 32 * qb + 4 * ks, 4)}, v3 offset:{8192 * qb + 1024 * ks}", ("qf", ks))
        for t in kq.pop(0): a.i(t)
        if ks % 2 == 1: a.need(("qf", ks - 1))
    attn_setup2(a)
    a.lds_drain()
    a.i("s_waitcnt vmcnt(8)"); a.i("s_barrier")
    emit_groups(a, dma_tile('V', 0))

def attention(a, cfg):
    core = Core16(a, cfg)
    for f in range(16):
        for s in frag_reads(f, 0, 0): a.lds(s)
        if f % 4 == 3:
            a.lds_drain()
            for f2 in range(f - 3, f + 1):
                kb, ks = f2 >> 3, f2 & 7
                for qb in range(4):
                    d = vr(Sreg(kb, qb), 4)
                    a.i(f"v_mfma_f32_16x16x32_bf16 {d}, {vr(FR + 4 * (f2 % 4), 4)}, {vr(Q + 32 * qb + 4 * ks, 4)}, {'0' if ks == 0 else d}")
    a.i("s_nop 7")
    for qb in range(4):
        core.rowmax4(qb, TA, TB_)
        for r in range(4):
            a.i(f"v_sub_f32 {vr(NEGM + 4 * qb + r)}, 0, {vr(TA)}")
            for kb in range(2):
                a.i(f"v_sub_f32 {vr(Sreg(kb, qb) + r)}, {vr(Sreg(kb, qb) + r)}, {vr(TA)}")
        a.i(f"v_mov_b32 {vr(L + qb)}, 0")
    for kb in range(2):
        for c, s in softmax_ops(kb, P0):
            a.i(s)
            if c == 2: a.i("s_nop 0")
    for qb in range(4):
        a.i(f"v_add_f32 {vr(L + qb)}, {vr(L + qb)}, {vr(PS + qb)}")
    a.i("s_waitcnt vmcnt(8)"); a.i("s_barrier")
    emit_groups(a, dma_tile('K', 0)[:2])
    core.prefetch_first(0)
    core.iteration(0, first=True)
    a.i(f"s_mov_b32 {sr(S_CNT)}, 14")
    st0 = a.lds_state(); base0 = core.fidx
    st0 = {k: v for k, v in st0.items() if k[0] == 'f'}
    a.lds_done = a.tag_last[("f", core.fidx)] - 1
    a.raw(".p2align 3")
    a.label("K1_LOOP")
    core.pend_l = True
    core.iteration(1); core.iteration(2)
    a.i(f"s_sub_u32 {sr(S_CNT)}, {sr(S_CNT)}, 1")
    a.i(f"s_cmp_lg_u32 {sr(S_CNT)}, 0")
    a.i("s_cbranch_scc1 K1_LOOP")
    st1 = {k: v for k, v in a.lds_state().items() if k[0] == 'f'}
    rel0 = {k[1] - base0: v for k, v in st0.items()}; rel1 = {k[1] - core.fidx: v for k, v in st1.items()}
    assert all(rel0.get(k) == v for k, v in rel1.items()), (rel0, rel1)
    a.i(f"s_mul_i32 {sr(T2)}, {sr(S_G)}, {512 * 896}")
    a.i(f"s_add_u32 {sr(SRD_X)}, s54, {sr(T2)}"); a.i(f"s_addc_u32 {sr(SRD_X + 1)}, s55, 0")
    a.i(f"s_mov_b32 {sr(SRD_X + 2)}, {512 * 896}"); a.i(f"s_mov_b32 {sr(SRD_X + 3)}, 0x20000")
    a.i(f"s_mul_i32 {sr(T2)}, {sr(S_QW)}, {112 * 128}"); a.i(f"s_lshl_b32 {sr(T3)}, {sr(S_W)}, 12"); a.i(f"s_add_u32 {sr(T2)}, {sr(T2)}, {sr(T3)}")
    a.i(f"v_and_b32 {vr(TA)}, 31, v0"); a.i(f"v_lshlrev_b32 {vr(TA)}, 7, {vr(TA)}")
    a.i(f"buffer_load_dword v15, {vr(TA)}, {sr(SRD_X, 4)}, {sr(T2)} offen")
    core.iteration(1, dmaKt=False)
    core.iteration(2, dmaKh=False, dmaKt=False, nxt='B', vmA=0, vmB=0)
    class L_:
        def __init__(self): self.q = []
        def i(self, t): self.q.append(t)
    lq = L_(); wo_setup(lq)
    for s_ in range(2):
        for pre, ins, post in wo_tile(s_):
            for t in pre: lq.i(t); lq.i("s_nop 0")
            for t in ins + post: lq.i(t)
    core.iteration(3, do_A=False, do_soft=False, dmaV=False, dmaKh=False, dmaKt=False, nxt=None, barB=False, extra_q=lq.q, extra_start=64)
    return core

TB_ = c16.TB

def merge(a, core, cfg):
    for qb in range(4): core.xreduce(L + qb, TA, "v_add_f32")
    a.i("v_lshlrev_b32 v1, 2, v0"); a.i(f"s_lshl_b32 {sr(T0)}, {sr(S_W)}, 11"); a.i(f"s_add_u32 {sr(T1)}, {sr(T0)}, {ST}")
    a.i(f"v_add_u32 v2, {sr(T1)}, v1")
    for qb in range(4):
        a.lds(f"ds_write_b32 v2, {vr(NEGM + 4 * qb)} offset:{256 * qb}")
        a.lds(f"ds_write_b32 v2, {vr(L + qb)} offset:{1024 + 256 * qb}")
    a.i(f"s_xor_b32 {sr(T0)}, {sr(T0)}, 2048"); a.i(f"s_add_u32 {sr(T1)}, {sr(T0)}, {ST}")
    a.i(f"v_add_u32 v2, {sr(T1)}, v1")
    a.lds_drain(); a.i("s_barrier")
    for qb in range(4):
        a.lds(f"ds_read_b32 {vr(16 + qb)}, v2 offset:{256 * qb}")
        a.lds(f"ds_read_b32 {vr(20 + qb)}, v2 offset:{1024 + 256 * qb}", "st")
    a.i("v_lshlrev_b32 v1, 4, v0")
    a.i(f"s_lshl_b32 {sr(T0)}, {sr(S_W)}, 14"); a.i(f"s_add_u32 {sr(T1)}, {sr(T0)}, {XB}"); a.i(f"v_add_u32 v6, {sr(T1)}, v1")
    a.i(f"s_xor_b32 {sr(T0)}, {sr(T0)}, 16384"); a.i(f"s_add_u32 {sr(T1)}, {sr(T0)}, {XB}"); a.i(f"v_add_u32 v7, {sr(T1)}, v1")
    emit_groups(a, wo_tile(2))
    a.need("st")
    for qb in range(4):
        no, np_ = NEGM + 4 * qb, 16 + qb
        a.i(f"v_min_f32 v4, {vr(no)}, {vr(np_)}")
        a.i(f"v_sub_f32 v5, v4, {vr(no)}"); a.i("v_exp_f32 v5, v5")
        a.i(f"v_sub_f32 v3, v4, {vr(np_)}"); a.i("v_exp_f32 v3, v3")
        a.i("s_nop 0")
        a.i(f"v_mul_f32 v2, v5, {vr(L + qb)}"); a.i(f"v_fmac_f32 v2, v3, {vr(20 + qb)}")
        a.i("v_rcp_f32 v2, v2"); a.i("s_nop 0")
        a.i(f"v_mul_f32 {vr(24 + 2 * qb)}, v5, v2"); a.i(f"v_mul_f32 {vr(32 + 2 * qb)}, v3, v2")
    R = 72; OWN = 128
    a.i(f"s_cmp_eq_u32 {sr(S_KH)}, 0"); a.i("s_cbranch_scc0 K1_MG1")
    for kh in range(2):
        if kh == 1: a.label("K1_MG1")
        ownq = []
        for dbp in range(8):
            for qb in range(4):
                k = dbp * 4 + qb; x = 16 * (8 * kh + dbp) + 4 * qb; o = OWN + 4 * k
                ownq.append([f"v_accvgpr_read_b32 {vr(o + j)}, {ar(x + j)}" for j in range(4)] +
                            [f"v_pk_mul_f32 {vr(o + j, 2)}, {vr(o + j, 2)}, {vr(24 + 2 * qb, 2)} op_sel_hi:[1,0]" for j in (0, 2)])
        for rho in range(2):
            if rho == 1: a.i("s_barrier")
            for d4 in range(4):
                db = 8 * (1 - kh) + 4 * rho + d4
                for qb in range(4):
                    a.lds(f"ds_write_b128 v6, {ar(16 * db + 4 * qb, 4)} offset:{(d4 * 4 + qb) * 1024}")
                    if ownq:
                        for t in ownq.pop(0): a.i(t)
            a.lds_drain(); a.i("s_barrier")
            for half in range(2):
                for kk in range(8):
                    t16 = 8 * half + kk
                    a.lds(f"ds_read_b128 {vr(R + 4 * kk, 4)}, v7 offset:{t16 * 1024}", ("mg", kh, rho, t16))
                for kk in range(8):
                    t16 = 8 * half + kk
                    k = 16 * rho + t16; qb = k & 3; rr = R + 4 * kk; o = OWN + 4 * k
                    a.need(("mg", kh, rho, t16))
                    for j in (0, 2):
                        a.i(f"v_pk_fma_f32 {vr(o + j, 2)}, {vr(rr + j, 2)}, {vr(32 + 2 * qb, 2)}, {vr(o + j, 2)} op_sel_hi:[1,0,1]")
                    a.i(f"v_cvt_pk_bf16_f32 {vr(o)}, {vr(o)}, {vr(o + 1)}")
                    a.i(f"v_cvt_pk_bf16_f32 {vr(o + 1)}, {vr(o + 2)}, {vr(o + 3)}")
        if kh == 0: a.i("s_branch K1_MGJ")
    a.label("K1_MGJ")
    a.i("v_and_b32 v1, 15, v0"); a.i("v_lshlrev_b32 v1, 4, v1"); a.i("v_bfe_u32 v2, v0, 4, 1"); a.i("v_lshl_add_u32 v1, v2, 3, v1")
    a.i("v_lshrrev_b32 v2, 5, v0"); a.i("v_lshl_add_u32 v1, v2, 8, v1")
    a.i(f"s_lshl_b32 {sr(T0)}, {sr(S_W)}, 14"); a.i(f"s_add_u32 {sr(T0)}, {sr(T0)}, {OX}"); a.i(f"v_add_u32 v3, {sr(T0)}, v1")
    a.i("s_barrier")
    for dbp in range(8):
        for qb in range(4):
            a.lds(f"ds_write_b64 v3, {vr(OWN + 4 * (dbp * 4 + qb), 2)} offset:{(dbp >> 1) * 4096 + qb * 1024 + 512 * (dbp & 1)}")
    a.i(f"v_lshlrev_b32 v14, 4, v0"); a.i(f"v_add_u32 v14, {OX}, v14")
    a.lds_drain(); a.i("s_barrier")
    for ks in range(8):
        for qb in range(4):
            a.lds(f"ds_read_b128 {ar((ks * 4 + qb) * 4, 4)}, v14 offset:{(ks * 4 + qb) * 1024}", ("ox", ks))
        if ks % 2 == 1: a.need(("ox", ks - 1))

WOV = 64
WOA = 16
OACC = 128
S_OOFF = 40; S_OM0 = 42
def wo_setup(a):
    a.i(f"s_mul_i32 {sr(S_OM0)}, {sr(S_W)}, 7168"); a.i(f"s_mov_b32 {sr(S_OOFF)}, 0")
    for i in range(7):
        d = WOV + i
        a.i(f"s_mul_i32 {sr(T2)}, {sr(S_W)}, 448"); a.i(f"s_add_u32 {sr(T2)}, {sr(T2)}, {64 * i}")
        a.i(f"v_add_u32 {vr(d)}, {sr(T2)}, v0")
        a.i(f"v_mul_u32_u24 v2, 18725, {vr(d)}"); a.i("v_lshrrev_b32 v2, 20, v2")
        a.i("v_bfe_u32 v3, v2, 1, 1"); a.i("v_bfe_u32 v2, v2, 3, 1"); a.i("v_lshl_or_b32 v3, v2, 1, v3")
        a.i("v_lshlrev_b32 v3, 5, v3"); a.i(f"v_lshlrev_b32 {vr(d)}, 4, {vr(d)}"); a.i(f"v_xor_b32 {vr(d)}, {vr(d)}, v3")
        if i & 3: a.i(f"v_subrev_u32 {vr(d)}, {1024 * (i & 3)}, {vr(d)}")

def wo_tile(s):
    base = WOSLOT[s % 4]
    groups = []
    for i in range(7):
        pre = [f"s_add_u32 m0, {sr(S_OM0)}, {base + (i // 4) * 4096}"] if i % 4 == 0 else []
        ins = [f"buffer_load_dwordx4 {vr(WOV + i)}, {sr(SRD_X, 4)}, {sr(S_OOFF)} offen offset:{1024 * (i & 3)} lds"]
        post = [f"s_add_u32 {sr(S_OOFF)}, {sr(S_OOFF)}, {WOT}"] if i == 6 else []
        groups.append((pre, ins, post))
    return groups

def oproj(a):
    a.i("v_lshrrev_b32 v1, 4, v0"); a.i("v_bfe_u32 v2, v0, 2, 2"); a.i("v_lshl_add_u32 v2, v1, 3, v2"); a.i("v_mul_u32_u24 v2, 896, v2")
    a.i("v_and_b32 v3, 3, v0"); a.i("v_lshl_add_u32 v2, v3, 3, v2")
    a.i("v_bfe_u32 v3, v0, 3, 1"); a.i("v_bfe_u32 v4, v0, 4, 1"); a.i("v_lshl_or_b32 v3, v4, 1, v3")
    a.i(f"s_mul_i32 {sr(T0)}, {sr(S_W)}, 7")
    for j in range(7):
        a.i(f"s_add_u32 {sr(T1)}, {sr(T0)}, {j}")
        a.i(f"v_xor_b32 v4, {sr(T1)}, v3"); a.i(f"v_lshl_add_u32 {vr(WOA + j)}, v4, 5, v2")
        a.i(f"v_add_u32 {vr(WOA + 7 + j)}, {WOSLOT[3]}, {vr(WOA + j)}")
        a.i(f"v_add_u32 {vr(WOA + 14 + j)}, {WOSLOT[2]}, {vr(WOA + j)}")
    a.lds_drain()
    a.i("s_waitcnt vmcnt(14)"); a.i("s_barrier")
    emit_groups(a, wo_tile(3))
    PF = 3
    NF = 7 * 16
    def fread(absf):
        s, j = absf // 7, absf % 7
        sl = s % 4
        breg, off = {0: (WOA + j, 0), 1: (WOA + j, WOT), 2: (WOA + 14 + j, 0), 3: (WOA + 7 + j, 0)}[sl]
        r = FR + 4 * (absf % 4)
        return [(f"ds_read_b64_tr_b16 {vr(r + 2 * r2, 2)}, {vr(breg)} offset:{off + 3584 * r2}", ("of", absf)) for r2 in range(2)]
    for f in range(PF):
        for s, tag in fread(f): a.lds(s, tag)
    pend = []
    for s in range(16):
        plan = {}
        def put(g, t): plan.setdefault(g, []).append(t)
        if s + 1 < 16:
            vm = 14 if s == 0 else (7 if s + 2 <= 15 else 0)
            put(1, f"s_waitcnt vmcnt({vm})"); put(1, "s_barrier")
        if s >= 1 and s + 3 < 16:
            for (pre, ins, post), g in zip(wo_tile(s + 3), [3, 6, 10, 14, 18, 22, 26]):
                for t in pre: put(g - 1, t)
                for t in ins + post: put(g, t)
        if s == 15 and WARM_MOE:
            put(2, f"s_cmp_eq_u32 {sr(S_W)}, 1"); put(2, "s_cselect_b32 s4, s62, s60"); put(2, "s_cselect_b32 s5, s63, s61")
            put(3, f"s_cmp_ge_u32 {sr(S_W)}, 2"); put(3, "s_cselect_b32 s4, s64, s4"); put(3, "s_cselect_b32 s5, s65, s5")
            put(4, f"s_mov_b32 s6, {448 * 3584}"); put(4, "s_mov_b32 s7, 0x20000")
            put(5, f"s_mul_i32 {sr(T2)}, s2, {49 * 128}"); put(5, "v_lshlrev_b32 v4, 7, v0")
            put(7, f"buffer_load_dword v5, v4, s[4:7], {sr(T2)} offen")
        hq = []
        if s < 8:
            hq = [(f"ds_read_b128 {ar(((8 + s) * 4 + qb) * 4, 4)}, v14 offset:{((8 + s) * 4 + qb) * 1024}", ("ox", 8 + s)) for qb in range(4)]
        for i in range(28):
            j, qb = i >> 2, i & 3
            absf = 7 * s + j
            if qb == 0: a.need(("of", absf))
            if i == 0 and s >= 8: a.need(("ox", s))
            if hq and i % 7 == 3:
                t, tag = hq.pop(0); a.lds(t, tag)
            acc = vr(OACC + 16 * j + 4 * qb, 4)
            a.i(f"v_mfma_f32_16x16x32_bf16 {acc}, {vr(FR + 4 * (absf % 4), 4)}, {ar((s * 4 + qb) * 4, 4)}, {'0' if s == 0 else acc}")
            if qb == 0 and absf + PF < NF: pend += fread(absf + PF)
            for t in plan.pop(i, []): a.i(t)
            k = 0
            while pend and k < 2:
                t, tag = pend.pop(0); a.lds(t, tag); k += 1
        assert not plan, plan

def store_partials(a):
    a.i("s_barrier")
    a.i("s_nop 7")
    a.i("v_and_b32 v1, 15, v0"); a.i(f"v_mul_u32_u24 v1, {TSTR}, v1"); a.i("v_lshrrev_b32 v2, 4, v0"); a.i("v_lshl_add_u32 v1, v2, 3, v1")
    a.i(f"s_mul_i32 {sr(T0)}, {sr(S_W)}, 224"); a.i(f"v_add_u32 v1, {sr(T0)}, v1")
    n = 0
    for j in range(7):
        for qb in range(4):
            x = OACC + 16 * j + 4 * qb; t = 96 + 2 * (n % 8); n += 1
            a.i(f"v_cvt_pk_bf16_f32 {vr(t)}, {vr(x)}, {vr(x + 1)}")
            a.i(f"v_cvt_pk_bf16_f32 {vr(t + 1)}, {vr(x + 2)}, {vr(x + 3)}")
            a.lds(f"ds_write_b64 v1, {vr(t, 2)} offset:{TB + 16 * TSTR * qb + 32 * j}")
    a.lds_drain(); a.i("s_barrier")
    a.i("v_lshlrev_b32 v1, 4, v0")
    a.i(f"s_mul_i32 {sr(T0)}, {sr(S_W)}, {16 * TSTR}"); a.i(f"v_add_u32 v2, {sr(T0)}, v1")
    a.i(f"s_lshl_b32 {sr(T0)}, {sr(S_QW)}, 6"); a.i(f"s_lshl_b32 {sr(T1)}, {sr(S_W)}, 4"); a.i(f"s_add_u32 {sr(T0)}, {sr(T0)}, {sr(T1)}")
    a.i(f"s_lshl_b32 {sr(T1)}, {sr(S_G)}, 11"); a.i(f"s_add_u32 {sr(T0)}, {sr(T0)}, {sr(T1)}")
    a.i(f"s_mul_i32 {sr(T0)}, {sr(T0)}, 896"); a.i(f"s_add_u32 {sr(T0)}, {sr(T0)}, {WS_PART}")
    a.i("v_cmp_gt_u32 vcc, 56, v0"); a.i(f"s_and_saveexec_b64 s[46:47], vcc")
    for i in range(16):
        a.lds(f"ds_read_b128 {vr(128 + 4 * i, 4)}, v2 offset:{TB + TSTR * i}", ("tb", i))
    for i in range(16):
        a.need(("tb", i))
        a.i(f"s_add_u32 {sr(T1)}, {sr(T0)}, {896 * i}")
        a.i(f"buffer_store_dwordx4 {vr(128 + 4 * i, 4)}, v1, {sr(SRD_WS, 4)}, {sr(T1)} offen")
    a.i("s_mov_b64 exec, s[46:47]")

def dump_regs(a, kind, first, n, slot):
    a.i("s_nop 15")
    a.i("s_mov_b32 s60, s56"); a.i("s_mov_b32 s61, s57"); a.i("s_mov_b32 s62, 0x10000000"); a.i("s_mov_b32 s63, 0x20000")
    a.i(f"s_lshl_b32 s58, s2, 2"); a.i(f"s_add_u32 s58, s58, {sr(S_W)}"); a.i("s_lshl_b32 s58, s58, 16")
    a.i(f"s_add_u32 s58, s58, {0x8000000 + slot * 0x4000000}")
    a.i("v_lshlrev_b32 v15, 2, v0")
    for r in range(n):
        a.i(f"s_add_u32 s59, s58, {256 * r}")
        if kind == 'a':
            a.i(f"v_accvgpr_read_b32 v1, {ar(first + r)}"); a.i(f"buffer_store_dword v1, v15, s[60:63], s59 offen"); a.i("s_nop 1")
        else:
            a.i(f"buffer_store_dword {vr(first + r)}, v15, s[60:63], s59 offen")
    a.i("s_waitcnt vmcnt(0)")

STAMPS = []
def stamp(a, cfg, name):
    if not getattr(cfg, 'stamps', 0): return
    k = len(STAMPS); STAMPS.append(name)
    if cfg.stamps == 2:
        if name in ('modv', 'xarr', 'ln'): return
        hdbg(a, 1, 1 + k, 72, 1, 2)
        return
    a.i(f"s_memrealtime s[{72 + 2 * k}:{73 + 2 * k}]")

def stamps_out(a, cfg):
    if getattr(cfg, 'stamps', 0) != 1: return
    a.i("s_waitcnt lgkmcnt(0)")
    a.i("s_mov_b32 s60, s56"); a.i("s_mov_b32 s61, s57"); a.i("s_mov_b32 s62, 0x10000000"); a.i("s_mov_b32 s63, 0x20000")
    a.i(f"s_lshl_b32 s58, s2, 2"); a.i(f"s_add_u32 s58, s58, {sr(S_W)}"); a.i("s_lshl_b32 s58, s58, 7"); a.i("s_add_u32 s58, s58, 0x6000000")
    a.i("v_mov_b32 v15, 0")
    for k in range(len(STAMPS)):
        a.i(f"v_mov_b32 v14, s{72 + 2 * k}")
        a.i(f"buffer_store_dword v14, v15, s[60:63], s58 offen offset:{4 * k}")
        a.i("s_nop 1")

def gen_k1(a, cfg, stop=None):
    n = "attn_kernel"
    kstart(a, n)
    a.i("s_cmp_ge_u32 s2, 256"); a.i("s_cbranch_scc1 K1_DONE")
    stamp(a, cfg, 'start')
    k1_setup(a); k1_srds(a)
    prologue(a, cfg)
    if getattr(cfg, 'dbg', 0): dump_regs(a, 'a', 0, 224, 0)
    stamp(a, cfg, 'hfrag')
    qproj(a)
    stamp(a, cfg, 'qproj')
    qexchange(a)
    if getattr(cfg, 'dbg', 0): dump_regs(a, 'v', 128, 128, 1)
    stamp(a, cfg, 'qx')
    core = attention(a, cfg)
    stamp(a, cfg, 'attn')
    merge(a, core, cfg)
    oproj(a)
    stamp(a, cfg, 'oproj')
    store_partials(a)
    a.i("s_waitcnt vmcnt(0)")
    stamp(a, cfg, 'store')
    stamps_out(a, cfg)
    a.label("K1_DONE")
    a.i("s_endpgm")
    core.emit_rare()
    a.label("K1_END")
    return kdesc(n, vgpr=512, accum=256, sgpr=102), 256, 163840
```

```python
from asmlib import *

WS_A1 = 0
WS_S1 = 1792
WS_GA = 4096; WS_A2 = 5120; WS_SB = 6144; WS_GB = 7168
WS_R = 8192
WS_IDX = 16384
WS_RSEL = 16448
WS_GU = 20480
WS_STAT = 0x10000
WS_SYNC = 0x18000
WS_X1 = 0x100000
WS_H2 = 0x300000
WS_PART = 0x800000
WS_SIZE = 0x10000000
QSCALE = 1.4426950408889634 / 16
HD = False

import struct
def f2u(x): return struct.unpack('<I', struct.pack('<f', x))[0]

def kstart(a, name):
    a.raw(f".globl {name}\n.p2align 8\n.type {name},@function\n{name}:")

def srd(a, dst, ptr, size, off=0):
    if off == 0:
        a.i(f"s_mov_b32 {sr(dst)}, {sr(ptr)}"); a.i(f"s_mov_b32 {sr(dst + 1)}, {sr(ptr + 1)}")
    else:
        a.i(f"s_add_u32 {sr(dst)}, {sr(ptr)}, {off}"); a.i(f"s_addc_u32 {sr(dst + 1)}, {sr(ptr + 1)}, 0")
    a.i(f"s_mov_b32 {sr(dst + 2)}, {size}"); a.i(f"s_mov_b32 {sr(dst + 3)}, 0x20000")

def hdbg(a, launch, word, sb, va, vb, wg=0):
    L = a.newlabel("HD")
    a.i(f"s_cmp_lg_u32 s2, {wg}"); a.i(f"s_cbranch_scc1 {L}")
    a.i(f"s_memrealtime s[{sb + 4}:{sb + 5}]"); a.i(f"s_load_dwordx2 s[{sb}:{sb + 1}], s[0:1], 104")
    a.i("s_waitcnt lgkmcnt(0)")
    a.i(f"s_add_u32 s{sb}, s{sb}, {512 * (3 - launch)}"); a.i(f"s_addc_u32 s{sb + 1}, s{sb + 1}, 0")
    a.i(f"s_mov_b32 s{sb + 2}, 256"); a.i(f"s_mov_b32 s{sb + 3}, 0x20000")
    a.i(f"v_mov_b32 v{va}, {4 * word}"); a.i(f"v_mov_b32 v{vb}, s{sb + 4}")
    a.i(f"buffer_store_dword v{vb}, v{va}, s[{sb}:{sb + 3}], 0 offen")
    a.label(L)

def bf_lo(a, d, s): a.i(f"v_lshlrev_b32 {vr(d)}, 16, {vr(s)}")
def bf_hi(a, d, s): a.i(f"v_and_b32 {vr(d)}, 0xffff0000, {vr(s)}")
def round_bf(a, d, s, tmp=None):
    a.i(f"v_cvt_pk_bf16_f32 {vr(d)}, {vr(s)}, {vr(s)}")
    a.i(f"v_lshlrev_b32 {vr(d)}, 16, {vr(d)}")

def wave_sum(a, v, t, n=1):
    for ctl in ("quad_perm:[1,0,3,2]", "quad_perm:[2,3,0,1]", "row_half_mirror", "row_mirror"):
        a.i("s_nop 1")
        a.i(f"v_add_f32_dpp {vr(v)}, {vr(v)}, {vr(v)} {ctl} row_mask:0xf bank_mask:0xf")
    for sw in ("v_permlane16_swap_b32", "v_permlane32_swap_b32"):
        a.i(f"v_mov_b32 {vr(t)}, {vr(v)}")
        a.i("s_nop 1")
        a.i(f"{sw} {vr(v)}, {vr(t)}")
        a.i("s_nop 1")
        a.i(f"v_add_f32 {vr(v)}, {vr(v)}, {vr(t)}")

def sigmoid(a, d, x, t):
    a.i(f"v_mul_f32 {vr(t)}, {hex(f2u(-1.4426950408889634))}, {vr(x)}")
    a.i(f"v_exp_f32 {vr(t)}, {vr(t)}")
    a.i("s_nop 0")
    a.i(f"v_add_f32 {vr(t)}, 1.0, {vr(t)}")
    a.i(f"v_rcp_f32 {vr(d)}, {vr(t)}")
    a.i("s_nop 0")

def gen_k0(a, codewarm=0):
    n = "mod_kernel"
    kstart(a, n)
    if HD: hdbg(a, 0, 0, 32, 60, 61)
    a.i("s_cmp_ge_u32 s2, 260"); a.i("s_cbranch_scc1 K0_DONE")
    a.i("s_cmp_ge_u32 s2, 148"); a.i("s_cbranch_scc1 K0_WARM")
    a.i("s_cmp_ge_u32 s2, 84"); a.i("s_cbranch_scc1 K0_STAT")
    a.i("s_load_dwordx4 s[4:7], s[0:1], 80")
    a.i("s_load_dwordx2 s[8:9], s[0:1], 112")
    a.i("v_and_b32 v1, 3, v0")
    a.i("v_lshrrev_b32 v2, 2, v0")
    a.i("v_mul_u32_u24 v3, 14, v2")
    a.i("v_mul_u32_u24 v4, 37632, v2")
    a.i("v_lshl_add_u32 v4, v1, 4, v4")
    a.i("s_lshl_b32 s3, s2, 6")
    a.i("v_add_u32 v4, s3, v4")
    a.i("s_waitcnt lgkmcnt(0)")
    srd(a, 12, 4, 896); srd(a, 16, 6, 448 * 5376); srd(a, 20, 8, WS_SIZE)
    for i in range(7):
        a.i(f"buffer_load_ushort {vr(8 + i)}, v3, s[12:15], 0 offen offset:{2 * i}")
    for i in range(7):
        a.i(f"s_mov_b32 s24, {5376 * i}")
        a.i(f"buffer_load_dwordx4 {vr(16 + 4 * i, 4)}, v4, s[16:19], s24 offen")
    a.i("s_waitcnt vmcnt(7)")
    for i in range(7):
        x = 8 + i
        a.i(f"v_lshlrev_b32 {vr(x)}, 16, {vr(x)}")
        sigmoid(a, 5, x, 6)
        a.i(f"v_mul_f32 {vr(x)}, {vr(x)}, v5")
        round_bf(a, x, x)
    for j in range(8): a.i(f"v_mov_b32 {vr(48 + j)}, 0")
    for i in range(7):
        a.i(f"s_waitcnt vmcnt({6 - i})")
        for j in range(4):
            bf_lo(a, 5, 16 + 4 * i + j); bf_hi(a, 6, 16 + 4 * i + j)
            a.i(f"v_fmac_f32 {vr(48 + 2 * j)}, {vr(8 + i)}, v5")
            a.i(f"v_fmac_f32 {vr(48 + 2 * j + 1)}, {vr(8 + i)}, v6")
    a.i("v_lshlrev_b32 v7, 7, v2"); a.i("v_lshl_add_u32 v7, v1, 5, v7")
    a.i("ds_write_b128 v7, v[48:51]"); a.i("ds_write_b128 v7, v[52:55] offset:16")
    a.i("s_waitcnt lgkmcnt(0)"); a.i("s_barrier")
    a.i("v_cmp_gt_u32 vcc, 32, v0"); a.i("s_and_saveexec_b64 s[26:27], vcc")
    a.i("s_cbranch_execz K0_DONE")
    a.i("v_lshlrev_b32 v7, 2, v0")
    for b in range(4):
        for j in range(16):
            a.i(f"ds_read_b32 {vr(16 + j)}, v7 offset:{128 * (16 * b + j)}")
        a.i("s_waitcnt lgkmcnt(0)")
        if b == 0: a.i("v_mov_b32 v8, 0")
        for j in range(0, 16, 4):
            a.i(f"v_add_f32 {vr(16 + j)}, {vr(16 + j)}, {vr(17 + j)}")
            a.i(f"v_add_f32 {vr(18 + j)}, {vr(18 + j)}, {vr(19 + j)}")
            a.i(f"v_add_f32 {vr(16 + j)}, {vr(16 + j)}, {vr(18 + j)}")
            a.i(f"v_add_f32 v8, v8, {vr(16 + j)}")
    round_bf(a, 8, 8)
    a.i("s_mul_i32 s24, s2, 4682"); a.i("s_lshr_b32 s24, s24, 16")
    a.i("s_mul_i32 s25, s24, 14"); a.i("s_sub_u32 s25, s2, s25"); a.i("s_lshl_b32 s25, s25, 5")
    a.i("v_add_u32 v9, s25, v0")
    a.i("v_add_f32 v10, 1.0, v8"); round_bf(a, 10, 10)
    a.i(f"s_mov_b32 s28, {hex(f2u(QSCALE))}")
    a.i("s_cmp_eq_u32 s24, 0"); a.i("s_cbranch_scc1 K0_S0")
    a.i("s_cmp_eq_u32 s24, 1"); a.i("s_cbranch_scc1 K0_S1")
    a.i("s_cmp_eq_u32 s24, 4")
    a.i("s_cbranch_scc0 K0_NB")
    a.i("v_mov_b32 v8, v10")
    a.label("K0_NB")
    a.i("v_lshrrev_b32 v8, 16, v8")
    a.i(f"s_mov_b32 s29, {WS_GA}")
    a.i("s_cmp_eq_u32 s24, 3"); a.i(f"s_cselect_b32 s29, {WS_SB}, s29")
    a.i("s_cmp_eq_u32 s24, 4"); a.i(f"s_cselect_b32 s29, {WS_A2}, s29")
    a.i("s_cmp_eq_u32 s24, 5"); a.i(f"s_cselect_b32 s29, {WS_GB}, s29")
    a.i("v_lshlrev_b32 v9, 1, v9")
    a.i("buffer_store_short v8, v9, s[20:23], s29 offen")
    a.i("s_branch K0_END")
    a.label("K0_S0")
    a.i("v_mul_f32 v8, s28, v8"); a.i("v_lshlrev_b32 v9, 2, v9")
    a.i(f"buffer_store_dword v8, v9, s[20:23], 0 offen offset:{WS_S1}")
    a.i("s_branch K0_END")
    a.label("K0_S1")
    a.i("v_mul_f32 v8, s28, v10"); a.i("v_lshlrev_b32 v9, 2, v9")
    a.i(f"buffer_store_dword v8, v9, s[20:23], 0 offen offset:{WS_A1}")
    a.label("K0_END")
    a.i("s_waitcnt vmcnt(0)")
    a.label("K0_DONE")
    a.i("s_endpgm")
    a.label("K0_WARM")
    a.i("s_load_dwordx2 s[4:5], s[0:1], 24")
    a.i("s_sub_u32 s3, s2, 148"); a.i("s_lshl_b32 s3, s3, 15"); a.i("v_lshlrev_b32 v1, 7, v0")
    a.i("s_waitcnt lgkmcnt(0)")
    srd(a, 8, 4, 448 * 8192)
    a.i("buffer_load_dword v2, v1, s[8:11], s3 offen")
    if codewarm & 2:
        a.i("s_cmp_ge_u32 s2, 151"); a.i("s_cbranch_scc1 K0_WE")
        a.i("s_getpc_b64 s[12:13]")
        a.label("K0_PC")
        a.i("s_mov_b32 s14, ALL_END - K0_PC"); a.i("s_mov_b32 s15, 0x20000")
        a.i("buffer_load_dword v3, v1, s[12:15], s3 offen")
        a.label("K0_WE")
    a.i("s_endpgm")
    a.label("K0_STAT")
    a.i("s_load_dwordx2 s[4:5], s[0:1], 0"); a.i("s_load_dwordx2 s[6:7], s[0:1], 112")
    a.i("v_lshrrev_b32 v1, 3, v0"); a.i("s_sub_u32 s3, s2, 84"); a.i("s_lshl_b32 s3, s3, 5"); a.i("v_add_u32 v1, s3, v1")
    a.i("v_and_b32 v2, 7, v0"); a.i("v_mul_u32_u24 v3, 896, v1"); a.i("v_lshl_add_u32 v3, v2, 4, v3")
    a.i("s_waitcnt lgkmcnt(0)")
    srd(a, 8, 4, 2048 * 896); srd(a, 12, 6, 0x2000000)
    for i in range(7): a.i(f"buffer_load_dwordx4 {vr(8 + 4 * i, 4)}, v3, s[8:11], 0 offen offset:{128 * i}")
    a.i("s_cmp_lg_u32 s2, 84"); a.i("s_cbranch_scc1 K0_NZ")
    a.i("v_lshlrev_b32 v4, 7, v0"); a.i("v_mov_b32 v5, 0"); a.i(f"s_mov_b32 s16, {WS_SYNC}")
    a.i("v_cmp_gt_u32 vcc, 64, v0"); a.i("s_and_saveexec_b64 s[18:19], vcc")
    a.i("buffer_store_dword v5, v4, s[12:15], s16 offen")
    a.i("s_mov_b64 exec, s[18:19]")
    a.label("K0_NZ")
    a.i("s_cmp_lg_u32 s2, 85"); a.i("s_cbranch_scc1 K0_NF")
    a.i("v_lshlrev_b32 v4, 4, v0")
    for j in range(4): a.i(f"v_mov_b32 {vr(92 + j)}, -1")
    for j in range(7):
        a.i(f"s_mov_b32 s16, {WS_GU + 4096 * j}")
        a.i("buffer_store_dwordx4 v[92:95], v4, s[12:15], s16 offen")
    a.label("K0_NF")
    a.i("s_waitcnt vmcnt(0)")
    X = 40
    for i in range(7):
        for j in range(4):
            bf_lo(a, X + 8 * i + 2 * j, 8 + 4 * i + j); bf_hi(a, X + 8 * i + 2 * j + 1, 8 + 4 * i + j)
    def red8(v):
        for ctl in ("quad_perm:[1,0,3,2]", "quad_perm:[2,3,0,1]", "row_half_mirror"):
            a.i("s_nop 1"); a.i(f"v_add_f32_dpp {vr(v)}, {vr(v)}, {vr(v)} {ctl} row_mask:0xf bank_mask:0xf")
    a.i(f"v_pk_add_f32 v[4:5], {vr(X, 2)}, {vr(X + 2, 2)}")
    for k in range(4, 56, 2): a.i(f"v_pk_add_f32 v[4:5], v[4:5], {vr(X + k, 2)}")
    a.i("v_add_f32 v4, v4, v5"); red8(4)
    a.i(f"v_mul_f32 v4, {hex(f2u(-1.0 / 448))}, v4")
    for k in range(0, 56, 2): a.i(f"v_pk_add_f32 {vr(X + k, 2)}, {vr(X + k, 2)}, v[4:5] op_sel_hi:[1,0]")
    a.i(f"v_pk_mul_f32 v[6:7], {vr(X, 2)}, {vr(X, 2)}")
    for k in range(2, 56, 2): a.i(f"v_pk_fma_f32 v[6:7], {vr(X + k, 2)}, {vr(X + k, 2)}, v[6:7]")
    a.i("v_add_f32 v6, v6, v7"); red8(6)
    a.i(f"v_mul_f32 v6, {hex(f2u(1.0 / 448))}, v6"); a.i(f"v_add_f32 v6, {hex(f2u(1e-5))}, v6")
    a.i("v_rsq_f32 v6, v6"); a.i("s_nop 0"); a.i("v_mul_f32 v7, v4, v6")
    a.i("v_lshlrev_b32 v1, 3, v1"); a.i(f"s_mov_b32 s16, {WS_STAT}")
    a.i("v_cmp_eq_u32 vcc, 0, v2"); a.i("s_and_saveexec_b64 s[18:19], vcc")
    a.i("buffer_store_dwordx2 v[6:7], v1, s[12:15], s16 offen")
    a.i("s_endpgm")
    return kdesc(n, vgpr=96, accum=96, sgpr=40)

def gen_k2(a):
    n = "red_kernel"
    kstart(a, n)
    if HD: hdbg(a, 2, 12, 36, 120, 121)
    a.i("s_cmp_ge_u32 s2, 256"); a.i("s_cbranch_scc1 K2_DONE")
    a.i("s_load_dwordx2 s[4:5], s[0:1], 0")
    a.i("s_load_dwordx2 s[6:7], s[0:1], 48")
    a.i("s_load_dwordx2 s[8:9], s[0:1], 96")
    a.i("s_load_dwordx2 s[10:11], s[0:1], 112")
    a.i("v_lshrrev_b32 v1, 6, v0"); a.i("s_nop 0"); a.i("v_readfirstlane_b32 s3, v1")
    a.i("v_and_b32 v0, 63, v0")
    a.i("s_lshl_b32 s28, s2, 3"); a.i("s_add_u32 s28, s28, s3")
    a.i("s_mul_i32 s29, s28, 896")
    a.i("v_lshlrev_b32 v1, 4, v0")
    a.i("v_cmp_gt_u32 vcc, 56, v0"); a.i("v_mov_b32 v2, 0x7fff0000"); a.i("s_nop 0")
    a.i("v_cndmask_b32 v1, v2, v1, vcc")
    a.i("s_waitcnt lgkmcnt(0)")
    srd(a, 12, 4, 2048 * 896); srd(a, 16, 6, 896); srd(a, 20, 8, 2048 * 896); srd(a, 24, 10, 0x2000000)
    for g in range(8):
        a.i(f"s_add_u32 s30, s29, {WS_PART + g * 2048 * 896}")
        a.i(f"buffer_load_dwordx4 {vr(16 + 4 * g, 4)}, v1, s[24:27], s30 offen")
    a.i(f"buffer_load_dwordx4 v[48:51], v1, s[12:15], s29 offen")
    for k, off in enumerate((WS_GA, WS_A2, WS_SB, WS_GB)):
        a.i(f"s_mov_b32 s30, {off}")
        a.i(f"buffer_load_dwordx4 {vr(52 + 4 * k, 4)}, v1, s[24:27], s30 offen")
    a.i(f"buffer_load_dwordx4 v[68:71], v1, s[16:19], 0 offen")
    for g in range(8):
        a.i(f"s_waitcnt vmcnt({13 - g})")
        for j in range(4):
            if g == 0:
                bf_lo(a, 72 + 2 * j, 16 + j); bf_hi(a, 73 + 2 * j, 16 + j)
            else:
                bf_lo(a, 4, 16 + 4 * g + j); bf_hi(a, 5, 16 + 4 * g + j)
                a.i(f"v_add_f32 {vr(72 + 2 * j)}, {vr(72 + 2 * j)}, v4")
                a.i(f"v_add_f32 {vr(73 + 2 * j)}, {vr(73 + 2 * j)}, v5")
    a.i("s_waitcnt vmcnt(0)")
    def unpack(dst, src):
        for j in range(4):
            bf_lo(a, dst + 2 * j, src + j); bf_hi(a, dst + 2 * j + 1, src + j)
    unpack(80, 48)
    unpack(88, 52)
    for j in range(8):
        round_bf(a, 72 + j, 72 + j)
        a.i(f"v_mul_f32 {vr(72 + j)}, {vr(88 + j)}, {vr(72 + j)}")
        round_bf(a, 72 + j, 72 + j)
        a.i(f"v_add_f32 {vr(80 + j)}, {vr(80 + j)}, {vr(72 + j)}")
        round_bf(a, 80 + j, 80 + j)
    for j in range(4):
        a.i(f"v_cvt_pk_bf16_f32 {vr(16 + j)}, {vr(80 + 2 * j)}, {vr(81 + 2 * j)}")
    a.i(f"s_add_u32 s30, s29, {WS_X1}")
    a.i("buffer_store_dwordx4 v[16:19], v1, s[24:27], s30 offen")
    a.i("v_add_f32 v4, v80, v81")
    for j in range(2, 8): a.i(f"v_add_f32 v4, v4, {vr(80 + j)}")
    wave_sum(a, 4, 5)
    a.i(f"v_mul_f32 v4, {hex(f2u(1.0 / 448))}, v4")
    for j in range(8): a.i(f"v_sub_f32 {vr(96 + j)}, {vr(80 + j)}, v4")
    a.i("v_mul_f32 v6, v96, v96")
    for j in range(1, 8): a.i(f"v_fmac_f32 v6, {vr(96 + j)}, {vr(96 + j)}")
    a.i("v_cmp_gt_u32 vcc, 56, v0"); a.i("s_nop 1")
    a.i("v_cndmask_b32 v6, 0, v6, vcc")
    wave_sum(a, 6, 5)
    a.i(f"v_mul_f32 v6, {hex(f2u(1.0 / 448))}, v6")
    a.i(f"v_add_f32 v6, {hex(f2u(1e-5))}, v6")
    a.i("v_rsq_f32 v6, v6"); a.i("s_nop 0")
    unpack(88, 56)
    unpack(104, 60)
    for j in range(8):
        a.i(f"v_mul_f32 {vr(96 + j)}, {vr(96 + j)}, v6")
        a.i(f"v_fma_f32 {vr(96 + j)}, {vr(96 + j)}, {vr(88 + j)}, {vr(104 + j)}")
        round_bf(a, 96 + j, 96 + j)
    for j in range(4):
        a.i(f"v_cvt_pk_bf16_f32 {vr(20 + j)}, {vr(96 + 2 * j)}, {vr(97 + 2 * j)}")
    a.i(f"s_add_u32 s30, s29, {WS_H2}")
    a.i("buffer_store_dwordx4 v[20:23], v1, s[24:27], s30 offen")
    unpack(88, 68)
    a.i("v_mul_f32 v7, v96, v88")
    for j in range(1, 8): a.i(f"v_fmac_f32 v7, {vr(96 + j)}, {vr(88 + j)}")
    wave_sum(a, 7, 5)
    round_bf(a, 7, 7)
    unpack(88, 64)
    for j in range(8):
        a.i(f"v_mul_f32 {vr(88 + j)}, {vr(88 + j)}, {vr(96 + j)}")
        round_bf(a, 88 + j, 88 + j)
        a.i(f"v_add_f32 {vr(88 + j)}, {vr(88 + j)}, {vr(80 + j)}")
    for j in range(4):
        a.i(f"v_cvt_pk_bf16_f32 {vr(24 + j)}, {vr(88 + 2 * j)}, {vr(89 + 2 * j)}")
    a.i("buffer_store_dwordx4 v[24:27], v1, s[20:23], s29 offen")
    a.i("v_cmp_eq_u32 vcc, 0, v0"); a.i("s_and_saveexec_b64 s[32:33], vcc")
    a.i("s_lshl_b32 s30, s28, 2"); a.i(f"s_add_u32 s30, s30, {WS_R}")
    a.i("v_mov_b32 v8, 0")
    a.i("buffer_store_dword v7, v8, s[24:27], s30 offen")
    a.i("s_mov_b64 exec, s[32:33]")
    a.i("s_waitcnt vmcnt(0)")
    if HD: hdbg(a, 2, 13, 36, 120, 121)
    a.label("K2_DONE")
    a.i("s_endpgm")
    return kdesc(n, vgpr=128, accum=128, sgpr=48)

def wave_max_u32(a, v, t):
    for ctl in ("quad_perm:[1,0,3,2]", "quad_perm:[2,3,0,1]", "row_half_mirror", "row_mirror"):
        a.i("s_nop 1")
        a.i(f"v_max_u32_dpp {vr(v)}, {vr(v)}, {vr(v)} {ctl} row_mask:0xf bank_mask:0xf")
    for sw in ("v_permlane16_swap_b32", "v_permlane32_swap_b32"):
        a.i(f"v_mov_b32 {vr(t)}, {vr(v)}")
        a.i("s_nop 1")
        a.i(f"{sw} {vr(v)}, {vr(t)}")
        a.i("s_nop 1")
        a.i(f"v_max_u32 {vr(v)}, {vr(v)}, {vr(t)}")

def gen_k3(a):
    n = "gate_kernel"
    NWG = 112
    L_CAND = 28672; L_SEL = 28672 + 128
    kstart(a, n)
    a.i(f"s_cmp_ge_u32 s2, {NWG}"); a.i("s_cbranch_scc1 K3_DONE")
    a.i("s_load_dwordx4 s[4:7], s[0:1], 56")
    a.i("s_load_dwordx2 s[8:9], s[0:1], 112")
    a.i("v_lshrrev_b32 v1, 6, v0"); a.i("s_nop 0"); a.i("v_readfirstlane_b32 s3, v1")
    a.i("v_and_b32 v2, 63, v0")
    a.i("s_waitcnt lgkmcnt(0)")
    srd(a, 20, 8, 0x2000000)
    a.i("v_lshlrev_b32 v3, 5, v0")
    a.i(f"s_mov_b32 s24, {WS_R}")
    a.i("buffer_load_dwordx4 v[16:19], v3, s[20:23], s24 offen")
    a.i("buffer_load_dwordx4 v[20:23], v3, s[20:23], s24 offen offset:16")
    a.i("s_cmp_ge_u32 s3, 2")
    a.i("s_cselect_b32 s12, s6, s4"); a.i("s_cselect_b32 s13, s7, s5")
    a.i(f"s_mov_b32 s14, {448 * 3584}"); a.i("s_mov_b32 s15, 0x20000")
    a.i("v_lshrrev_b32 v4, 1, v2"); a.i("v_mul_u32_u24 v4, 3584, v4")
    a.i("v_and_b32 v5, 1, v2"); a.i("v_lshl_add_u32 v4, v5, 4, v4")
    a.i("s_lshl_b32 s25, s2, 5"); a.i("v_add_u32 v4, s25, v4")
    a.i("s_and_b32 s26, s3, 1"); a.i("s_mul_i32 s27, s26, 7")
    a.i("s_mul_i32 s28, s3, 7168")
    a.i(f"s_mul_i32 s27, s27, {32 * 3584}")
    for i in range(7):
        a.i(f"s_add_u32 m0, s28, {1024 * i}")
        a.i(f"s_add_u32 s29, s27, {32 * 3584 * i}")
        a.i("buffer_load_dwordx4 v4, s[12:15], s29 offen lds")
    a.i("s_waitcnt vmcnt(7)")
    a.i("v_lshlrev_b32 v6, 3, v0"); a.i("v_sub_u32 v6, 2047, v6")
    for j in range(8):
        k = 16 + j
        a.i(f"v_ashrrev_i32 v7, 31, {vr(k)}")
        a.i("v_or_b32 v7, 0x80000000, v7")
        a.i(f"v_xor_b32 {vr(k)}, {vr(k)}, v7")
        a.i(f"v_and_b32 {vr(k)}, 0xffff0000, {vr(k)}")
        a.i(f"v_subrev_u32 v7, {j}, v6")
        a.i(f"v_or_b32 {vr(k)}, {vr(k)}, v7")
    a.i("v_mov_b32 v9, 0")
    for rnd in range(8):
        a.i("v_max3_u32 v8, v16, v17, v18"); a.i("v_max3_u32 v8, v8, v19, v20")
        a.i("v_max3_u32 v8, v8, v21, v22"); a.i("v_max_u32 v8, v8, v23")
        wave_max_u32(a, 8, 7)
        a.i(f"v_cmp_eq_u32 s[30:31], {rnd}, v2")
        if rnd < 7:
            for j in range(0, 8, 2):
                a.i(f"v_cmp_eq_u32 s[32:33], {vr(16 + j)}, v8")
                a.i(f"v_cmp_eq_u32 s[34:35], {vr(17 + j)}, v8")
                a.i("s_nop 0")
                a.i(f"v_cndmask_b32 {vr(16 + j)}, {vr(16 + j)}, 0, s[32:33]")
                a.i(f"v_cndmask_b32 {vr(17 + j)}, {vr(17 + j)}, 0, s[34:35]")
        else:
            a.i("s_nop 1")
        a.i("v_cndmask_b32 v9, v9, v8, s[30:31]")
    a.i("s_lshl_b32 s29, s3, 5"); a.i("v_lshl_add_u32 v7, v2, 2, s29"); a.i(f"v_add_u32 v7, {L_CAND}, v7")
    a.i("v_cmp_gt_u32 vcc, 8, v2"); a.i("s_and_saveexec_b64 s[36:37], vcc")
    a.i("ds_write_b32 v7, v9")
    a.i("s_mov_b64 exec, s[36:37]")
    a.i("s_waitcnt lgkmcnt(0) vmcnt(0)"); a.i("s_barrier")
    a.i("s_cmp_lg_u32 s3, 0"); a.i("s_cbranch_scc1 K3_DONE")
    a.i("v_and_b32 v7, 31, v2"); a.i("v_lshlrev_b32 v7, 2, v7"); a.i(f"v_add_u32 v7, {L_CAND}, v7")
    a.i("ds_read_b32 v9, v7")
    a.i(f"v_mov_b32 v10, {L_CAND}")
    for j in range(8): a.i(f"ds_read_b128 {vr(16 + 4 * j, 4)}, v10 offset:{16 * j}")
    a.i("s_waitcnt lgkmcnt(0)")
    a.i("v_mov_b32 v11, 0")
    for j in range(0, 32, 2):
        a.i(f"v_cmp_gt_u32 s[32:33], {vr(16 + j)}, v9")
        a.i(f"v_cmp_gt_u32 s[34:35], {vr(17 + j)}, v9")
        a.i("s_nop 0")
        a.i("v_addc_co_u32 v11, vcc, 0, v11, s[32:33]")
        a.i("v_addc_co_u32 v11, vcc, 0, v11, s[34:35]")
    a.i("v_cmp_gt_u32 s[32:33], 8, v11"); a.i("v_cmp_gt_u32 s[34:35], 32, v2")
    a.i("s_and_b64 s[32:33], s[32:33], s[34:35]")
    a.i("v_lshlrev_b32 v11, 2, v11"); a.i(f"v_add_u32 v11, {L_SEL}, v11")
    a.i("s_and_saveexec_b64 s[36:37], s[32:33]")
    a.i("ds_write_b32 v11, v9")
    a.i("s_mov_b64 exec, s[36:37]")
    a.i("s_waitcnt lgkmcnt(0)")
    a.i("v_and_b32 v7, 7, v2"); a.i("v_lshlrev_b32 v7, 2, v7"); a.i(f"v_add_u32 v7, {L_SEL}, v7")
    a.i("ds_read_b32 v9, v7")
    a.i("s_waitcnt lgkmcnt(0)")
    a.i("v_and_b32 v10, 0xffff, v9"); a.i("v_sub_u32 v10, 2047, v10")
    a.i("v_mul_u32_u24 v11, 896, v10"); a.i("v_lshrrev_b32 v12, 4, v2"); a.i("v_lshl_add_u32 v11, v12, 4, v11")
    a.i(f"s_mov_b32 s24, {WS_H2}")
    for ks in range(14):
        a.i(f"buffer_load_dwordx4 {vr(16 + 4 * ks, 4)}, v11, s[20:23], s24 offen offset:{64 * ks}")
    a.i("s_cmp_lg_u32 s2, 0"); a.i("s_cbranch_scc1 K3_NOPUB")
    a.i("v_lshrrev_b32 v13, 16, v9")
    a.i("v_and_b32 v14, 0x8000, v13"); a.i("v_cmp_ne_u32 vcc, 0, v14")
    a.i("v_xor_b32 v14, 0x8000, v13"); a.i("v_xor_b32 v15, 0xffff, v13")
    a.i("v_cndmask_b32 v13, v15, v14, vcc"); a.i("v_lshlrev_b32 v13, 16, v13")
    a.i("v_lshlrev_b32 v14, 2, v2")
    a.i("v_cmp_gt_u32 vcc, 8, v2"); a.i("s_and_saveexec_b64 s[36:37], vcc")
    a.i(f"s_mov_b32 s24, {WS_IDX}")
    a.i("buffer_store_dword v10, v14, s[20:23], s24 offen")
    a.i("buffer_store_dword v13, v14, s[20:23], s24 offen offset:64")
    a.i("s_mov_b64 exec, s[36:37]")
    a.label("K3_NOPUB")
    a.i("v_bfe_u32 v13, v2, 2, 2"); a.i("v_lshl_add_u32 v13, v12, 3, v13"); a.i("v_lshlrev_b32 v13, 5, v13")
    a.i("v_and_b32 v14, 3, v2"); a.i("v_lshl_add_u32 v13, v14, 3, v13")
    for m in range(2):
        for ks in range(14):
            for r2 in range(2):
                a.i(f"ds_read_b64_tr_b16 {vr(80 + 56 * m + 4 * ks + 2 * r2, 2)}, v13 offset:{14336 * m + 1024 * ks + 128 * r2}")
            if ks % 7 == 6: a.i("s_waitcnt lgkmcnt(0)")
    a.i("s_waitcnt vmcnt(0)")
    for ks in range(14):
        for m in range(2):
            acc = vr(72 + 4 * m, 4)
            a.i(f"v_mfma_f32_16x16x32_bf16 {acc}, {vr(80 + 56 * m + 4 * ks, 4)}, {vr(16 + 4 * ks, 4)}, {'0' if ks == 0 else acc}")
    a.i("s_nop 15")
    for r in range(4):
        round_bf(a, 72 + r, 72 + r); round_bf(a, 76 + r, 76 + r)
        sigmoid(a, 5, 72 + r, 6)
        a.i(f"v_mul_f32 {vr(72 + r)}, {vr(72 + r)}, v5"); round_bf(a, 72 + r, 72 + r)
        a.i(f"v_mul_f32 {vr(72 + r)}, {vr(72 + r)}, {vr(76 + r)}")
    a.i("v_cvt_pk_bf16_f32 v76, v72, v73"); a.i("v_cvt_pk_bf16_f32 v77, v74, v75")
    a.i("v_and_b32 v5, 15, v2"); a.i("v_mul_u32_u24 v6, 3584, v5"); a.i("v_lshl_add_u32 v6, v12, 3, v6")
    a.i(f"s_lshl_b32 s24, s2, 5"); a.i(f"s_add_u32 s24, s24, {WS_GU}")
    a.i("v_cmp_gt_u32 vcc, 8, v5"); a.i("s_and_saveexec_b64 s[36:37], vcc")
    a.i("buffer_store_dwordx2 v[76:77], v6, s[20:23], s24 offen")
    a.i("s_mov_b64 exec, s[36:37]")
    a.i("s_waitcnt vmcnt(0)")
    a.label("K3_DONE")
    a.i("s_endpgm")
    return kdesc(n, vgpr=200, accum=200, sgpr=48), NWG, 28672 + 256

def gen_k4(a):
    n = "down_kernel"
    NWG = 28
    L_RED = 57344
    kstart(a, n)
    a.i(f"s_cmp_ge_u32 s2, {NWG}"); a.i("s_cbranch_scc1 K4_DONE")
    a.i("s_load_dwordx2 s[4:5], s[0:1], 72")
    a.i("s_load_dwordx2 s[6:7], s[0:1], 96")
    a.i("s_load_dwordx2 s[8:9], s[0:1], 112")
    a.i("v_lshrrev_b32 v1, 6, v0"); a.i("s_nop 0"); a.i("v_readfirstlane_b32 s3, v1")
    a.i("v_and_b32 v2, 63, v0")
    a.i("s_waitcnt lgkmcnt(0)")
    srd(a, 12, 4, 1792 * 896); srd(a, 16, 6, 2048 * 896); srd(a, 20, 8, 0x2000000)
    a.i("v_lshrrev_b32 v4, 1, v2"); a.i("v_mul_u32_u24 v4, 896, v4")
    a.i("v_and_b32 v5, 1, v2"); a.i("v_lshl_add_u32 v4, v5, 4, v4")
    a.i("s_lshl_b32 s25, s2, 5"); a.i("v_add_u32 v4, s25, v4")
    a.i(f"s_mul_i32 s27, s3, {448 * 896}"); a.i("s_mul_i32 s28, s3, 14336")
    for i in range(14):
        a.i(f"s_add_u32 m0, s28, {1024 * i}")
        a.i(f"s_add_u32 s29, s27, {32 * 896 * i}")
        a.i("buffer_load_dwordx4 v4, s[12:15], s29 offen lds")
    a.i("v_and_b32 v5, 7, v2"); a.i("v_mul_u32_u24 v6, 3584, v5"); a.i("v_lshrrev_b32 v12, 4, v2"); a.i("v_lshl_add_u32 v6, v12, 4, v6")
    a.i(f"s_mul_i32 s24, s3, 896"); a.i(f"s_add_u32 s24, s24, {WS_GU}")
    for ks in range(14):
        a.i(f"buffer_load_dwordx4 {vr(16 + 4 * ks, 4)}, v6, s[20:23], s24 offen offset:{64 * ks}")
    a.i("v_lshlrev_b32 v7, 2, v5"); a.i(f"s_mov_b32 s24, {WS_IDX}")
    a.i("buffer_load_dword v8, v7, s[20:23], s24 offen")
    a.i("buffer_load_dword v9, v7, s[20:23], s24 offen offset:64")
    a.i("v_bfe_u32 v13, v2, 2, 2"); a.i("v_lshl_add_u32 v13, v12, 3, v13"); a.i("v_lshlrev_b32 v13, 5, v13")
    a.i("v_and_b32 v14, 3, v2"); a.i("v_lshl_add_u32 v13, v14, 3, v13"); a.i("v_add_u32 v13, s28, v13")
    a.i("s_waitcnt vmcnt(0)")
    a.i("v_mul_u32_u24 v10, 896, v8"); a.i("v_lshl_add_u32 v10, v12, 3, v10"); a.i("v_add_u32 v10, s25, v10")
    a.i(f"s_mov_b32 s24, {WS_X1}"); a.i("buffer_load_dwordx2 v[76:77], v10, s[20:23], s24 offen")
    a.i(f"s_mov_b32 s24, {WS_H2}"); a.i("buffer_load_dwordx2 v[78:79], v10, s[20:23], s24 offen")
    a.i("v_lshlrev_b32 v11, 3, v12"); a.i("v_add_u32 v11, s25, v11")
    a.i(f"s_mov_b32 s24, {WS_GB}"); a.i("buffer_load_dwordx2 v[14:15], v11, s[20:23], s24 offen")
    for ks in range(14):
        for r2 in range(2):
            a.i(f"ds_read_b64_tr_b16 {vr(80 + 4 * ks + 2 * r2, 2)}, v13 offset:{1024 * ks + 128 * r2}")
        if ks % 7 == 6: a.i("s_waitcnt lgkmcnt(0)")
    for ks in range(14):
        a.i(f"v_mfma_f32_16x16x32_bf16 v[72:75], {vr(80 + 4 * ks, 4)}, {vr(16 + 4 * ks, 4)}, {'0' if ks == 0 else 'v[72:75]'}")
    a.i("s_nop 15")
    a.i("v_lshlrev_b32 v3, 4, v2"); a.i("s_lshl_b32 s24, s3, 10"); a.i(f"s_add_u32 s24, s24, {L_RED}"); a.i("v_add_u32 v3, s24, v3")
    a.i("ds_write_b128 v3, v[72:75]")
    a.i("s_waitcnt lgkmcnt(0)"); a.i("s_barrier")
    a.i("s_cmp_lg_u32 s3, 0"); a.i("s_cbranch_scc1 K4_DONE")
    for w in range(1, 4): a.i(f"ds_read_b128 {vr(16 + 4 * w, 4)}, v3 offset:{1024 * w}")
    a.i("s_waitcnt lgkmcnt(0) vmcnt(0)")
    sigmoid(a, 5, 9, 6); round_bf(a, 5, 5)
    for r in range(4):
        for w in range(1, 4): a.i(f"v_add_f32 {vr(72 + r)}, {vr(72 + r)}, {vr(16 + 4 * w + r)}")
        round_bf(a, 72 + r, 72 + r)
        a.i(f"v_mul_f32 {vr(72 + r)}, {vr(72 + r)}, v5"); round_bf(a, 72 + r, 72 + r)
    for half in range(2):
        bf_lo(a, 16 + 2 * half, 78 + half); bf_hi(a, 17 + 2 * half, 78 + half)
        bf_lo(a, 20 + 2 * half, 76 + half); bf_hi(a, 21 + 2 * half, 76 + half)
        bf_lo(a, 24 + 2 * half, 14 + half); bf_hi(a, 25 + 2 * half, 14 + half)
    for r in range(4):
        a.i(f"v_add_f32 {vr(72 + r)}, {vr(72 + r)}, {vr(16 + r)}"); round_bf(a, 72 + r, 72 + r)
        a.i(f"v_mul_f32 {vr(72 + r)}, {vr(72 + r)}, {vr(24 + r)}"); round_bf(a, 72 + r, 72 + r)
        a.i(f"v_add_f32 {vr(72 + r)}, {vr(72 + r)}, {vr(20 + r)}")
    a.i("v_cvt_pk_bf16_f32 v76, v72, v73"); a.i("v_cvt_pk_bf16_f32 v77, v74, v75")
    a.i("v_and_b32 v5, 15, v2")
    a.i("v_cmp_gt_u32 vcc, 8, v5"); a.i("s_and_saveexec_b64 s[36:37], vcc")
    a.i("buffer_store_dwordx2 v[76:77], v10, s[16:19], 0 offen")
    a.i("s_mov_b64 exec, s[36:37]")
    a.i("s_waitcnt vmcnt(0)")
    a.label("K4_DONE")
    a.i("s_endpgm")
    return kdesc(n, vgpr=144, accum=144, sgpr=48), NWG, L_RED + 4096

MST = []
def mstamp(a, on, name):
    if not on: return
    k = len(MST); MST.append(name)
    a.i(f"s_memrealtime s[{60 + 2 * k}:{61 + 2 * k}]")
def mstamps_out(a, on, which=0):
    if not on: return
    a.i("s_mov_b64 exec, -1")
    a.i("s_waitcnt lgkmcnt(0)")
    a.i("s_mov_b32 s52, s8"); a.i("s_mov_b32 s53, s9"); a.i("s_mov_b32 s54, 0x10000000"); a.i("s_mov_b32 s55, 0x20000")
    a.i("s_lshl_b32 s56, s2, 7"); a.i("s_add_u32 s56, s56, 0x6100000")
    a.i("v_mov_b32 v15, 0")
    for k in range(len(MST)):
        a.i(f"v_mov_b32 v14, s{60 + 2 * k}")
        a.i(f"buffer_store_dword v14, v15, s[52:55], s56 offen offset:{4 * k}")
        a.i("s_nop 1")

def gen_moe(a, st=False):
    n = "moe_kernel"
    NG = 112; NDOWN = 28; NWG = NG + NDOWN
    L_CAND = 57344; L_SEL = L_CAND + 128; L_RED = L_CAND + 256
    NSH = 8
    kstart(a, n)
    if HD: hdbg(a, 3, 14, 48, 210, 211)
    a.i(f"s_cmp_ge_u32 s2, {NWG}"); a.i("s_cbranch_scc1 KM_DONE")
    mstamp(a, st, 'start')
    a.i("s_load_dwordx4 s[4:7], s[0:1], 56")
    a.i("s_load_dwordx2 s[40:41], s[0:1], 72")
    a.i("s_load_dwordx2 s[42:43], s[0:1], 96")
    a.i("s_load_dwordx2 s[8:9], s[0:1], 112")
    a.i("v_lshrrev_b32 v1, 6, v0"); a.i("s_nop 0"); a.i("v_readfirstlane_b32 s3, v1")
    a.i("v_and_b32 v2, 63, v0")
    a.i("v_mov_b32 v201, 0x7fffffff")
    a.i("v_lshlrev_b32 v3, 5, v0")
    a.i("s_waitcnt lgkmcnt(0)")
    srd(a, 20, 8, 0x2000000)
    a.i(f"s_mov_b32 s24, {WS_R}")
    a.i("buffer_load_dwordx4 v[16:19], v3, s[20:23], s24 offen")
    a.i("buffer_load_dwordx4 v[20:23], v3, s[20:23], s24 offen offset:16")
    a.i("v_lshrrev_b32 v4, 1, v2"); a.i("v_and_b32 v6, 1, v2")
    a.i(f"s_cmp_ge_u32 s2, {NG}"); a.i("s_cbranch_scc1 KM_SD")
    a.i("s_cmp_ge_u32 s3, 2")
    a.i("s_cselect_b32 s12, s6, s4"); a.i("s_cselect_b32 s13, s7, s5")
    a.i(f"s_mov_b32 s14, {448 * 3584}"); a.i("s_mov_b32 s15, 0x20000")
    a.i("v_mul_u32_u24 v5, 3584, v4"); a.i("v_lshl_add_u32 v5, v6, 4, v5")
    a.i("s_lshl_b32 s25, s2, 5"); a.i("v_add_u32 v5, s25, v5")
    a.i("s_and_b32 s26, s3, 1"); a.i(f"s_mul_i32 s27, s26, {7 * 32 * 3584}")
    a.i("s_mul_i32 s28, s3, 7168"); a.i(f"s_mov_b32 s39, {32 * 3584}")
    a.i("s_branch KM_SJ")
    a.label("KM_SD")
    srd(a, 12, 40, 1792 * 896)
    a.i(f"s_sub_u32 s25, s2, {NG}"); a.i("s_lshl_b32 s25, s25, 5")
    a.i("v_mul_u32_u24 v5, 896, v4"); a.i("v_lshl_add_u32 v5, v6, 4, v5"); a.i("v_add_u32 v5, s25, v5")
    a.i(f"s_mul_i32 s27, s3, {448 * 896}"); a.i("s_mul_i32 s28, s3, 14336"); a.i(f"s_mov_b32 s39, {32 * 896}")
    a.label("KM_SJ")
    def wdma(i):
        a.i(f"s_add_u32 m0, s28, {1024 * i}")
        a.i("s_nop 0")
        a.i("buffer_load_dwordx4 v5, s[12:15], s27 offen lds")
        a.i("s_add_u32 s27, s27, s39")
    for i in range(7): wdma(i)
    a.i(f"s_cmp_lt_u32 s2, {NG}"); a.i("s_cbranch_scc1 KM_ND")
    a.i("s_waitcnt vmcnt(7)")
    for i in range(7, 14): wdma(i)
    a.i("s_branch KM_RA")
    a.label("KM_ND")
    a.i("s_waitcnt vmcnt(7)")
    a.label("KM_RA")
    mstamp(a, st, 'rarr')
    a.i("v_lshlrev_b32 v6, 3, v0"); a.i("v_sub_u32 v6, 2047, v6")
    for j in range(8):
        k = 16 + j
        a.i(f"v_ashrrev_i32 v7, 31, {vr(k)}")
        a.i("v_or_b32 v7, 0x80000000, v7")
        a.i(f"v_xor_b32 {vr(k)}, {vr(k)}, v7")
        a.i(f"v_and_b32 {vr(k)}, 0xffff0000, {vr(k)}")
        a.i(f"v_subrev_u32 v7, {j}, v6")
        a.i(f"v_or_b32 {vr(k)}, {vr(k)}, v7")
    net = [(0,1),(2,3),(4,5),(6,7),(0,2),(1,3),(4,6),(5,7),(1,2),(5,6),(0,4),(3,7),(1,5),(2,6),(1,4),(3,6),(2,4),(3,5),(3,4)]
    for x, y in net:
        a.i(f"v_max_u32 v7, {vr(16 + x)}, {vr(16 + y)}")
        a.i(f"v_min_u32 {vr(16 + y)}, {vr(16 + x)}, {vr(16 + y)}")
        a.i(f"v_mov_b32 {vr(16 + x)}, v7")
    a.i("v_mov_b32 v9, 0")
    for rnd in range(8):
        a.i("v_mov_b32 v8, v16")
        wave_max_u32(a, 8, 7)
        a.i(f"v_cmp_eq_u32 s[30:31], {rnd}, v2")
        if rnd < 7:
            a.i("v_cmp_eq_u32 vcc, v16, v8")
            a.i("s_nop 1")
            for j in range(7 - rnd):
                a.i(f"v_cndmask_b32 {vr(16 + j)}, {vr(16 + j)}, {vr(17 + j)}, vcc")
        else:
            a.i("s_nop 1")
        a.i("v_cndmask_b32 v9, v9, v8, s[30:31]")
    mstamp(a, st, 'rounds')
    a.i("s_lshl_b32 s29, s3, 5"); a.i("v_lshl_add_u32 v7, v2, 2, s29"); a.i(f"v_add_u32 v7, {L_CAND}, v7")
    a.i("v_cmp_gt_u32 vcc, 8, v2"); a.i("s_and_saveexec_b64 s[36:37], vcc")
    a.i("ds_write_b32 v7, v9")
    a.i("s_mov_b64 exec, s[36:37]")
    a.i("s_waitcnt lgkmcnt(0)")
    a.i("s_barrier")
    mstamp(a, st, 'bar1')
    a.i("s_cmp_lg_u32 s3, 0"); a.i("s_cbranch_scc1 KM_OTH")
    a.i("v_and_b32 v7, 31, v2"); a.i("v_lshlrev_b32 v7, 2, v7"); a.i(f"v_add_u32 v7, {L_CAND}, v7")
    a.i("ds_read_b32 v9, v7")
    a.i(f"v_mov_b32 v10, {L_CAND}")
    for j in range(8): a.i(f"ds_read_b128 {vr(16 + 4 * j, 4)}, v10 offset:{16 * j}")
    a.i("s_waitcnt lgkmcnt(0)")
    a.i("v_mov_b32 v11, 0")
    for j in range(0, 32, 2):
        a.i(f"v_cmp_gt_u32 s[32:33], {vr(16 + j)}, v9")
        a.i(f"v_cmp_gt_u32 s[34:35], {vr(17 + j)}, v9")
        a.i("s_nop 0")
        a.i("v_addc_co_u32 v11, vcc, 0, v11, s[32:33]")
        a.i("v_addc_co_u32 v11, vcc, 0, v11, s[34:35]")
    a.i("v_cmp_gt_u32 s[32:33], 8, v11"); a.i("v_cmp_gt_u32 s[34:35], 32, v2")
    a.i("s_and_b64 s[32:33], s[32:33], s[34:35]")
    a.i("v_lshlrev_b32 v11, 2, v11"); a.i(f"v_add_u32 v11, {L_SEL}, v11")
    a.i("s_and_saveexec_b64 s[36:37], s[32:33]")
    a.i("ds_write_b32 v11, v9")
    a.i("s_mov_b64 exec, s[36:37]")
    a.i("s_waitcnt lgkmcnt(0)")
    a.i("v_and_b32 v7, 7, v2"); a.i("v_lshlrev_b32 v7, 2, v7"); a.i(f"v_add_u32 v7, {L_SEL}, v7")
    a.i("ds_read_b32 v9, v7")
    a.i("s_waitcnt lgkmcnt(0)")
    mstamp(a, st, 'idx')
    a.i("v_and_b32 v10, 0xffff, v9"); a.i("v_sub_u32 v10, 2047, v10")
    a.i("v_mul_u32_u24 v11, 896, v10"); a.i("v_lshrrev_b32 v12, 4, v2")
    a.i(f"s_cmp_ge_u32 s2, {NG}"); a.i("s_cbranch_scc1 KM_DN0")
    a.i("v_lshl_add_u32 v200, v12, 4, v11")
    a.i(f"s_mov_b32 s24, {WS_H2}")
    for ks in range(14):
        a.i(f"buffer_load_dwordx4 {vr(16 + 4 * ks, 4)}, v200, s[20:23], s24 offen offset:{64 * ks}")
    a.i("s_waitcnt vmcnt(14)")
    a.i("s_barrier")
    a.i("v_bfe_u32 v13, v2, 2, 2"); a.i("v_lshl_add_u32 v13, v12, 3, v13"); a.i("v_lshlrev_b32 v13, 5, v13")
    a.i("v_and_b32 v14, 3, v2"); a.i("v_lshl_add_u32 v13, v14, 3, v13")
    for m in range(2):
        for ks in range(14):
            for r2 in range(2):
                a.i(f"ds_read_b64_tr_b16 {vr(80 + 56 * m + 4 * ks + 2 * r2, 2)}, v13 offset:{14336 * m + 1024 * ks + 128 * r2}")
            if ks % 7 == 6: a.i("s_waitcnt lgkmcnt(0)")
    a.i("s_waitcnt vmcnt(0)")
    mstamp(a, st, 'gath')
    for ks in range(14):
        for m in range(2):
            acc = vr(72 + 4 * m, 4)
            a.i(f"v_mfma_f32_16x16x32_bf16 {acc}, {vr(80 + 56 * m + 4 * ks, 4)}, {vr(16 + 4 * ks, 4)}, {'0' if ks == 0 else acc}")
    a.i("s_nop 7")
    for r in range(4):
        round_bf(a, 72 + r, 72 + r); round_bf(a, 76 + r, 76 + r)
        sigmoid(a, 5, 72 + r, 6)
        a.i(f"v_mul_f32 {vr(72 + r)}, {vr(72 + r)}, v5"); round_bf(a, 72 + r, 72 + r)
        a.i(f"v_mul_f32 {vr(72 + r)}, {vr(72 + r)}, {vr(76 + r)}")
    a.i("v_cvt_pk_bf16_f32 v76, v72, v73"); a.i("v_cvt_pk_bf16_f32 v77, v74, v75")
    a.i("v_and_b32 v5, 15, v2"); a.i("v_lshlrev_b32 v6, 4, v5")
    a.i("v_lshrrev_b32 v7, 1, v12"); a.i("v_lshl_add_u32 v6, v7, 7, v6"); a.i("v_and_b32 v7, 1, v12"); a.i("v_lshl_add_u32 v6, v7, 3, v6")
    a.i("s_lshr_b32 s24, s2, 1"); a.i("s_lshl_b32 s24, s24, 9"); a.i("s_and_b32 s26, s2, 1"); a.i("s_lshl_b32 s26, s26, 8")
    a.i("s_add_u32 s24, s24, s26"); a.i(f"s_add_u32 s24, s24, {WS_GU}")
    a.i("v_cmp_gt_u32 vcc, 8, v5"); a.i("s_and_saveexec_b64 s[36:37], vcc")
    a.i("buffer_store_dwordx2 v[76:77], v6, s[20:23], s24 offen sc1")
    a.i("s_mov_b64 exec, s[36:37]")
    mstamp(a, st, 'gust')
    mstamps_out(a, st, 0)
    a.i("s_endpgm")
    a.label("KM_OTH")
    a.i(f"s_cmp_ge_u32 s2, {NG}"); a.i("s_cbranch_scc1 KM_PH2")
    a.i("s_waitcnt vmcnt(0)"); a.i("s_barrier")
    a.i("s_endpgm")
    a.label("KM_DN0")
    a.i("v_lshl_add_u32 v201, v12, 3, v11"); a.i("v_add_u32 v201, s25, v201")
    a.i(f"s_mov_b32 s24, {WS_X1}"); a.i("buffer_load_dwordx2 v[202:203], v201, s[20:23], s24 offen")
    a.i(f"s_mov_b32 s24, {WS_H2}"); a.i("buffer_load_dwordx2 v[204:205], v201, s[20:23], s24 offen")
    a.i("v_lshlrev_b32 v13, 3, v12"); a.i("v_add_u32 v13, s25, v13")
    a.i(f"s_mov_b32 s24, {WS_GB}"); a.i("buffer_load_dwordx2 v[206:207], v13, s[20:23], s24 offen")
    a.i("v_lshrrev_b32 v13, 16, v9")
    a.i("v_and_b32 v14, 0x8000, v13"); a.i("v_cmp_ne_u32 vcc, 0, v14")
    a.i("v_xor_b32 v14, 0x8000, v13"); a.i("v_xor_b32 v15, 0xffff, v13")
    a.i("v_cndmask_b32 v13, v15, v14, vcc"); a.i("v_lshlrev_b32 v208, 16, v13")
    a.label("KM_PH2")
    mstamp(a, st, 'polled')
    a.i("s_waitcnt vmcnt(0)")
    a.i("v_lshrrev_b32 v12, 4, v2")
    a.i("v_bfe_u32 v13, v2, 2, 2"); a.i("v_lshl_add_u32 v13, v12, 3, v13"); a.i("v_lshlrev_b32 v13, 5, v13")
    a.i("v_and_b32 v14, 3, v2"); a.i("v_lshl_add_u32 v13, v14, 3, v13"); a.i("v_add_u32 v13, s28, v13")
    for ks in range(14):
        for r2 in range(2):
            a.i(f"ds_read_b64_tr_b16 {vr(80 + 4 * ks + 2 * r2, 2)}, v13 offset:{1024 * ks + 128 * r2}")
        if ks % 7 == 6: a.i("s_waitcnt lgkmcnt(0)")
    a.i("v_and_b32 v5, 7, v2"); a.i("v_lshlrev_b32 v6, 4, v5"); a.i("v_lshl_add_u32 v6, v12, 7, v6")
    a.i(f"s_mul_i32 s24, s3, {14 * 512}"); a.i(f"s_add_u32 s24, s24, {WS_GU}"); a.i("s_add_u32 s29, s24, 4096")
    a.i("s_mov_b32 s26, 0x40000")
    a.label("KM_POLL")
    for ks in range(14):
        a.i(f"buffer_load_dwordx4 {vr(16 + 4 * ks, 4)}, v6, s[20:23], {'s24' if ks < 8 else 's29'} offen offset:{512 * (ks % 8)} sc1")
    a.i("s_waitcnt vmcnt(0)")
    a.i("v_max3_u32 v7, v16, v17, v18")
    for k in range(19, 71, 2): a.i(f"v_max3_u32 v7, v7, {vr(k)}, {vr(k + 1)}")
    a.i("v_max_u32 v7, v7, v71")
    a.i("v_cmp_eq_u32 vcc, -1, v7")
    a.i("s_sub_u32 s26, s26, 1"); a.i("s_cbranch_scc1 KM_GOT")
    a.i("s_cbranch_vccnz KM_POLL")
    a.label("KM_GOT")
    mstamp(a, st, 'guld')
    for ks in range(14):
        a.i(f"v_mfma_f32_16x16x32_bf16 v[72:75], {vr(80 + 4 * ks, 4)}, {vr(16 + 4 * ks, 4)}, {'0' if ks == 0 else 'v[72:75]'}")
    a.i("s_nop 7")
    a.i("v_lshlrev_b32 v3, 4, v2"); a.i("s_lshl_b32 s24, s3, 10"); a.i(f"s_add_u32 s24, s24, {L_RED}"); a.i("v_add_u32 v3, s24, v3")
    a.i("ds_write_b128 v3, v[72:75]")
    a.i("s_waitcnt lgkmcnt(0)"); a.i("s_barrier")
    a.i("s_cmp_lg_u32 s3, 0"); a.i("s_cbranch_scc1 KM_DONE")
    for w in range(1, 4): a.i(f"ds_read_b128 {vr(16 + 4 * w, 4)}, v3 offset:{1024 * w}")
    srd(a, 16, 42, 2048 * 896)
    sigmoid(a, 5, 208, 6); round_bf(a, 5, 5)
    a.i("s_waitcnt lgkmcnt(0)")
    for r in range(4):
        for w in range(1, 4): a.i(f"v_add_f32 {vr(72 + r)}, {vr(72 + r)}, {vr(16 + 4 * w + r)}")
        round_bf(a, 72 + r, 72 + r)
        a.i(f"v_mul_f32 {vr(72 + r)}, {vr(72 + r)}, v5"); round_bf(a, 72 + r, 72 + r)
    for half in range(2):
        bf_lo(a, 16 + 2 * half, 204 + half); bf_hi(a, 17 + 2 * half, 204 + half)
        bf_lo(a, 20 + 2 * half, 202 + half); bf_hi(a, 21 + 2 * half, 202 + half)
        bf_lo(a, 24 + 2 * half, 206 + half); bf_hi(a, 25 + 2 * half, 206 + half)
    for r in range(4):
        a.i(f"v_add_f32 {vr(72 + r)}, {vr(72 + r)}, {vr(16 + r)}"); round_bf(a, 72 + r, 72 + r)
        a.i(f"v_mul_f32 {vr(72 + r)}, {vr(72 + r)}, {vr(24 + r)}"); round_bf(a, 72 + r, 72 + r)
        a.i(f"v_add_f32 {vr(72 + r)}, {vr(72 + r)}, {vr(20 + r)}")
    a.i("v_cvt_pk_bf16_f32 v76, v72, v73"); a.i("v_cvt_pk_bf16_f32 v77, v74, v75")
    a.i("v_and_b32 v5, 15, v2")
    a.i("v_cmp_gt_u32 vcc, 8, v5"); a.i("s_and_saveexec_b64 s[36:37], vcc")
    a.i("buffer_store_dwordx2 v[76:77], v201, s[16:19], 0 offen")
    a.i("s_mov_b64 exec, s[36:37]")
    if HD:
        a.i("s_waitcnt vmcnt(0)"); hdbg(a, 3, 15, 48, 210, 211, wg=112)
    if st:
        a.i("s_waitcnt vmcnt(0)")
        mstamp(a, st, 'end')
        mstamps_out(a, st, 1)
    a.label("KM_DONE")
    a.i("s_endpgm")
    return kdesc(n, vgpr=216, accum=216, sgpr=96 if st else 56), NWG, L_RED + 4096
```

```python
from asmlib import *
from core16 import *
import core16 as c16
import kern_tail as kt
from kern_small import (hdbg, srd, kstart, bf_lo, bf_hi, f2u, sigmoid, round_bf, QSCALE, WS_A1, WS_S1, WS_GA, WS_A2, WS_SB, WS_GB, WS_PART, WS_SIZE, WS_STAT)

SRD_X = 12
SRD_WS = 16
SRD_WQ = 68
S_KH = 32; S_RG = 33; S_G = 34; S_QW = 35
T0, T1, T2, T3 = 36, 37, 38, 39
S_WOFF = 40; S_WOFF2 = 41; S_WM0 = 42

WT = 33792
PHYS = [2 * WT, 1 * WT, 0 * WT, 3 * WT]
HB = 102912
MODB = 160256
QX = 98304
ST = 57344
XB = 67584
OX = 67584
WOT = 28672
WOSLOT = [0, WOT, 133120, 67584]
TB = 0; TSTR = 912

DBG = {}
WARM_MOE = True
FUSE = True

def k1_setup(a):
    a.i("s_load_dwordx2 s[44:45], s[0:1], 0")
    a.i("s_load_dwordx4 s[48:51], s[0:1], 8")
    a.i("s_load_dwordx4 s[52:55], s[0:1], 24")
    a.i("s_load_dwordx2 s[56:57], s[0:1], 112")
    a.i("s_load_dwordx4 s[60:63], s[0:1], 56")
    a.i("s_load_dwordx2 s[64:65], s[0:1], 72")
    a.i("s_load_dwordx2 s[66:67], s[0:1], 96")
    a.i("s_load_dwordx2 s[58:59], s[0:1], 48")
    a.i("v_lshrrev_b32 v1, 6, v0"); a.i("s_nop 0")
    a.i(f"v_readfirstlane_b32 {sr(S_W)}, v1")
    a.i("v_and_b32 v0, 63, v0")
    a.i(f"s_and_b32 {sr(S_KH)}, {sr(S_W)}, 1")
    a.i(f"s_lshr_b32 {sr(S_RG)}, {sr(S_W)}, 1")
    a.i(f"s_and_b32 {sr(S_G)}, s2, 7")
    a.i(f"s_lshr_b32 {sr(S_QW)}, s2, 3")

def k1_srds(a):
    a.i("s_waitcnt lgkmcnt(0)")
    srd(a, SRD_X, 44, 2048 * 896)
    srd(a, SRD_WS, 56, 0x2000000)
    a.i(f"s_lshl_b32 {sr(T0)}, {sr(S_G)}, 10")
    a.i(f"s_add_u32 {sr(SRD_WQ)}, s52, {sr(T0)}"); a.i(f"s_addc_u32 {sr(SRD_WQ + 1)}, s53, 0")
    a.i(f"s_sub_u32 {sr(SRD_WQ + 2)}, {448 * 8192}, {sr(T0)}"); a.i(f"s_mov_b32 {sr(SRD_WQ + 3)}, 0x20000")

def kv_srds(a):
    a.i(f"s_lshl_b32 {sr(T0)}, {sr(S_G)}, 20")
    for d, p, bias in ((SRD_K, 48, 128), (SRD_V, 50, 256)):
        a.i(f"s_add_u32 {sr(d)}, {sr(p)}, {sr(T0)}"); a.i(f"s_addc_u32 {sr(d + 1)}, {sr(p + 1)}, 0")
        a.i(f"s_sub_u32 {sr(d)}, {sr(d)}, {bias}"); a.i(f"s_subb_u32 {sr(d + 1)}, {sr(d + 1)}, 0")
        a.i(f"s_mov_b32 {sr(d + 2)}, {0x100000 + bias}"); a.i(f"s_mov_b32 {sr(d + 3)}, 0x20000")

WQV = 4
def wq_setup(a):
    a.i(f"s_lshl_b32 {sr(T0)}, {sr(S_KH)}, 3"); a.i(f"v_xor_b32 v1, {sr(T0)}, v0")
    a.i("v_lshlrev_b32 v1, 4, v1")
    a.i(f"s_lshl_b32 {sr(T0)}, {sr(S_W)}, 16")
    a.i(f"v_add_u32 v1, {sr(T0)}, v1")
    for j in range(4):
        a.i(f"v_add_u32 {vr(WQV + j)}, {j * (8192 - 1056)}, v1")
    a.i(f"s_mul_i32 {sr(S_WM0)}, {sr(S_W)}, 8448")
    a.i(f"s_mov_b32 {sr(S_WOFF)}, 0"); a.i(f"s_mov_b32 {sr(S_WOFF2)}, {4 * 8192}")

def wq_tile(s):
    base = PHYS[s % 4]
    groups = []
    for i in range(8):
        pre = [f"s_add_u32 m0, {sr(S_WM0)}, {base + (i // 4) * 4224}"] if i % 4 == 0 else []
        so = (S_WOFF, S_WOFF2)[i // 4]
        ins = [f"buffer_load_dwordx4 {vr(WQV + (i & 3))}, {sr(SRD_WQ, 4)}, {sr(so)} offen offset:{1056 * (i & 3)} lds"]
        post = [f"s_add_u32 {sr(so)}, {sr(so)}, {32 * 8192}"] if i % 4 == 3 else []
        groups.append((pre, ins, post))
    return groups

def emit_groups(a, groups):
    for pre, ins, post in groups:
        for s in pre: a.i(s); a.i("s_nop 0")
        for s in ins + post: a.i(s)

def attn_setup(a):
    kh, rg = sr(S_KH), sr(S_RG)
    t = sr(T0)
    a.i(f"s_mul_i32 {sr(S_KM0)}, {kh}, {KSLOT}"); a.i(f"s_mul_i32 {t}, {rg}, {8 * 1056}"); a.i(f"s_add_u32 {sr(S_KM0)}, {sr(S_KM0)}, {t}")
    a.i(f"s_mul_i32 {sr(S_VM0)}, {kh}, {VSLOT}"); a.i(f"s_mul_i32 {t}, {rg}, {8 * 1088}"); a.i(f"s_add_u32 {sr(S_VM0)}, {sr(S_VM0)}, {t}")
    a.i(f"s_lshl_b32 {sr(S_KOFF)}, {kh}, 19"); a.i(f"s_add_u32 {sr(S_KOFF2)}, {sr(S_KOFF)}, 4096")
    a.i(f"s_mov_b32 {sr(S_VOFF)}, {sr(S_KOFF)}"); a.i(f"s_mov_b32 {sr(S_VOFF2)}, {sr(S_KOFF2)}")
    a.i(f"s_mov_b32 {sr(S_THR)}, 0x46800000")
    a.i("v_lshrrev_b32 v2, 5, v0"); a.i("v_and_b32 v1, 31, v0")
    a.i("v_xor_b32 v3, v1, v2"); a.i("v_lshlrev_b32 v3, 4, v3"); a.i("v_lshl_add_u32 v3, v2, 9, v3")
    a.i(f"s_lshl_b32 {t}, {rg}, 13"); a.i(f"v_add_u32 v3, {t}, v3")
    for j in range(4): a.i(f"v_add_u32 {vr(DK + j)}, {128 - 32 * j}, v3")

def attn_setup2(a):
    kh, rg = sr(S_KH), sr(S_RG); t = sr(T0)
    a.i("v_and_b32 v1, 15, v0"); a.i("v_lshrrev_b32 v2, 4, v0"); a.i("v_and_b32 v3, 1, v0")
    a.i("v_lshrrev_b32 v4, 1, v1"); a.i("v_mul_u32_u24 v4, 1056, v4"); a.i("v_lshl_add_u32 v4, v3, 9, v4")
    a.i("v_xor_b32 v5, v2, v3"); a.i("v_lshl_add_u32 v4, v5, 4, v4")
    a.i(f"s_mul_i32 {t}, {kh}, {KSLOT}"); a.i(f"v_add_u32 {vr(KB)}, {t}, v4")
    a.i("v_bfe_u32 v3, v0, 2, 1"); a.i("v_bfe_u32 v4, v0, 3, 1"); a.i("v_lshl_add_u32 v4, v2, 1, v4")
    a.i("v_mul_u32_u24 v4, 1088, v4"); a.i("v_lshl_add_u32 v4, v3, 9, v4")
    a.i("v_and_b32 v5, 3, v0"); a.i("v_lshl_add_u32 v4, v5, 3, v4")
    a.i(f"s_mul_i32 {t}, {kh}, {VSLOT}"); a.i(f"s_add_u32 {t}, {t}, {VRING}")
    a.i(f"v_add_u32 v4, {t}, v4")
    a.i(f"v_lshl_add_u32 {vr(VB)}, v3, 5, v4")
    a.i("v_xor_b32 v5, 1, v3"); a.i(f"v_lshl_add_u32 {vr(VB + 1)}, v5, 5, v4")
    a.i("v_lshrrev_b32 v2, 5, v0"); a.i("v_and_b32 v1, 31, v0")
    a.i("v_lshlrev_b32 v3, 1, v2"); a.i("v_xor_b32 v3, v1, v3"); a.i("v_lshlrev_b32 v3, 4, v3"); a.i("v_lshl_add_u32 v3, v2, 9, v3")
    a.i(f"s_lshl_b32 {t}, {rg}, 13"); a.i(f"v_add_u32 v3, {t}, v3")
    for j in range(4): a.i(f"v_add_u32 {vr(DV + j)}, {256 - 64 * j}, v3")

XF = 16
XR = 128
MV = 184
def x_issue(a):
    a.i("v_and_b32 v1, 15, v0"); a.i("v_lshrrev_b32 v2, 4, v0")
    a.i(f"s_lshl_b32 {sr(T0)}, {sr(S_QW)}, 6"); a.i(f"s_lshl_b32 {sr(T1)}, {sr(S_W)}, 4"); a.i(f"s_add_u32 {sr(T0)}, {sr(T0)}, {sr(T1)}")
    a.i(f"v_add_u32 v3, {sr(T0)}, v1")
    a.i("v_lshlrev_b32 v9, 3, v3"); a.i(f"s_mov_b32 {sr(T1)}, {WS_STAT}")
    a.i(f"buffer_load_dwordx2 v[14:15], v9, {sr(SRD_WS, 4)}, {sr(T1)} offen")
    a.i("v_lshlrev_b32 v8, 4, v0")
    a.i(f"s_lshl_b32 {sr(T0)}, {sr(S_W)}, 10"); a.i(f"s_add_u32 m0, {sr(T0)}, {MODB}")
    a.i(f"s_cmp_eq_u32 {sr(S_W)}, 3"); a.i("s_cselect_b32 exec_hi, 0, -1")
    a.i(f"buffer_load_dwordx4 v8, {sr(SRD_WS, 4)}, {sr(T0)} offen lds")
    a.i("s_mov_b32 exec_hi, -1")
    a.i("v_mul_u32_u24 v3, 896, v3"); a.i("v_lshl_add_u32 v3, v2, 4, v3")
    for i in range(14):
        a.i(f"buffer_load_dwordx4 {vr(XR + 4 * i, 4)}, v3, {sr(SRD_X, 4)}, 0 offen offset:{64 * i}")
    a.i(f"s_lshl_b32 {sr(T0)}, {sr(S_W)}, 5"); a.i(f"v_and_b32 v9, 31, v0"); a.i(f"v_add_u32 v9, {sr(T0)}, v9")
    a.i("v_lshrrev_b32 v10, 3, v9"); a.i(f"s_mul_i32 {sr(T0)}, {sr(S_QW)}, 14"); a.i(f"v_add_u32 v10, {sr(T0)}, v10")
    a.i("v_lshlrev_b32 v10, 13, v10"); a.i("v_and_b32 v9, 7, v9"); a.i("v_lshl_add_u32 v9, v9, 7, v10")
    a.i(f"buffer_load_dword v250, v9, {sr(SRD_WQ, 4)}, 0 offen")

def code_warm(a):
    a.i(f"s_cmp_gt_u32 {sr(S_QW)}, 9"); a.i("s_cbranch_scc1 K1_NCW")
    a.i(f"s_cmp_lg_u32 {sr(S_W)}, 3"); a.i("s_cbranch_scc1 K1_NCW")
    a.i("s_getpc_b64 s[92:93]")
    a.label("K1_PC")
    a.i("s_mov_b32 s94, K1_END - K1_PC"); a.i("s_mov_b32 s95, 0x20000")
    a.i(f"s_lshl_b32 {sr(T0)}, {sr(S_QW)}, 13"); a.i("v_lshlrev_b32 v9, 7, v0")
    a.i(f"buffer_load_dword v253, v9, s[92:95], {sr(T0)} offen")
    a.label("K1_NCW")

def prologue(a, cfg):
    if getattr(cfg, 'codewarm', 0) & 1: code_warm(a)
    x_issue(a)
    wq_setup(a)
    kv_srds(a)
    wqq = []
    for s in range(3):
        for pre, ins, post in wq_tile(s): wqq.append((pre, ins, post))
    def drip(n=1):
        for _ in range(n):
            if wqq:
                pre, ins, post = wqq.pop(0)
                for t in pre: a.i(t); a.i("s_nop 0")
                for t in ins + post: a.i(t)
    a.i("s_waitcnt vmcnt(15)"); a.i("s_barrier")
    stamp(a, cfg, 'modv')
    a.i("v_lshrrev_b32 v2, 4, v0"); a.i("v_lshlrev_b32 v2, 5, v2"); a.i(f"v_add_u32 v2, {MODB}, v2")
    a.i("v_lshlrev_b32 v1, 4, v0"); a.i(f"s_lshl_b32 {sr(T0)}, {sr(S_W)}, 10"); a.i(f"s_add_u32 {sr(T0)}, {sr(T0)}, {HB}")
    a.i(f"v_add_u32 v1, {sr(T0)}, v1")
    def mv_read(i):
        b = MV + 16 * (i & 1)
        for k in range(2):
            a.lds(f"ds_read_b128 {vr(b + 4 * k, 4)}, v2 offset:{128 * i + 16 * k}", ("mv", i))
            a.lds(f"ds_read_b128 {vr(b + 8 + 4 * k, 4)}, v2 offset:{1792 + 128 * i + 16 * k}", ("mv", i))
    mv_read(0)
    a.i("v_mov_b32 v12, v15")
    ndrip = 0
    for i in range(14):
        if i + 1 < 14: mv_read(i + 1)
        a.i(f"s_waitcnt vmcnt({13 - i + 1 + ndrip})")
        if i == 0: stamp(a, cfg, 'xarr')
        for j in range(4):
            x = XF + 8 * (i & 1) + 2 * j
            bf_lo(a, x, XR + 4 * i + j); bf_hi(a, x + 1, XR + 4 * i + j)
        a.need(("mv", i))
        b = MV + 16 * (i & 1)
        for k in range(0, 8, 2):
            x = XF + 8 * (i & 1) + k
            a.i(f"v_pk_fma_f32 {vr(x, 2)}, {vr(x, 2)}, v[14:15], v[12:13] op_sel_hi:[1,0,0]")
            a.i(f"v_pk_fma_f32 {vr(x, 2)}, {vr(x, 2)}, {vr(b + k, 2)}, {vr(b + 8 + k, 2)}")
            a.i(f"v_cvt_pk_bf16_f32 {vr(XR + 4 * i + k // 2)}, {vr(x)}, {vr(x + 1)}")
        a.lds(f"ds_write_b128 v1, {vr(XR + 4 * i, 4)} offset:{4096 * i}")
        if i >= 2: drip(2); ndrip += 2
    assert not wqq
    stamp(a, cfg, 'ln')
    a.lds_drain(); a.i("s_barrier")
    a.i(f"v_lshlrev_b32 v14, 4, v0"); a.i(f"v_add_u32 v14, {HB}, v14")
    for ks in range(8):
        for qb in range(4):
            a.lds(f"ds_read_b128 {ar((ks * 4 + qb) * 4, 4)}, v14 offset:{(ks * 4 + qb) * 1024}", ("hf", ks))
        if ks % 3 == 2: a.lds_drain()
    a.lds_drain()

WA = 8
WAH = 12
QACC = 128
def qproj(a):
    attn_setup(a)
    a.i("v_lshrrev_b32 v1, 4, v0"); a.i("v_bfe_u32 v2, v0, 2, 2"); a.i("v_lshl_add_u32 v2, v1, 3, v2"); a.i("v_mul_u32_u24 v2, 1056, v2")
    a.i("v_and_b32 v3, 3, v0"); a.i("v_lshl_add_u32 v2, v3, 3, v2")
    a.i(f"s_lshl_b32 {sr(T0)}, {sr(S_W)}, 8")
    a.i(f"v_add_u32 v2, {sr(T0)}, v2")
    a.i("v_and_b32 v3, 1, v1"); a.i("v_lshlrev_b32 v3, 7, v3")
    a.i(f"v_add_u32 {vr(WA)}, v2, v3"); a.i(f"v_sub_u32 {vr(WA + 1)}, v2, v3")
    a.i(f"v_add_u32 {vr(WAH)}, {2 * WT}, {vr(WA)}"); a.i(f"v_add_u32 {vr(WAH + 1)}, {2 * WT}, {vr(WA + 1)}")
    a.i("s_waitcnt vmcnt(16)"); a.i("s_barrier")
    PF = 3
    def fread(absf):
        s, db = absf // 8, absf % 8
        ph = PHYS[s % 4]
        breg, off = (WA, ph) if ph < 2 * WT else (WAH, ph - 2 * WT)
        breg += db >> 2
        r = FR + 4 * (absf % 4)
        return [(f"ds_read_b64_tr_b16 {vr(r + 2 * r2, 2)}, {vr(breg)} offset:{off + 4224 * r2 + 32 * db}", ("wf", absf)) for r2 in range(2)]
    for f in range(PF):
        for s, tag in fread(f): a.lds(s, tag)
    pend = []
    for s in range(14):
        plan = {}
        def put(g, t): plan.setdefault(g, []).append(t)
        if s + 1 < 14:
            vm = 8
            put(1, f"s_waitcnt vmcnt({vm})"); put(1, "s_barrier")
        else:
            put(1, "s_barrier")
        groups = None
        if s + 3 < 14: groups = wq_tile(s + 3)
        elif s == 11: groups = dma_tile('K', 0)
        if groups:
            for (pre, ins, post), g in zip(groups, [3, 6, 10, 14, 18, 22, 26, 30]):
                for t in pre: put(g - 1, t)
                for t in ins + post: put(g, t)
        hq = []
        if s < 6:
            hq = [(f"ds_read_b128 {ar(((8 + s) * 4 + qb) * 4, 4)}, v14 offset:{((8 + s) * 4 + qb) * 1024}", ("hf", 8 + s)) for qb in range(4)]
        for i in range(32):
            db, qb = i >> 2, i & 3
            absf = 8 * s + db
            if qb == 0: a.need(("wf", absf))
            if i == 0 and s >= 8: a.need(("hf", s))
            if hq and i % 8 == 3:
                t, tag = hq.pop(0); a.lds(t, tag)
            acc = vr(QACC + 16 * db + 4 * qb, 4)
            a.i(f"v_mfma_f32_16x16x32_bf16 {acc}, {vr(FR + 4 * (absf % 4), 4)}, {ar((s * 4 + qb) * 4, 4)}, {'0' if s == 0 else acc}")
            if qb == 0 and absf + PF < 8 * 14: pend += fread(absf + PF)
            for t in plan.pop(i, []): a.i(t)
            k = 0
            while pend and k < 2:
                t, tag = pend.pop(0); a.lds(t, tag); k += 1
        assert not plan

def qexchange(a):
    a.i("s_nop 7")
    a.i("v_and_b32 v1, 15, v0"); a.i("v_lshlrev_b32 v1, 4, v1"); a.i("v_bfe_u32 v2, v0, 4, 1"); a.i("v_lshl_add_u32 v1, v2, 3, v1")
    a.i("v_lshrrev_b32 v2, 5, v0"); a.i("v_lshl_add_u32 v1, v2, 8, v1")
    a.i(f"s_lshl_b32 {sr(T0)}, {sr(S_RG)}, 15"); a.i(f"s_add_u32 {sr(T0)}, {sr(T0)}, {QX}")
    a.i(f"s_lshl_b32 {sr(T1)}, {sr(S_KH)}, 12"); a.i(f"s_add_u32 {sr(T1)}, {sr(T1)}, {sr(T0)}")
    a.i(f"v_add_u32 v3, {sr(T1)}, v1")
    n = 0
    for db in range(8):
        for qb in range(4):
            x = QACC + 16 * db + 4 * qb
            t = 96 + 2 * (n % 8); n += 1
            a.i(f"v_cvt_pk_bf16_f32 {vr(t)}, {vr(x)}, {vr(x + 1)}")
            a.i(f"v_cvt_pk_bf16_f32 {vr(t + 1)}, {vr(x + 2)}, {vr(x + 3)}")
            a.lds(f"ds_write_b64 v3, {vr(t, 2)} offset:{8192 * qb + 1024 * (db >> 1) + 512 * (db & 1)}")
    a.i("v_lshlrev_b32 v3, 4, v0"); a.i(f"v_add_u32 v3, {sr(T0)}, v3")
    a.lds_drain(); a.i("s_barrier")
    kq = []
    for pre, ins, post in dma_tile('K', 1):
        kq.append([t for t in pre] + (["s_nop 0"] if pre else []) + ins + post)
    for ks in range(8):
        for qb in range(4):
            a.lds(f"ds_read_b128 {vr(Q + 32 * qb + 4 * ks, 4)}, v3 offset:{8192 * qb + 1024 * ks}", ("qf", ks))
        for t in kq.pop(0): a.i(t)
        if ks % 2 == 1: a.need(("qf", ks - 1))
    attn_setup2(a)
    a.lds_drain()
    a.i("s_waitcnt vmcnt(8)"); a.i("s_barrier")
    emit_groups(a, dma_tile('V', 0))

def attention(a, cfg):
    core = Core16(a, cfg)
    for f in range(16):
        for s in frag_reads(f, 0, 0): a.lds(s)
        if f % 4 == 3:
            a.lds_drain()
            for f2 in range(f - 3, f + 1):
                kb, ks = f2 >> 3, f2 & 7
                for qb in range(4):
                    d = vr(Sreg(kb, qb), 4)
                    a.i(f"v_mfma_f32_16x16x32_bf16 {d}, {vr(FR + 4 * (f2 % 4), 4)}, {vr(Q + 32 * qb + 4 * ks, 4)}, {'0' if ks == 0 else d}")
    a.i("s_nop 7")
    for qb in range(4):
        core.rowmax4(qb, TA, TB_)
        for r in range(4):
            a.i(f"v_sub_f32 {vr(NEGM + 4 * qb + r)}, 0, {vr(TA)}")
            for kb in range(2):
                a.i(f"v_sub_f32 {vr(Sreg(kb, qb) + r)}, {vr(Sreg(kb, qb) + r)}, {vr(TA)}")
        a.i(f"v_mov_b32 {vr(L + qb)}, 0")
    for kb in range(2):
        for c, s in softmax_ops(kb, P0):
            a.i(s)
            if c == 2: a.i("s_nop 0")
    for qb in range(4):
        a.i(f"v_add_f32 {vr(L + qb)}, {vr(L + qb)}, {vr(PS + qb)}")
    a.i("s_waitcnt vmcnt(8)"); a.i("s_barrier")
    emit_groups(a, dma_tile('K', 0)[:2])
    core.prefetch_first(0)
    core.iteration(0, first=True)
    a.i(f"s_mov_b32 {sr(S_CNT)}, 14")
    st0 = a.lds_state(); base0 = core.fidx
    st0 = {k: v for k, v in st0.items() if k[0] == 'f'}
    a.lds_done = a.tag_last[("f", core.fidx)] - 1
    a.raw(".p2align 3")
    a.label("K1_LOOP")
    core.pend_l = True
    core.iteration(1); core.iteration(2)
    a.i(f"s_sub_u32 {sr(S_CNT)}, {sr(S_CNT)}, 1")
    a.i(f"s_cmp_lg_u32 {sr(S_CNT)}, 0")
    a.i("s_cbranch_scc1 K1_LOOP")
    st1 = {k: v for k, v in a.lds_state().items() if k[0] == 'f'}
    rel0 = {k[1] - base0: v for k, v in st0.items()}; rel1 = {k[1] - core.fidx: v for k, v in st1.items()}
    assert all(rel0.get(k) == v for k, v in rel1.items()), (rel0, rel1)
    a.i(f"s_mul_i32 {sr(T2)}, {sr(S_G)}, {512 * 896}")
    a.i(f"s_add_u32 {sr(SRD_X)}, s54, {sr(T2)}"); a.i(f"s_addc_u32 {sr(SRD_X + 1)}, s55, 0")
    a.i(f"s_mov_b32 {sr(SRD_X + 2)}, {512 * 896}"); a.i(f"s_mov_b32 {sr(SRD_X + 3)}, 0x20000")
    a.i(f"s_mul_i32 {sr(T2)}, {sr(S_QW)}, {112 * 128}"); a.i(f"s_lshl_b32 {sr(T3)}, {sr(S_W)}, 12"); a.i(f"s_add_u32 {sr(T2)}, {sr(T2)}, {sr(T3)}")
    a.i(f"v_and_b32 {vr(TA)}, 31, v0"); a.i(f"v_lshlrev_b32 {vr(TA)}, 7, {vr(TA)}")
    a.i(f"buffer_load_dword v15, {vr(TA)}, {sr(SRD_X, 4)}, {sr(T2)} offen")
    core.iteration(1, dmaKt=False)
    core.iteration(2, dmaKh=False, dmaKt=False, nxt='B', vmA=0, vmB=0)
    class L_:
        def __init__(self): self.q = []
        def i(self, t): self.q.append(t)
    lq = L_(); wo_setup(lq)
    for s_ in range(2):
        for pre, ins, post in wo_tile(s_):
            for t in pre: lq.i(t); lq.i("s_nop 0")
            for t in ins + post: lq.i(t)
    core.iteration(3, do_A=False, do_soft=False, dmaV=False, dmaKh=False, dmaKt=False, nxt=None, barB=False, extra_q=lq.q, extra_start=64)
    return core

TB_ = c16.TB

def merge(a, core, cfg):
    for qb in range(4): core.xreduce(L + qb, TA, "v_add_f32")
    a.i("v_lshlrev_b32 v1, 2, v0"); a.i(f"s_lshl_b32 {sr(T0)}, {sr(S_W)}, 11"); a.i(f"s_add_u32 {sr(T1)}, {sr(T0)}, {ST}")
    a.i(f"v_add_u32 v2, {sr(T1)}, v1")
    for qb in range(4):
        a.lds(f"ds_write_b32 v2, {vr(NEGM + 4 * qb)} offset:{256 * qb}")
        a.lds(f"ds_write_b32 v2, {vr(L + qb)} offset:{1024 + 256 * qb}")
    a.i(f"s_xor_b32 {sr(T0)}, {sr(T0)}, 2048"); a.i(f"s_add_u32 {sr(T1)}, {sr(T0)}, {ST}")
    a.i(f"v_add_u32 v2, {sr(T1)}, v1")
    a.lds_drain(); a.i("s_barrier")
    for qb in range(4):
        a.lds(f"ds_read_b32 {vr(16 + qb)}, v2 offset:{256 * qb}")
        a.lds(f"ds_read_b32 {vr(20 + qb)}, v2 offset:{1024 + 256 * qb}", "st")
    a.i("v_lshlrev_b32 v1, 4, v0")
    a.i(f"s_lshl_b32 {sr(T0)}, {sr(S_W)}, 14"); a.i(f"s_add_u32 {sr(T1)}, {sr(T0)}, {XB}"); a.i(f"v_add_u32 v6, {sr(T1)}, v1")
    a.i(f"s_xor_b32 {sr(T0)}, {sr(T0)}, 16384"); a.i(f"s_add_u32 {sr(T1)}, {sr(T0)}, {XB}"); a.i(f"v_add_u32 v7, {sr(T1)}, v1")
    emit_groups(a, wo_tile(2))
    a.need("st")
    for qb in range(4):
        no, np_ = NEGM + 4 * qb, 16 + qb
        a.i(f"v_min_f32 v4, {vr(no)}, {vr(np_)}")
        a.i(f"v_sub_f32 v5, v4, {vr(no)}"); a.i("v_exp_f32 v5, v5")
        a.i(f"v_sub_f32 v3, v4, {vr(np_)}"); a.i("v_exp_f32 v3, v3")
        a.i("s_nop 0")
        a.i(f"v_mul_f32 v2, v5, {vr(L + qb)}"); a.i(f"v_fmac_f32 v2, v3, {vr(20 + qb)}")
        a.i("v_rcp_f32 v2, v2"); a.i("s_nop 0")
        a.i(f"v_mul_f32 {vr(24 + 2 * qb)}, v5, v2"); a.i(f"v_mul_f32 {vr(32 + 2 * qb)}, v3, v2")
    R = 72; OWN = 128
    a.i(f"s_cmp_eq_u32 {sr(S_KH)}, 0"); a.i("s_cbranch_scc0 K1_MG1")
    for kh in range(2):
        if kh == 1: a.label("K1_MG1")
        ownq = []
        for dbp in range(8):
            for qb in range(4):
                k = dbp * 4 + qb; x = 16 * (8 * kh + dbp) + 4 * qb; o = OWN + 4 * k
                ownq.append([f"v_accvgpr_read_b32 {vr(o + j)}, {ar(x + j)}" for j in range(4)] +
                            [f"v_pk_mul_f32 {vr(o + j, 2)}, {vr(o + j, 2)}, {vr(24 + 2 * qb, 2)} op_sel_hi:[1,0]" for j in (0, 2)])
        for rho in range(2):
            if rho == 1: a.i("s_barrier")
            for d4 in range(4):
                db = 8 * (1 - kh) + 4 * rho + d4
                for qb in range(4):
                    a.lds(f"ds_write_b128 v6, {ar(16 * db + 4 * qb, 4)} offset:{(d4 * 4 + qb) * 1024}")
                    if ownq:
                        for t in ownq.pop(0): a.i(t)
            a.lds_drain(); a.i("s_barrier")
            for half in range(2):
                for kk in range(8):
                    t16 = 8 * half + kk
                    a.lds(f"ds_read_b128 {vr(R + 4 * kk, 4)}, v7 offset:{t16 * 1024}", ("mg", kh, rho, t16))
                for kk in range(8):
                    t16 = 8 * half + kk
                    k = 16 * rho + t16; qb = k & 3; rr = R + 4 * kk; o = OWN + 4 * k
                    a.need(("mg", kh, rho, t16))
                    for j in (0, 2):
                        a.i(f"v_pk_fma_f32 {vr(o + j, 2)}, {vr(rr + j, 2)}, {vr(32 + 2 * qb, 2)}, {vr(o + j, 2)} op_sel_hi:[1,0,1]")
                    a.i(f"v_cvt_pk_bf16_f32 {vr(o)}, {vr(o)}, {vr(o + 1)}")
                    a.i(f"v_cvt_pk_bf16_f32 {vr(o + 1)}, {vr(o + 2)}, {vr(o + 3)}")
        if kh == 0: a.i("s_branch K1_MGJ")
    a.label("K1_MGJ")
    a.i("v_and_b32 v1, 15, v0"); a.i("v_lshlrev_b32 v1, 4, v1"); a.i("v_bfe_u32 v2, v0, 4, 1"); a.i("v_lshl_add_u32 v1, v2, 3, v1")
    a.i("v_lshrrev_b32 v2, 5, v0"); a.i("v_lshl_add_u32 v1, v2, 8, v1")
    a.i(f"s_lshl_b32 {sr(T0)}, {sr(S_W)}, 14"); a.i(f"s_add_u32 {sr(T0)}, {sr(T0)}, {OX}"); a.i(f"v_add_u32 v3, {sr(T0)}, v1")
    a.i("s_barrier")
    for dbp in range(8):
        for qb in range(4):
            a.lds(f"ds_write_b64 v3, {vr(OWN + 4 * (dbp * 4 + qb), 2)} offset:{(dbp >> 1) * 4096 + qb * 1024 + 512 * (dbp & 1)}")
    a.i(f"v_lshlrev_b32 v14, 4, v0"); a.i(f"v_add_u32 v14, {OX}, v14")
    a.lds_drain(); a.i("s_barrier")
    for ks in range(8):
        for qb in range(4):
            a.lds(f"ds_read_b128 {ar((ks * 4 + qb) * 4, 4)}, v14 offset:{(ks * 4 + qb) * 1024}", ("ox", ks))
        if ks % 2 == 1: a.need(("ox", ks - 1))

WOV = 64
WOA = 16
OACC = 128
S_OOFF = 40; S_OM0 = 42
def wo_setup(a):
    a.i(f"s_mul_i32 {sr(S_OM0)}, {sr(S_W)}, 7168"); a.i(f"s_mov_b32 {sr(S_OOFF)}, 0")
    for i in range(7):
        d = WOV + i
        a.i(f"s_mul_i32 {sr(T2)}, {sr(S_W)}, 448"); a.i(f"s_add_u32 {sr(T2)}, {sr(T2)}, {64 * i}")
        a.i(f"v_add_u32 {vr(d)}, {sr(T2)}, v0")
        a.i(f"v_mul_u32_u24 v2, 18725, {vr(d)}"); a.i("v_lshrrev_b32 v2, 20, v2")
        a.i("v_bfe_u32 v3, v2, 1, 1"); a.i("v_bfe_u32 v2, v2, 3, 1"); a.i("v_lshl_or_b32 v3, v2, 1, v3")
        a.i("v_lshlrev_b32 v3, 5, v3"); a.i(f"v_lshlrev_b32 {vr(d)}, 4, {vr(d)}"); a.i(f"v_xor_b32 {vr(d)}, {vr(d)}, v3")
        if i & 3: a.i(f"v_subrev_u32 {vr(d)}, {1024 * (i & 3)}, {vr(d)}")

def wo_tile(s):
    base = WOSLOT[s % 4]
    groups = []
    for i in range(7):
        pre = [f"s_add_u32 m0, {sr(S_OM0)}, {base + (i // 4) * 4096}"] if i % 4 == 0 else []
        ins = [f"buffer_load_dwordx4 {vr(WOV + i)}, {sr(SRD_X, 4)}, {sr(S_OOFF)} offen offset:{1024 * (i & 3)} lds"]
        post = [f"s_add_u32 {sr(S_OOFF)}, {sr(S_OOFF)}, {WOT}"] if i == 6 else []
        groups.append((pre, ins, post))
    return groups

def oproj(a):
    a.i("v_lshrrev_b32 v1, 4, v0"); a.i("v_bfe_u32 v2, v0, 2, 2"); a.i("v_lshl_add_u32 v2, v1, 3, v2"); a.i("v_mul_u32_u24 v2, 896, v2")
    a.i("v_and_b32 v3, 3, v0"); a.i("v_lshl_add_u32 v2, v3, 3, v2")
    a.i("v_bfe_u32 v3, v0, 3, 1"); a.i("v_bfe_u32 v4, v0, 4, 1"); a.i("v_lshl_or_b32 v3, v4, 1, v3")
    a.i(f"s_mul_i32 {sr(T0)}, {sr(S_W)}, 7")
    for j in range(7):
        a.i(f"s_add_u32 {sr(T1)}, {sr(T0)}, {j}")
        a.i(f"v_xor_b32 v4, {sr(T1)}, v3"); a.i(f"v_lshl_add_u32 {vr(WOA + j)}, v4, 5, v2")
        a.i(f"v_add_u32 {vr(WOA + 7 + j)}, {WOSLOT[3]}, {vr(WOA + j)}")
        a.i(f"v_add_u32 {vr(WOA + 14 + j)}, {WOSLOT[2]}, {vr(WOA + j)}")
    a.lds_drain()
    a.i("s_waitcnt vmcnt(14)"); a.i("s_barrier")
    emit_groups(a, wo_tile(3))
    PF = 3
    NF = 7 * 16
    def fread(absf):
        s, j = absf // 7, absf % 7
        sl = s % 4
        breg, off = {0: (WOA + j, 0), 1: (WOA + j, WOT), 2: (WOA + 14 + j, 0), 3: (WOA + 7 + j, 0)}[sl]
        r = FR + 4 * (absf % 4)
        return [(f"ds_read_b64_tr_b16 {vr(r + 2 * r2, 2)}, {vr(breg)} offset:{off + 3584 * r2}", ("of", absf)) for r2 in range(2)]
    for f in range(PF):
        for s, tag in fread(f): a.lds(s, tag)
    pend = []
    for s in range(16):
        plan = {}
        def put(g, t): plan.setdefault(g, []).append(t)
        if s + 1 < 16:
            vm = 14 if s == 0 else (7 if s + 2 <= 15 else 0)
            put(1, f"s_waitcnt vmcnt({vm})"); put(1, "s_barrier")
        if s >= 1 and s + 3 < 16:
            for (pre, ins, post), g in zip(wo_tile(s + 3), [3, 6, 10, 14, 18, 22, 26]):
                for t in pre: put(g - 1, t)
                for t in ins + post: put(g, t)
        if s == 15 and WARM_MOE:
            put(2, f"s_cmp_eq_u32 {sr(S_W)}, 1"); put(2, "s_cselect_b32 s4, s62, s60"); put(2, "s_cselect_b32 s5, s63, s61")
            put(3, f"s_cmp_ge_u32 {sr(S_W)}, 2"); put(3, "s_cselect_b32 s4, s64, s4"); put(3, "s_cselect_b32 s5, s65, s5")
            put(4, f"s_mov_b32 s6, {448 * 3584}"); put(4, "s_mov_b32 s7, 0x20000")
            put(5, f"s_mul_i32 {sr(T2)}, s2, {49 * 128}"); put(5, "v_lshlrev_b32 v4, 7, v0")
            put(7, f"buffer_load_dword v5, v4, s[4:7], {sr(T2)} offen")
        hq = []
        if s < 8:
            hq = [(f"ds_read_b128 {ar(((8 + s) * 4 + qb) * 4, 4)}, v14 offset:{((8 + s) * 4 + qb) * 1024}", ("ox", 8 + s)) for qb in range(4)]
        for i in range(28):
            j, qb = i >> 2, i & 3
            absf = 7 * s + j
            if qb == 0: a.need(("of", absf))
            if i == 0 and s >= 8: a.need(("ox", s))
            if hq and i % 7 == 3:
                t, tag = hq.pop(0); a.lds(t, tag)
            acc = vr(OACC + 16 * j + 4 * qb, 4)
            a.i(f"v_mfma_f32_16x16x32_bf16 {acc}, {vr(FR + 4 * (absf % 4), 4)}, {ar((s * 4 + qb) * 4, 4)}, {'0' if s == 0 else acc}")
            if qb == 0 and absf + PF < NF: pend += fread(absf + PF)
            for t in plan.pop(i, []): a.i(t)
            k = 0
            while pend and k < 2:
                t, tag = pend.pop(0); a.lds(t, tag); k += 1
        assert not plan, plan

def store_partials(a):
    a.i("s_nop 7")
    a.i("v_and_b32 v1, 15, v0"); a.i(f"v_mul_u32_u24 v1, {TSTR}, v1"); a.i("v_lshrrev_b32 v2, 4, v0"); a.i("v_lshl_add_u32 v1, v2, 3, v1")
    a.i(f"s_mul_i32 {sr(T0)}, {sr(S_W)}, 224"); a.i(f"v_add_u32 v1, {sr(T0)}, v1")
    n = 0
    for j in range(7):
        for qb in range(4):
            x = OACC + 16 * j + 4 * qb; t = 96 + 2 * (n % 8); n += 1
            a.i(f"v_cvt_pk_bf16_f32 {vr(t)}, {vr(x)}, {vr(x + 1)}")
            a.i(f"v_cvt_pk_bf16_f32 {vr(t + 1)}, {vr(x + 2)}, {vr(x + 3)}")
            a.lds(f"ds_write_b64 v1, {vr(t, 2)} offset:{TB + 16 * TSTR * qb + 32 * j}")
    a.lds_drain(); a.i("s_barrier")
    a.i("v_lshlrev_b32 v1, 4, v0")
    a.i(f"s_mul_i32 {sr(T0)}, {sr(S_W)}, {16 * TSTR}"); a.i(f"v_add_u32 v2, {sr(T0)}, v1")
    a.i(f"s_lshl_b32 {sr(T0)}, {sr(S_QW)}, 6"); a.i(f"s_lshl_b32 {sr(T1)}, {sr(S_W)}, 4"); a.i(f"s_add_u32 {sr(T0)}, {sr(T0)}, {sr(T1)}")
    a.i(f"s_lshl_b32 {sr(T1)}, {sr(S_G)}, 11"); a.i(f"s_add_u32 {sr(T0)}, {sr(T0)}, {sr(T1)}")
    a.i(f"s_mul_i32 {sr(T0)}, {sr(T0)}, 896"); a.i(f"s_add_u32 {sr(T0)}, {sr(T0)}, {WS_PART}")
    a.i("v_cmp_gt_u32 vcc, 56, v0"); a.i(f"s_and_saveexec_b64 s[46:47], vcc")
    for i in range(16):
        a.lds(f"ds_read_b128 {vr(128 + 4 * i, 4)}, v2 offset:{TB + TSTR * i}", ("tb", i))
    for i in range(16):
        a.need(("tb", i))
        a.i(f"s_add_u32 {sr(T1)}, {sr(T0)}, {896 * i}")
        a.i(f"buffer_store_dwordx4 {vr(128 + 4 * i, 4)}, v1, {sr(SRD_WS, 4)}, {sr(T1)} offen{' sc1' if FUSE else ''}")
    a.i("s_mov_b64 exec, s[46:47]")

def dump_regs(a, kind, first, n, slot):
    a.i("s_nop 15")
    a.i("s_mov_b32 s60, s56"); a.i("s_mov_b32 s61, s57"); a.i("s_mov_b32 s62, 0x10000000"); a.i("s_mov_b32 s63, 0x20000")
    a.i(f"s_lshl_b32 s58, s2, 2"); a.i(f"s_add_u32 s58, s58, {sr(S_W)}"); a.i("s_lshl_b32 s58, s58, 16")
    a.i(f"s_add_u32 s58, s58, {0x8000000 + slot * 0x4000000}")
    a.i("v_lshlrev_b32 v15, 2, v0")
    for r in range(n):
        a.i(f"s_add_u32 s59, s58, {256 * r}")
        if kind == 'a':
            a.i(f"v_accvgpr_read_b32 v1, {ar(first + r)}"); a.i(f"buffer_store_dword v1, v15, s[60:63], s59 offen"); a.i("s_nop 1")
        else:
            a.i(f"buffer_store_dword {vr(first + r)}, v15, s[60:63], s59 offen")
    a.i("s_waitcnt vmcnt(0)")

STAMPS = []
def stamp(a, cfg, name):
    if not getattr(cfg, 'stamps', 0): return
    if name in getattr(cfg, 'skip', ()): return
    k = len(STAMPS); STAMPS.append(name)
    if cfg.stamps == 2:
        if name in ('modv', 'xarr', 'ln'): return
        hdbg(a, 1, 1 + k, 72, 1, 2)
        return
    a.i(f"s_memrealtime s[{72 + 2 * k}:{73 + 2 * k}]")

def stamps_out(a, cfg):
    if getattr(cfg, 'stamps', 0) != 1: return
    a.i("s_waitcnt lgkmcnt(0)")
    a.i("s_mov_b32 s60, s56"); a.i("s_mov_b32 s61, s57"); a.i("s_mov_b32 s62, 0x10000000"); a.i("s_mov_b32 s63, 0x20000")
    a.i(f"s_lshl_b32 s58, s2, 2"); a.i(f"s_add_u32 s58, s58, {sr(S_W)}"); a.i("s_lshl_b32 s58, s58, 7"); a.i("s_add_u32 s58, s58, 0x6000000")
    a.i("v_mov_b32 v15, 0")
    for k in range(len(STAMPS)):
        a.i(f"v_mov_b32 v14, s{72 + 2 * k}")
        a.i(f"buffer_store_dword v14, v15, s[60:63], s58 offen offset:{4 * k}")
        a.i("s_nop 1")

def gen_k1(a, cfg, stop=None):
    n = "attn_kernel"
    kstart(a, n)
    a.i("s_cmp_ge_u32 s2, 256"); a.i("s_cbranch_scc1 K1_DONE")
    stamp(a, cfg, 'start')
    k1_setup(a); k1_srds(a)
    prologue(a, cfg)
    if getattr(cfg, 'dbg', 0): dump_regs(a, 'a', 0, 224, 0)
    stamp(a, cfg, 'hfrag')
    qproj(a)
    stamp(a, cfg, 'qproj')
    qexchange(a)
    if getattr(cfg, 'dbg', 0): dump_regs(a, 'v', 128, 128, 1)
    stamp(a, cfg, 'qx')
    core = attention(a, cfg)
    stamp(a, cfg, 'attn')
    merge(a, core, cfg)
    oproj(a)
    stamp(a, cfg, 'oproj')
    store_partials(a)
    if FUSE:
        R = dict(W=S_W, G=S_G, QW=S_QW, SRD_WS=SRD_WS, T=(T0, T1, T2, T3), P_X=44, P_OUT=66, P_WR=58, P_WG=60, P_WU=62, P_WD=64)
        kt.tail(a, R, lambda n: stamp(a, cfg, n))
        a.label("K1_TE")
    a.i("s_waitcnt vmcnt(0)")
    stamp(a, cfg, 'store')
    stamps_out(a, cfg)
    a.label("K1_DONE")
    a.i("s_endpgm")
    core.emit_rare()
    a.label("K1_END")
    return kdesc(n, vgpr=512, accum=256, sgpr=102), 256, 163840
```

```python
from asmlib import *

WS_A1 = 0
WS_S1 = 1792
WS_GA = 4096; WS_A2 = 5120; WS_SB = 6144; WS_GB = 7168
WS_R = 8192
WS_IDX = 16384
WS_RSEL = 16448
WS_GU = 20480
WS_STAT = 0x10000
WS_RR = 0x20000
WS_SYNC = 0x18000
WS_X1 = 0x100000
WS_H2 = 0x300000
WS_PART = 0x800000
WS_SIZE = 0x10000000
QSCALE = 1.4426950408889634 / 16
HD = False

import struct
def f2u(x): return struct.unpack('<I', struct.pack('<f', x))[0]

def kstart(a, name):
    a.raw(f".globl {name}\n.p2align 8\n.type {name},@function\n{name}:")

def srd(a, dst, ptr, size, off=0):
    if off == 0:
        a.i(f"s_mov_b32 {sr(dst)}, {sr(ptr)}"); a.i(f"s_mov_b32 {sr(dst + 1)}, {sr(ptr + 1)}")
    else:
        a.i(f"s_add_u32 {sr(dst)}, {sr(ptr)}, {off}"); a.i(f"s_addc_u32 {sr(dst + 1)}, {sr(ptr + 1)}, 0")
    a.i(f"s_mov_b32 {sr(dst + 2)}, {size}"); a.i(f"s_mov_b32 {sr(dst + 3)}, 0x20000")

def hdbg(a, launch, word, sb, va, vb, wg=0):
    L = a.newlabel("HD")
    a.i(f"s_cmp_lg_u32 s2, {wg}"); a.i(f"s_cbranch_scc1 {L}")
    a.i(f"s_memrealtime s[{sb + 4}:{sb + 5}]"); a.i(f"s_load_dwordx2 s[{sb}:{sb + 1}], s[0:1], 104")
    a.i("s_waitcnt lgkmcnt(0)")
    a.i(f"s_add_u32 s{sb}, s{sb}, {512 * (3 - launch)}"); a.i(f"s_addc_u32 s{sb + 1}, s{sb + 1}, 0")
    a.i(f"s_mov_b32 s{sb + 2}, 256"); a.i(f"s_mov_b32 s{sb + 3}, 0x20000")
    a.i(f"v_mov_b32 v{va}, {4 * word}"); a.i(f"v_mov_b32 v{vb}, s{sb + 4}")
    a.i(f"buffer_store_dword v{vb}, v{va}, s[{sb}:{sb + 3}], 0 offen")
    a.label(L)

def bf_lo(a, d, s): a.i(f"v_lshlrev_b32 {vr(d)}, 16, {vr(s)}")
def bf_hi(a, d, s): a.i(f"v_and_b32 {vr(d)}, 0xffff0000, {vr(s)}")
def round_bf(a, d, s, tmp=None):
    a.i(f"v_cvt_pk_bf16_f32 {vr(d)}, {vr(s)}, {vr(s)}")
    a.i(f"v_lshlrev_b32 {vr(d)}, 16, {vr(d)}")

def wave_sum(a, v, t, n=1):
    for ctl in ("quad_perm:[1,0,3,2]", "quad_perm:[2,3,0,1]", "row_half_mirror", "row_mirror"):
        a.i("s_nop 1")
        a.i(f"v_add_f32_dpp {vr(v)}, {vr(v)}, {vr(v)} {ctl} row_mask:0xf bank_mask:0xf")
    for sw in ("v_permlane16_swap_b32", "v_permlane32_swap_b32"):
        a.i(f"v_mov_b32 {vr(t)}, {vr(v)}")
        a.i("s_nop 1")
        a.i(f"{sw} {vr(v)}, {vr(t)}")
        a.i("s_nop 1")
        a.i(f"v_add_f32 {vr(v)}, {vr(v)}, {vr(t)}")

def sigmoid(a, d, x, t):
    a.i(f"v_mul_f32 {vr(t)}, {hex(f2u(-1.4426950408889634))}, {vr(x)}")
    a.i(f"v_exp_f32 {vr(t)}, {vr(t)}")
    a.i("s_nop 0")
    a.i(f"v_add_f32 {vr(t)}, 1.0, {vr(t)}")
    a.i(f"v_rcp_f32 {vr(d)}, {vr(t)}")
    a.i("s_nop 0")

def gen_k0(a, codewarm=0):
    n = "mod_kernel"
    kstart(a, n)
    if HD: hdbg(a, 0, 0, 32, 60, 61)
    a.i("s_cmp_ge_u32 s2, 260"); a.i("s_cbranch_scc1 K0_DONE")
    a.i("s_cmp_ge_u32 s2, 148"); a.i("s_cbranch_scc1 K0_WARM")
    a.i("s_cmp_ge_u32 s2, 84"); a.i("s_cbranch_scc1 K0_STAT")
    a.i("s_load_dwordx4 s[4:7], s[0:1], 80")
    a.i("s_load_dwordx2 s[8:9], s[0:1], 112")
    a.i("v_and_b32 v1, 3, v0")
    a.i("v_lshrrev_b32 v2, 2, v0")
    a.i("v_mul_u32_u24 v3, 14, v2")
    a.i("v_mul_u32_u24 v4, 37632, v2")
    a.i("v_lshl_add_u32 v4, v1, 4, v4")
    a.i("s_lshl_b32 s3, s2, 6")
    a.i("v_add_u32 v4, s3, v4")
    a.i("s_waitcnt lgkmcnt(0)")
    srd(a, 12, 4, 896); srd(a, 16, 6, 448 * 5376); srd(a, 20, 8, WS_SIZE)
    for i in range(7):
        a.i(f"buffer_load_ushort {vr(8 + i)}, v3, s[12:15], 0 offen offset:{2 * i}")
    for i in range(7):
        a.i(f"s_mov_b32 s24, {5376 * i}")
        a.i(f"buffer_load_dwordx4 {vr(16 + 4 * i, 4)}, v4, s[16:19], s24 offen")
    a.i("s_waitcnt vmcnt(7)")
    for i in range(7):
        x = 8 + i
        a.i(f"v_lshlrev_b32 {vr(x)}, 16, {vr(x)}")
        sigmoid(a, 5, x, 6)
        a.i(f"v_mul_f32 {vr(x)}, {vr(x)}, v5")
        round_bf(a, x, x)
    for j in range(8): a.i(f"v_mov_b32 {vr(48 + j)}, 0")
    for i in range(7):
        a.i(f"s_waitcnt vmcnt({6 - i})")
        for j in range(4):
            bf_lo(a, 5, 16 + 4 * i + j); bf_hi(a, 6, 16 + 4 * i + j)
            a.i(f"v_fmac_f32 {vr(48 + 2 * j)}, {vr(8 + i)}, v5")
            a.i(f"v_fmac_f32 {vr(48 + 2 * j + 1)}, {vr(8 + i)}, v6")
    a.i("v_lshlrev_b32 v7, 7, v2"); a.i("v_lshl_add_u32 v7, v1, 5, v7")
    a.i("ds_write_b128 v7, v[48:51]"); a.i("ds_write_b128 v7, v[52:55] offset:16")
    a.i("s_waitcnt lgkmcnt(0)"); a.i("s_barrier")
    a.i("v_cmp_gt_u32 vcc, 32, v0"); a.i("s_and_saveexec_b64 s[26:27], vcc")
    a.i("s_cbranch_execz K0_DONE")
    a.i("v_lshlrev_b32 v7, 2, v0")
    for b in range(4):
        for j in range(16):
            a.i(f"ds_read_b32 {vr(16 + j)}, v7 offset:{128 * (16 * b + j)}")
        a.i("s_waitcnt lgkmcnt(0)")
        if b == 0: a.i("v_mov_b32 v8, 0")
        for j in range(0, 16, 4):
            a.i(f"v_add_f32 {vr(16 + j)}, {vr(16 + j)}, {vr(17 + j)}")
            a.i(f"v_add_f32 {vr(18 + j)}, {vr(18 + j)}, {vr(19 + j)}")
            a.i(f"v_add_f32 {vr(16 + j)}, {vr(16 + j)}, {vr(18 + j)}")
            a.i(f"v_add_f32 v8, v8, {vr(16 + j)}")
    round_bf(a, 8, 8)
    a.i("s_mul_i32 s24, s2, 4682"); a.i("s_lshr_b32 s24, s24, 16")
    a.i("s_mul_i32 s25, s24, 14"); a.i("s_sub_u32 s25, s2, s25"); a.i("s_lshl_b32 s25, s25, 5")
    a.i("v_add_u32 v9, s25, v0")
    a.i("v_add_f32 v10, 1.0, v8"); round_bf(a, 10, 10)
    a.i(f"s_mov_b32 s28, {hex(f2u(QSCALE))}")
    a.i("s_cmp_eq_u32 s24, 0"); a.i("s_cbranch_scc1 K0_S0")
    a.i("s_cmp_eq_u32 s24, 1"); a.i("s_cbranch_scc1 K0_S1")
    a.i("s_cmp_eq_u32 s24, 4")
    a.i("s_cbranch_scc0 K0_NB")
    a.i("v_mov_b32 v8, v10")
    a.label("K0_NB")
    a.i("v_lshrrev_b32 v8, 16, v8")
    a.i(f"s_mov_b32 s29, {WS_GA}")
    a.i("s_cmp_eq_u32 s24, 3"); a.i(f"s_cselect_b32 s29, {WS_SB}, s29")
    a.i("s_cmp_eq_u32 s24, 4"); a.i(f"s_cselect_b32 s29, {WS_A2}, s29")
    a.i("s_cmp_eq_u32 s24, 5"); a.i(f"s_cselect_b32 s29, {WS_GB}, s29")
    a.i("v_lshlrev_b32 v9, 1, v9")
    a.i("buffer_store_short v8, v9, s[20:23], s29 offen")
    a.i("s_branch K0_END")
    a.label("K0_S0")
    a.i("v_mul_f32 v8, s28, v8"); a.i("v_lshlrev_b32 v9, 2, v9")
    a.i(f"buffer_store_dword v8, v9, s[20:23], 0 offen offset:{WS_S1}")
    a.i("s_branch K0_END")
    a.label("K0_S1")
    a.i("v_mul_f32 v8, s28, v10"); a.i("v_lshlrev_b32 v9, 2, v9")
    a.i(f"buffer_store_dword v8, v9, s[20:23], 0 offen offset:{WS_A1}")
    a.label("K0_END")
    a.i("s_waitcnt vmcnt(0)")
    a.label("K0_DONE")
    a.i("s_endpgm")
    a.label("K0_WARM")
    a.i("s_load_dwordx2 s[4:5], s[0:1], 24")
    a.i("s_sub_u32 s3, s2, 148"); a.i("s_lshl_b32 s3, s3, 15"); a.i("v_lshlrev_b32 v1, 7, v0")
    a.i("s_waitcnt lgkmcnt(0)")
    srd(a, 8, 4, 448 * 8192)
    a.i("buffer_load_dword v2, v1, s[8:11], s3 offen")
    if codewarm & 2:
        a.i("s_cmp_ge_u32 s2, 151"); a.i("s_cbranch_scc1 K0_WE")
        a.i("s_getpc_b64 s[12:13]")
        a.label("K0_PC")
        a.i("s_mov_b32 s14, ALL_END - K0_PC"); a.i("s_mov_b32 s15, 0x20000")
        a.i("buffer_load_dword v3, v1, s[12:15], s3 offen")
        a.label("K0_WE")
    a.i("s_endpgm")
    a.label("K0_STAT")
    a.i("s_load_dwordx2 s[4:5], s[0:1], 0"); a.i("s_load_dwordx2 s[6:7], s[0:1], 112")
    a.i("v_lshrrev_b32 v1, 3, v0"); a.i("s_sub_u32 s3, s2, 84"); a.i("s_lshl_b32 s3, s3, 5"); a.i("v_add_u32 v1, s3, v1")
    a.i("v_and_b32 v2, 7, v0"); a.i("v_mul_u32_u24 v3, 896, v1"); a.i("v_lshl_add_u32 v3, v2, 4, v3")
    a.i("s_waitcnt lgkmcnt(0)")
    srd(a, 8, 4, 2048 * 896); srd(a, 12, 6, 0x2000000)
    for i in range(7): a.i(f"buffer_load_dwordx4 {vr(8 + 4 * i, 4)}, v3, s[8:11], 0 offen offset:{128 * i}")
    a.i("s_cmp_lg_u32 s2, 84"); a.i("s_cbranch_scc1 K0_NZ")
    a.i("v_lshrrev_b32 v4, 3, v0"); a.i("v_lshlrev_b32 v4, 7, v4"); a.i("v_and_b32 v5, 7, v0"); a.i("v_lshl_add_u32 v4, v5, 2, v4")
    a.i("v_mov_b32 v5, 0"); a.i(f"s_mov_b32 s16, {WS_SYNC}")
    a.i("buffer_store_dword v5, v4, s[12:15], s16 offen")
    a.label("K0_NZ")
    a.i("s_cmp_lg_u32 s2, 85"); a.i("s_cbranch_scc1 K0_NF")
    a.i("v_lshlrev_b32 v4, 4, v0")
    for j in range(4): a.i(f"v_mov_b32 {vr(92 + j)}, -1")
    for j in range(7):
        a.i(f"s_mov_b32 s16, {WS_GU + 4096 * j}")
        a.i("buffer_store_dwordx4 v[92:95], v4, s[12:15], s16 offen")
    a.label("K0_NF")
    a.i("s_cmp_lt_u32 s2, 86"); a.i("s_cbranch_scc1 K0_NR"); a.i("s_cmp_ge_u32 s2, 102"); a.i("s_cbranch_scc1 K0_NR")
    a.i("v_lshlrev_b32 v4, 4, v0")
    for j in range(4): a.i(f"v_mov_b32 {vr(92 + j)}, -1")
    a.i(f"s_sub_u32 s16, s2, 86"); a.i("s_lshl_b32 s16, s16, 12"); a.i(f"s_add_u32 s16, s16, {WS_RR}")
    a.i("buffer_store_dwordx4 v[92:95], v4, s[12:15], s16 offen")
    a.label("K0_NR")
    a.i("s_waitcnt vmcnt(0)")
    X = 40
    for i in range(7):
        for j in range(4):
            bf_lo(a, X + 8 * i + 2 * j, 8 + 4 * i + j); bf_hi(a, X + 8 * i + 2 * j + 1, 8 + 4 * i + j)
    def red8(v):
        for ctl in ("quad_perm:[1,0,3,2]", "quad_perm:[2,3,0,1]", "row_half_mirror"):
            a.i("s_nop 1"); a.i(f"v_add_f32_dpp {vr(v)}, {vr(v)}, {vr(v)} {ctl} row_mask:0xf bank_mask:0xf")
    a.i(f"v_pk_add_f32 v[4:5], {vr(X, 2)}, {vr(X + 2, 2)}")
    for k in range(4, 56, 2): a.i(f"v_pk_add_f32 v[4:5], v[4:5], {vr(X + k, 2)}")
    a.i("v_add_f32 v4, v4, v5"); red8(4)
    a.i(f"v_mul_f32 v4, {hex(f2u(-1.0 / 448))}, v4")
    for k in range(0, 56, 2): a.i(f"v_pk_add_f32 {vr(X + k, 2)}, {vr(X + k, 2)}, v[4:5] op_sel_hi:[1,0]")
    a.i(f"v_pk_mul_f32 v[6:7], {vr(X, 2)}, {vr(X, 2)}")
    for k in range(2, 56, 2): a.i(f"v_pk_fma_f32 v[6:7], {vr(X + k, 2)}, {vr(X + k, 2)}, v[6:7]")
    a.i("v_add_f32 v6, v6, v7"); red8(6)
    a.i(f"v_mul_f32 v6, {hex(f2u(1.0 / 448))}, v6"); a.i(f"v_add_f32 v6, {hex(f2u(1e-5))}, v6")
    a.i("v_rsq_f32 v6, v6"); a.i("s_nop 0"); a.i("v_mul_f32 v7, v4, v6")
    a.i("v_lshlrev_b32 v1, 3, v1"); a.i(f"s_mov_b32 s16, {WS_STAT}")
    a.i("v_cmp_eq_u32 vcc, 0, v2"); a.i("s_and_saveexec_b64 s[18:19], vcc")
    a.i("buffer_store_dwordx2 v[6:7], v1, s[12:15], s16 offen")
    a.i("s_endpgm")
    return kdesc(n, vgpr=96, accum=96, sgpr=40)

def gen_k2(a):
    n = "red_kernel"
    kstart(a, n)
    if HD: hdbg(a, 2, 12, 36, 120, 121)
    a.i("s_cmp_ge_u32 s2, 256"); a.i("s_cbranch_scc1 K2_DONE")
    a.i("s_load_dwordx2 s[4:5], s[0:1], 0")
    a.i("s_load_dwordx2 s[6:7], s[0:1], 48")
    a.i("s_load_dwordx2 s[8:9], s[0:1], 96")
    a.i("s_load_dwordx2 s[10:11], s[0:1], 112")
    a.i("v_lshrrev_b32 v1, 6, v0"); a.i("s_nop 0"); a.i("v_readfirstlane_b32 s3, v1")
    a.i("v_and_b32 v0, 63, v0")
    a.i("s_lshl_b32 s28, s2, 3"); a.i("s_add_u32 s28, s28, s3")
    a.i("s_mul_i32 s29, s28, 896")
    a.i("v_lshlrev_b32 v1, 4, v0")
    a.i("v_cmp_gt_u32 vcc, 56, v0"); a.i("v_mov_b32 v2, 0x7fff0000"); a.i("s_nop 0")
    a.i("v_cndmask_b32 v1, v2, v1, vcc")
    a.i("s_waitcnt lgkmcnt(0)")
    srd(a, 12, 4, 2048 * 896); srd(a, 16, 6, 896); srd(a, 20, 8, 2048 * 896); srd(a, 24, 10, 0x2000000)
    for g in range(8):
        a.i(f"s_add_u32 s30, s29, {WS_PART + g * 2048 * 896}")
        a.i(f"buffer_load_dwordx4 {vr(16 + 4 * g, 4)}, v1, s[24:27], s30 offen")
    a.i(f"buffer_load_dwordx4 v[48:51], v1, s[12:15], s29 offen")
    for k, off in enumerate((WS_GA, WS_A2, WS_SB, WS_GB)):
        a.i(f"s_mov_b32 s30, {off}")
        a.i(f"buffer_load_dwordx4 {vr(52 + 4 * k, 4)}, v1, s[24:27], s30 offen")
    a.i(f"buffer_load_dwordx4 v[68:71], v1, s[16:19], 0 offen")
    for g in range(8):
        a.i(f"s_waitcnt vmcnt({13 - g})")
        for j in range(4):
            if g == 0:
                bf_lo(a, 72 + 2 * j, 16 + j); bf_hi(a, 73 + 2 * j, 16 + j)
            else:
                bf_lo(a, 4, 16 + 4 * g + j); bf_hi(a, 5, 16 + 4 * g + j)
                a.i(f"v_add_f32 {vr(72 + 2 * j)}, {vr(72 + 2 * j)}, v4")
                a.i(f"v_add_f32 {vr(73 + 2 * j)}, {vr(73 + 2 * j)}, v5")
    a.i("s_waitcnt vmcnt(0)")
    def unpack(dst, src):
        for j in range(4):
            bf_lo(a, dst + 2 * j, src + j); bf_hi(a, dst + 2 * j + 1, src + j)
    unpack(80, 48)
    unpack(88, 52)
    for j in range(8):
        round_bf(a, 72 + j, 72 + j)
        a.i(f"v_mul_f32 {vr(72 + j)}, {vr(88 + j)}, {vr(72 + j)}")
        round_bf(a, 72 + j, 72 + j)
        a.i(f"v_add_f32 {vr(80 + j)}, {vr(80 + j)}, {vr(72 + j)}")
        round_bf(a, 80 + j, 80 + j)
    for j in range(4):
        a.i(f"v_cvt_pk_bf16_f32 {vr(16 + j)}, {vr(80 + 2 * j)}, {vr(81 + 2 * j)}")
    a.i(f"s_add_u32 s30, s29, {WS_X1}")
    a.i("buffer_store_dwordx4 v[16:19], v1, s[24:27], s30 offen")
    a.i("v_add_f32 v4, v80, v81")
    for j in range(2, 8): a.i(f"v_add_f32 v4, v4, {vr(80 + j)}")
    wave_sum(a, 4, 5)
    a.i(f"v_mul_f32 v4, {hex(f2u(1.0 / 448))}, v4")
    for j in range(8): a.i(f"v_sub_f32 {vr(96 + j)}, {vr(80 + j)}, v4")
    a.i("v_mul_f32 v6, v96, v96")
    for j in range(1, 8): a.i(f"v_fmac_f32 v6, {vr(96 + j)}, {vr(96 + j)}")
    a.i("v_cmp_gt_u32 vcc, 56, v0"); a.i("s_nop 1")
    a.i("v_cndmask_b32 v6, 0, v6, vcc")
    wave_sum(a, 6, 5)
    a.i(f"v_mul_f32 v6, {hex(f2u(1.0 / 448))}, v6")
    a.i(f"v_add_f32 v6, {hex(f2u(1e-5))}, v6")
    a.i("v_rsq_f32 v6, v6"); a.i("s_nop 0")
    unpack(88, 56)
    unpack(104, 60)
    for j in range(8):
        a.i(f"v_mul_f32 {vr(96 + j)}, {vr(96 + j)}, v6")
        a.i(f"v_fma_f32 {vr(96 + j)}, {vr(96 + j)}, {vr(88 + j)}, {vr(104 + j)}")
        round_bf(a, 96 + j, 96 + j)
    for j in range(4):
        a.i(f"v_cvt_pk_bf16_f32 {vr(20 + j)}, {vr(96 + 2 * j)}, {vr(97 + 2 * j)}")
    a.i(f"s_add_u32 s30, s29, {WS_H2}")
    a.i("buffer_store_dwordx4 v[20:23], v1, s[24:27], s30 offen")
    unpack(88, 68)
    a.i("v_mul_f32 v7, v96, v88")
    for j in range(1, 8): a.i(f"v_fmac_f32 v7, {vr(96 + j)}, {vr(88 + j)}")
    wave_sum(a, 7, 5)
    round_bf(a, 7, 7)
    unpack(88, 64)
    for j in range(8):
        a.i(f"v_mul_f32 {vr(88 + j)}, {vr(88 + j)}, {vr(96 + j)}")
        round_bf(a, 88 + j, 88 + j)
        a.i(f"v_add_f32 {vr(88 + j)}, {vr(88 + j)}, {vr(80 + j)}")
    for j in range(4):
        a.i(f"v_cvt_pk_bf16_f32 {vr(24 + j)}, {vr(88 + 2 * j)}, {vr(89 + 2 * j)}")
    a.i("buffer_store_dwordx4 v[24:27], v1, s[20:23], s29 offen")
    a.i("v_cmp_eq_u32 vcc, 0, v0"); a.i("s_and_saveexec_b64 s[32:33], vcc")
    a.i("s_lshl_b32 s30, s28, 2"); a.i(f"s_add_u32 s30, s30, {WS_R}")
    a.i("v_mov_b32 v8, 0")
    a.i("buffer_store_dword v7, v8, s[24:27], s30 offen")
    a.i("s_mov_b64 exec, s[32:33]")
    a.i("s_waitcnt vmcnt(0)")
    if HD: hdbg(a, 2, 13, 36, 120, 121)
    a.label("K2_DONE")
    a.i("s_endpgm")
    return kdesc(n, vgpr=128, accum=128, sgpr=48)

def wave_max_u32(a, v, t):
    for ctl in ("quad_perm:[1,0,3,2]", "quad_perm:[2,3,0,1]", "row_half_mirror", "row_mirror"):
        a.i("s_nop 1")
        a.i(f"v_max_u32_dpp {vr(v)}, {vr(v)}, {vr(v)} {ctl} row_mask:0xf bank_mask:0xf")
    for sw in ("v_permlane16_swap_b32", "v_permlane32_swap_b32"):
        a.i(f"v_mov_b32 {vr(t)}, {vr(v)}")
        a.i("s_nop 1")
        a.i(f"{sw} {vr(v)}, {vr(t)}")
        a.i("s_nop 1")
        a.i(f"v_max_u32 {vr(v)}, {vr(v)}, {vr(t)}")

def gen_k3(a):
    n = "gate_kernel"
    NWG = 112
    L_CAND = 28672; L_SEL = 28672 + 128
    kstart(a, n)
    a.i(f"s_cmp_ge_u32 s2, {NWG}"); a.i("s_cbranch_scc1 K3_DONE")
    a.i("s_load_dwordx4 s[4:7], s[0:1], 56")
    a.i("s_load_dwordx2 s[8:9], s[0:1], 112")
    a.i("v_lshrrev_b32 v1, 6, v0"); a.i("s_nop 0"); a.i("v_readfirstlane_b32 s3, v1")
    a.i("v_and_b32 v2, 63, v0")
    a.i("s_waitcnt lgkmcnt(0)")
    srd(a, 20, 8, 0x2000000)
    a.i("v_lshlrev_b32 v3, 5, v0")
    a.i(f"s_mov_b32 s24, {WS_R}")
    a.i("buffer_load_dwordx4 v[16:19], v3, s[20:23], s24 offen")
    a.i("buffer_load_dwordx4 v[20:23], v3, s[20:23], s24 offen offset:16")
    a.i("s_cmp_ge_u32 s3, 2")
    a.i("s_cselect_b32 s12, s6, s4"); a.i("s_cselect_b32 s13, s7, s5")
    a.i(f"s_mov_b32 s14, {448 * 3584}"); a.i("s_mov_b32 s15, 0x20000")
    a.i("v_lshrrev_b32 v4, 1, v2"); a.i("v_mul_u32_u24 v4, 3584, v4")
    a.i("v_and_b32 v5, 1, v2"); a.i("v_lshl_add_u32 v4, v5, 4, v4")
    a.i("s_lshl_b32 s25, s2, 5"); a.i("v_add_u32 v4, s25, v4")
    a.i("s_and_b32 s26, s3, 1"); a.i("s_mul_i32 s27, s26, 7")
    a.i("s_mul_i32 s28, s3, 7168")
    a.i(f"s_mul_i32 s27, s27, {32 * 3584}")
    for i in range(7):
        a.i(f"s_add_u32 m0, s28, {1024 * i}")
        a.i(f"s_add_u32 s29, s27, {32 * 3584 * i}")
        a.i("buffer_load_dwordx4 v4, s[12:15], s29 offen lds")
    a.i("s_waitcnt vmcnt(7)")
    a.i("v_lshlrev_b32 v6, 3, v0"); a.i("v_sub_u32 v6, 2047, v6")
    for j in range(8):
        k = 16 + j
        a.i(f"v_ashrrev_i32 v7, 31, {vr(k)}")
        a.i("v_or_b32 v7, 0x80000000, v7")
        a.i(f"v_xor_b32 {vr(k)}, {vr(k)}, v7")
        a.i(f"v_and_b32 {vr(k)}, 0xffff0000, {vr(k)}")
        a.i(f"v_subrev_u32 v7, {j}, v6")
        a.i(f"v_or_b32 {vr(k)}, {vr(k)}, v7")
    a.i("v_mov_b32 v9, 0")
    for rnd in range(8):
        a.i("v_max3_u32 v8, v16, v17, v18"); a.i("v_max3_u32 v8, v8, v19, v20")
        a.i("v_max3_u32 v8, v8, v21, v22"); a.i("v_max_u32 v8, v8, v23")
        wave_max_u32(a, 8, 7)
        a.i(f"v_cmp_eq_u32 s[30:31], {rnd}, v2")
        if rnd < 7:
            for j in range(0, 8, 2):
                a.i(f"v_cmp_eq_u32 s[32:33], {vr(16 + j)}, v8")
                a.i(f"v_cmp_eq_u32 s[34:35], {vr(17 + j)}, v8")
                a.i("s_nop 0")
                a.i(f"v_cndmask_b32 {vr(16 + j)}, {vr(16 + j)}, 0, s[32:33]")
                a.i(f"v_cndmask_b32 {vr(17 + j)}, {vr(17 + j)}, 0, s[34:35]")
        else:
            a.i("s_nop 1")
        a.i("v_cndmask_b32 v9, v9, v8, s[30:31]")
    a.i("s_lshl_b32 s29, s3, 5"); a.i("v_lshl_add_u32 v7, v2, 2, s29"); a.i(f"v_add_u32 v7, {L_CAND}, v7")
    a.i("v_cmp_gt_u32 vcc, 8, v2"); a.i("s_and_saveexec_b64 s[36:37], vcc")
    a.i("ds_write_b32 v7, v9")
    a.i("s_mov_b64 exec, s[36:37]")
    a.i("s_waitcnt lgkmcnt(0) vmcnt(0)"); a.i("s_barrier")
    a.i("s_cmp_lg_u32 s3, 0"); a.i("s_cbranch_scc1 K3_DONE")
    a.i("v_and_b32 v7, 31, v2"); a.i("v_lshlrev_b32 v7, 2, v7"); a.i(f"v_add_u32 v7, {L_CAND}, v7")
    a.i("ds_read_b32 v9, v7")
    a.i(f"v_mov_b32 v10, {L_CAND}")
    for j in range(8): a.i(f"ds_read_b128 {vr(16 + 4 * j, 4)}, v10 offset:{16 * j}")
    a.i("s_waitcnt lgkmcnt(0)")
    a.i("v_mov_b32 v11, 0")
    for j in range(0, 32, 2):
        a.i(f"v_cmp_gt_u32 s[32:33], {vr(16 + j)}, v9")
        a.i(f"v_cmp_gt_u32 s[34:35], {vr(17 + j)}, v9")
        a.i("s_nop 0")
        a.i("v_addc_co_u32 v11, vcc, 0, v11, s[32:33]")
        a.i("v_addc_co_u32 v11, vcc, 0, v11, s[34:35]")
    a.i("v_cmp_gt_u32 s[32:33], 8, v11"); a.i("v_cmp_gt_u32 s[34:35], 32, v2")
    a.i("s_and_b64 s[32:33], s[32:33], s[34:35]")
    a.i("v_lshlrev_b32 v11, 2, v11"); a.i(f"v_add_u32 v11, {L_SEL}, v11")
    a.i("s_and_saveexec_b64 s[36:37], s[32:33]")
    a.i("ds_write_b32 v11, v9")
    a.i("s_mov_b64 exec, s[36:37]")
    a.i("s_waitcnt lgkmcnt(0)")
    a.i("v_and_b32 v7, 7, v2"); a.i("v_lshlrev_b32 v7, 2, v7"); a.i(f"v_add_u32 v7, {L_SEL}, v7")
    a.i("ds_read_b32 v9, v7")
    a.i("s_waitcnt lgkmcnt(0)")
    a.i("v_and_b32 v10, 0xffff, v9"); a.i("v_sub_u32 v10, 2047, v10")
    a.i("v_mul_u32_u24 v11, 896, v10"); a.i("v_lshrrev_b32 v12, 4, v2"); a.i("v_lshl_add_u32 v11, v12, 4, v11")
    a.i(f"s_mov_b32 s24, {WS_H2}")
    for ks in range(14):
        a.i(f"buffer_load_dwordx4 {vr(16 + 4 * ks, 4)}, v11, s[20:23], s24 offen offset:{64 * ks}")
    a.i("s_cmp_lg_u32 s2, 0"); a.i("s_cbranch_scc1 K3_NOPUB")
    a.i("v_lshrrev_b32 v13, 16, v9")
    a.i("v_and_b32 v14, 0x8000, v13"); a.i("v_cmp_ne_u32 vcc, 0, v14")
    a.i("v_xor_b32 v14, 0x8000, v13"); a.i("v_xor_b32 v15, 0xffff, v13")
    a.i("v_cndmask_b32 v13, v15, v14, vcc"); a.i("v_lshlrev_b32 v13, 16, v13")
    a.i("v_lshlrev_b32 v14, 2, v2")
    a.i("v_cmp_gt_u32 vcc, 8, v2"); a.i("s_and_saveexec_b64 s[36:37], vcc")
    a.i(f"s_mov_b32 s24, {WS_IDX}")
    a.i("buffer_store_dword v10, v14, s[20:23], s24 offen")
    a.i("buffer_store_dword v13, v14, s[20:23], s24 offen offset:64")
    a.i("s_mov_b64 exec, s[36:37]")
    a.label("K3_NOPUB")
    a.i("v_bfe_u32 v13, v2, 2, 2"); a.i("v_lshl_add_u32 v13, v12, 3, v13"); a.i("v_lshlrev_b32 v13, 5, v13")
    a.i("v_and_b32 v14, 3, v2"); a.i("v_lshl_add_u32 v13, v14, 3, v13")
    for m in range(2):
        for ks in range(14):
            for r2 in range(2):
                a.i(f"ds_read_b64_tr_b16 {vr(80 + 56 * m + 4 * ks + 2 * r2, 2)}, v13 offset:{14336 * m + 1024 * ks + 128 * r2}")
            if ks % 7 == 6: a.i("s_waitcnt lgkmcnt(0)")
    a.i("s_waitcnt vmcnt(0)")
    for ks in range(14):
        for m in range(2):
            acc = vr(72 + 4 * m, 4)
            a.i(f"v_mfma_f32_16x16x32_bf16 {acc}, {vr(80 + 56 * m + 4 * ks, 4)}, {vr(16 + 4 * ks, 4)}, {'0' if ks == 0 else acc}")
    a.i("s_nop 15")
    for r in range(4):
        round_bf(a, 72 + r, 72 + r); round_bf(a, 76 + r, 76 + r)
        sigmoid(a, 5, 72 + r, 6)
        a.i(f"v_mul_f32 {vr(72 + r)}, {vr(72 + r)}, v5"); round_bf(a, 72 + r, 72 + r)
        a.i(f"v_mul_f32 {vr(72 + r)}, {vr(72 + r)}, {vr(76 + r)}")
    a.i("v_cvt_pk_bf16_f32 v76, v72, v73"); a.i("v_cvt_pk_bf16_f32 v77, v74, v75")
    a.i("v_and_b32 v5, 15, v2"); a.i("v_mul_u32_u24 v6, 3584, v5"); a.i("v_lshl_add_u32 v6, v12, 3, v6")
    a.i(f"s_lshl_b32 s24, s2, 5"); a.i(f"s_add_u32 s24, s24, {WS_GU}")
    a.i("v_cmp_gt_u32 vcc, 8, v5"); a.i("s_and_saveexec_b64 s[36:37], vcc")
    a.i("buffer_store_dwordx2 v[76:77], v6, s[20:23], s24 offen")
    a.i("s_mov_b64 exec, s[36:37]")
    a.i("s_waitcnt vmcnt(0)")
    a.label("K3_DONE")
    a.i("s_endpgm")
    return kdesc(n, vgpr=200, accum=200, sgpr=48), NWG, 28672 + 256

def gen_k4(a):
    n = "down_kernel"
    NWG = 28
    L_RED = 57344
    kstart(a, n)
    a.i(f"s_cmp_ge_u32 s2, {NWG}"); a.i("s_cbranch_scc1 K4_DONE")
    a.i("s_load_dwordx2 s[4:5], s[0:1], 72")
    a.i("s_load_dwordx2 s[6:7], s[0:1], 96")
    a.i("s_load_dwordx2 s[8:9], s[0:1], 112")
    a.i("v_lshrrev_b32 v1, 6, v0"); a.i("s_nop 0"); a.i("v_readfirstlane_b32 s3, v1")
    a.i("v_and_b32 v2, 63, v0")
    a.i("s_waitcnt lgkmcnt(0)")
    srd(a, 12, 4, 1792 * 896); srd(a, 16, 6, 2048 * 896); srd(a, 20, 8, 0x2000000)
    a.i("v_lshrrev_b32 v4, 1, v2"); a.i("v_mul_u32_u24 v4, 896, v4")
    a.i("v_and_b32 v5, 1, v2"); a.i("v_lshl_add_u32 v4, v5, 4, v4")
    a.i("s_lshl_b32 s25, s2, 5"); a.i("v_add_u32 v4, s25, v4")
    a.i(f"s_mul_i32 s27, s3, {448 * 896}"); a.i("s_mul_i32 s28, s3, 14336")
    for i in range(14):
        a.i(f"s_add_u32 m0, s28, {1024 * i}")
        a.i(f"s_add_u32 s29, s27, {32 * 896 * i}")
        a.i("buffer_load_dwordx4 v4, s[12:15], s29 offen lds")
    a.i("v_and_b32 v5, 7, v2"); a.i("v_mul_u32_u24 v6, 3584, v5"); a.i("v_lshrrev_b32 v12, 4, v2"); a.i("v_lshl_add_u32 v6, v12, 4, v6")
    a.i(f"s_mul_i32 s24, s3, 896"); a.i(f"s_add_u32 s24, s24, {WS_GU}")
    for ks in range(14):
        a.i(f"buffer_load_dwordx4 {vr(16 + 4 * ks, 4)}, v6, s[20:23], s24 offen offset:{64 * ks}")
    a.i("v_lshlrev_b32 v7, 2, v5"); a.i(f"s_mov_b32 s24, {WS_IDX}")
    a.i("buffer_load_dword v8, v7, s[20:23], s24 offen")
    a.i("buffer_load_dword v9, v7, s[20:23], s24 offen offset:64")
    a.i("v_bfe_u32 v13, v2, 2, 2"); a.i("v_lshl_add_u32 v13, v12, 3, v13"); a.i("v_lshlrev_b32 v13, 5, v13")
    a.i("v_and_b32 v14, 3, v2"); a.i("v_lshl_add_u32 v13, v14, 3, v13"); a.i("v_add_u32 v13, s28, v13")
    a.i("s_waitcnt vmcnt(0)")
    a.i("v_mul_u32_u24 v10, 896, v8"); a.i("v_lshl_add_u32 v10, v12, 3, v10"); a.i("v_add_u32 v10, s25, v10")
    a.i(f"s_mov_b32 s24, {WS_X1}"); a.i("buffer_load_dwordx2 v[76:77], v10, s[20:23], s24 offen")
    a.i(f"s_mov_b32 s24, {WS_H2}"); a.i("buffer_load_dwordx2 v[78:79], v10, s[20:23], s24 offen")
    a.i("v_lshlrev_b32 v11, 3, v12"); a.i("v_add_u32 v11, s25, v11")
    a.i(f"s_mov_b32 s24, {WS_GB}"); a.i("buffer_load_dwordx2 v[14:15], v11, s[20:23], s24 offen")
    for ks in range(14):
        for r2 in range(2):
            a.i(f"ds_read_b64_tr_b16 {vr(80 + 4 * ks + 2 * r2, 2)}, v13 offset:{1024 * ks + 128 * r2}")
        if ks % 7 == 6: a.i("s_waitcnt lgkmcnt(0)")
    for ks in range(14):
        a.i(f"v_mfma_f32_16x16x32_bf16 v[72:75], {vr(80 + 4 * ks, 4)}, {vr(16 + 4 * ks, 4)}, {'0' if ks == 0 else 'v[72:75]'}")
    a.i("s_nop 15")
    a.i("v_lshlrev_b32 v3, 4, v2"); a.i("s_lshl_b32 s24, s3, 10"); a.i(f"s_add_u32 s24, s24, {L_RED}"); a.i("v_add_u32 v3, s24, v3")
    a.i("ds_write_b128 v3, v[72:75]")
    a.i("s_waitcnt lgkmcnt(0)"); a.i("s_barrier")
    a.i("s_cmp_lg_u32 s3, 0"); a.i("s_cbranch_scc1 K4_DONE")
    for w in range(1, 4): a.i(f"ds_read_b128 {vr(16 + 4 * w, 4)}, v3 offset:{1024 * w}")
    a.i("s_waitcnt lgkmcnt(0) vmcnt(0)")
    sigmoid(a, 5, 9, 6); round_bf(a, 5, 5)
    for r in range(4):
        for w in range(1, 4): a.i(f"v_add_f32 {vr(72 + r)}, {vr(72 + r)}, {vr(16 + 4 * w + r)}")
        round_bf(a, 72 + r, 72 + r)
        a.i(f"v_mul_f32 {vr(72 + r)}, {vr(72 + r)}, v5"); round_bf(a, 72 + r, 72 + r)
    for half in range(2):
        bf_lo(a, 16 + 2 * half, 78 + half); bf_hi(a, 17 + 2 * half, 78 + half)
        bf_lo(a, 20 + 2 * half, 76 + half); bf_hi(a, 21 + 2 * half, 76 + half)
        bf_lo(a, 24 + 2 * half, 14 + half); bf_hi(a, 25 + 2 * half, 14 + half)
    for r in range(4):
        a.i(f"v_add_f32 {vr(72 + r)}, {vr(72 + r)}, {vr(16 + r)}"); round_bf(a, 72 + r, 72 + r)
        a.i(f"v_mul_f32 {vr(72 + r)}, {vr(72 + r)}, {vr(24 + r)}"); round_bf(a, 72 + r, 72 + r)
        a.i(f"v_add_f32 {vr(72 + r)}, {vr(72 + r)}, {vr(20 + r)}")
    a.i("v_cvt_pk_bf16_f32 v76, v72, v73"); a.i("v_cvt_pk_bf16_f32 v77, v74, v75")
    a.i("v_and_b32 v5, 15, v2")
    a.i("v_cmp_gt_u32 vcc, 8, v5"); a.i("s_and_saveexec_b64 s[36:37], vcc")
    a.i("buffer_store_dwordx2 v[76:77], v10, s[16:19], 0 offen")
    a.i("s_mov_b64 exec, s[36:37]")
    a.i("s_waitcnt vmcnt(0)")
    a.label("K4_DONE")
    a.i("s_endpgm")
    return kdesc(n, vgpr=144, accum=144, sgpr=48), NWG, L_RED + 4096

MST = []
def mstamp(a, on, name):
    if not on: return
    k = len(MST); MST.append(name)
    a.i(f"s_memrealtime s[{60 + 2 * k}:{61 + 2 * k}]")
def mstamps_out(a, on, which=0):
    if not on: return
    a.i("s_mov_b64 exec, -1")
    a.i("s_waitcnt lgkmcnt(0)")
    a.i("s_mov_b32 s52, s8"); a.i("s_mov_b32 s53, s9"); a.i("s_mov_b32 s54, 0x10000000"); a.i("s_mov_b32 s55, 0x20000")
    a.i("s_lshl_b32 s56, s2, 7"); a.i("s_add_u32 s56, s56, 0x6100000")
    a.i("v_mov_b32 v15, 0")
    for k in range(len(MST)):
        a.i(f"v_mov_b32 v14, s{60 + 2 * k}")
        a.i(f"buffer_store_dword v14, v15, s[52:55], s56 offen offset:{4 * k}")
        a.i("s_nop 1")

def gen_moe(a, st=False):
    n = "moe_kernel"
    NG = 112; NDOWN = 28; NWG = NG + NDOWN
    L_CAND = 57344; L_SEL = L_CAND + 128; L_RED = L_CAND + 256
    NSH = 8
    kstart(a, n)
    if HD: hdbg(a, 3, 14, 48, 210, 211)
    a.i(f"s_cmp_ge_u32 s2, {NWG}"); a.i("s_cbranch_scc1 KM_DONE")
    mstamp(a, st, 'start')
    a.i("s_load_dwordx4 s[4:7], s[0:1], 56")
    a.i("s_load_dwordx2 s[40:41], s[0:1], 72")
    a.i("s_load_dwordx2 s[42:43], s[0:1], 96")
    a.i("s_load_dwordx2 s[8:9], s[0:1], 112")
    a.i("v_lshrrev_b32 v1, 6, v0"); a.i("s_nop 0"); a.i("v_readfirstlane_b32 s3, v1")
    a.i("v_and_b32 v2, 63, v0")
    a.i("v_mov_b32 v201, 0x7fffffff")
    a.i("v_lshlrev_b32 v3, 5, v0")
    a.i("s_waitcnt lgkmcnt(0)")
    srd(a, 20, 8, 0x2000000)
    a.i(f"s_mov_b32 s24, {WS_R}")
    a.i("buffer_load_dwordx4 v[16:19], v3, s[20:23], s24 offen")
    a.i("buffer_load_dwordx4 v[20:23], v3, s[20:23], s24 offen offset:16")
    a.i("v_lshrrev_b32 v4, 1, v2"); a.i("v_and_b32 v6, 1, v2")
    a.i(f"s_cmp_ge_u32 s2, {NG}"); a.i("s_cbranch_scc1 KM_SD")
    a.i("s_cmp_ge_u32 s3, 2")
    a.i("s_cselect_b32 s12, s6, s4"); a.i("s_cselect_b32 s13, s7, s5")
    a.i(f"s_mov_b32 s14, {448 * 3584}"); a.i("s_mov_b32 s15, 0x20000")
    a.i("v_mul_u32_u24 v5, 3584, v4"); a.i("v_lshl_add_u32 v5, v6, 4, v5")
    a.i("s_lshl_b32 s25, s2, 5"); a.i("v_add_u32 v5, s25, v5")
    a.i("s_and_b32 s26, s3, 1"); a.i(f"s_mul_i32 s27, s26, {7 * 32 * 3584}")
    a.i("s_mul_i32 s28, s3, 7168"); a.i(f"s_mov_b32 s39, {32 * 3584}")
    a.i("s_branch KM_SJ")
    a.label("KM_SD")
    srd(a, 12, 40, 1792 * 896)
    a.i(f"s_sub_u32 s25, s2, {NG}"); a.i("s_lshl_b32 s25, s25, 5")
    a.i("v_mul_u32_u24 v5, 896, v4"); a.i("v_lshl_add_u32 v5, v6, 4, v5"); a.i("v_add_u32 v5, s25, v5")
    a.i(f"s_mul_i32 s27, s3, {448 * 896}"); a.i("s_mul_i32 s28, s3, 14336"); a.i(f"s_mov_b32 s39, {32 * 896}")
    a.label("KM_SJ")
    def wdma(i):
        a.i(f"s_add_u32 m0, s28, {1024 * i}")
        a.i("s_nop 0")
        a.i("buffer_load_dwordx4 v5, s[12:15], s27 offen lds")
        a.i("s_add_u32 s27, s27, s39")
    for i in range(7): wdma(i)
    a.i(f"s_cmp_lt_u32 s2, {NG}"); a.i("s_cbranch_scc1 KM_ND")
    a.i("s_waitcnt vmcnt(7)")
    for i in range(7, 14): wdma(i)
    a.i("s_branch KM_RA")
    a.label("KM_ND")
    a.i("s_waitcnt vmcnt(7)")
    a.label("KM_RA")
    mstamp(a, st, 'rarr')
    a.i("v_lshlrev_b32 v6, 3, v0"); a.i("v_sub_u32 v6, 2047, v6")
    for j in range(8):
        k = 16 + j
        a.i(f"v_ashrrev_i32 v7, 31, {vr(k)}")
        a.i("v_or_b32 v7, 0x80000000, v7")
        a.i(f"v_xor_b32 {vr(k)}, {vr(k)}, v7")
        a.i(f"v_and_b32 {vr(k)}, 0xffff0000, {vr(k)}")
        a.i(f"v_subrev_u32 v7, {j}, v6")
        a.i(f"v_or_b32 {vr(k)}, {vr(k)}, v7")
    net = [(0,1),(2,3),(4,5),(6,7),(0,2),(1,3),(4,6),(5,7),(1,2),(5,6),(0,4),(3,7),(1,5),(2,6),(1,4),(3,6),(2,4),(3,5),(3,4)]
    for x, y in net:
        a.i(f"v_max_u32 v7, {vr(16 + x)}, {vr(16 + y)}")
        a.i(f"v_min_u32 {vr(16 + y)}, {vr(16 + x)}, {vr(16 + y)}")
        a.i(f"v_mov_b32 {vr(16 + x)}, v7")
    a.i("v_mov_b32 v9, 0")
    for rnd in range(8):
        a.i("v_mov_b32 v8, v16")
        wave_max_u32(a, 8, 7)
        a.i(f"v_cmp_eq_u32 s[30:31], {rnd}, v2")
        if rnd < 7:
            a.i("v_cmp_eq_u32 vcc, v16, v8")
            a.i("s_nop 1")
            for j in range(7 - rnd):
                a.i(f"v_cndmask_b32 {vr(16 + j)}, {vr(16 + j)}, {vr(17 + j)}, vcc")
        else:
            a.i("s_nop 1")
        a.i("v_cndmask_b32 v9, v9, v8, s[30:31]")
    mstamp(a, st, 'rounds')
    a.i("s_lshl_b32 s29, s3, 5"); a.i("v_lshl_add_u32 v7, v2, 2, s29"); a.i(f"v_add_u32 v7, {L_CAND}, v7")
    a.i("v_cmp_gt_u32 vcc, 8, v2"); a.i("s_and_saveexec_b64 s[36:37], vcc")
    a.i("ds_write_b32 v7, v9")
    a.i("s_mov_b64 exec, s[36:37]")
    a.i("s_waitcnt lgkmcnt(0)")
    a.i("s_barrier")
    mstamp(a, st, 'bar1')
    a.i("s_cmp_lg_u32 s3, 0"); a.i("s_cbranch_scc1 KM_OTH")
    a.i("v_and_b32 v7, 31, v2"); a.i("v_lshlrev_b32 v7, 2, v7"); a.i(f"v_add_u32 v7, {L_CAND}, v7")
    a.i("ds_read_b32 v9, v7")
    a.i(f"v_mov_b32 v10, {L_CAND}")
    for j in range(8): a.i(f"ds_read_b128 {vr(16 + 4 * j, 4)}, v10 offset:{16 * j}")
    a.i("s_waitcnt lgkmcnt(0)")
    a.i("v_mov_b32 v11, 0")
    for j in range(0, 32, 2):
        a.i(f"v_cmp_gt_u32 s[32:33], {vr(16 + j)}, v9")
        a.i(f"v_cmp_gt_u32 s[34:35], {vr(17 + j)}, v9")
        a.i("s_nop 0")
        a.i("v_addc_co_u32 v11, vcc, 0, v11, s[32:33]")
        a.i("v_addc_co_u32 v11, vcc, 0, v11, s[34:35]")
    a.i("v_cmp_gt_u32 s[32:33], 8, v11"); a.i("v_cmp_gt_u32 s[34:35], 32, v2")
    a.i("s_and_b64 s[32:33], s[32:33], s[34:35]")
    a.i("v_lshlrev_b32 v11, 2, v11"); a.i(f"v_add_u32 v11, {L_SEL}, v11")
    a.i("s_and_saveexec_b64 s[36:37], s[32:33]")
    a.i("ds_write_b32 v11, v9")
    a.i("s_mov_b64 exec, s[36:37]")
    a.i("s_waitcnt lgkmcnt(0)")
    a.i("v_and_b32 v7, 7, v2"); a.i("v_lshlrev_b32 v7, 2, v7"); a.i(f"v_add_u32 v7, {L_SEL}, v7")
    a.i("ds_read_b32 v9, v7")
    a.i("s_waitcnt lgkmcnt(0)")
    mstamp(a, st, 'idx')
    a.i("v_and_b32 v10, 0xffff, v9"); a.i("v_sub_u32 v10, 2047, v10")
    a.i("v_mul_u32_u24 v11, 896, v10"); a.i("v_lshrrev_b32 v12, 4, v2")
    a.i(f"s_cmp_ge_u32 s2, {NG}"); a.i("s_cbranch_scc1 KM_DN0")
    a.i("v_lshl_add_u32 v200, v12, 4, v11")
    a.i(f"s_mov_b32 s24, {WS_H2}")
    for ks in range(14):
        a.i(f"buffer_load_dwordx4 {vr(16 + 4 * ks, 4)}, v200, s[20:23], s24 offen offset:{64 * ks}")
    a.i("s_waitcnt vmcnt(14)")
    a.i("s_barrier")
    a.i("v_bfe_u32 v13, v2, 2, 2"); a.i("v_lshl_add_u32 v13, v12, 3, v13"); a.i("v_lshlrev_b32 v13, 5, v13")
    a.i("v_and_b32 v14, 3, v2"); a.i("v_lshl_add_u32 v13, v14, 3, v13")
    for m in range(2):
        for ks in range(14):
            for r2 in range(2):
                a.i(f"ds_read_b64_tr_b16 {vr(80 + 56 * m + 4 * ks + 2 * r2, 2)}, v13 offset:{14336 * m + 1024 * ks + 128 * r2}")
            if ks % 7 == 6: a.i("s_waitcnt lgkmcnt(0)")
    a.i("s_waitcnt vmcnt(0)")
    mstamp(a, st, 'gath')
    for ks in range(14):
        for m in range(2):
            acc = vr(72 + 4 * m, 4)
            a.i(f"v_mfma_f32_16x16x32_bf16 {acc}, {vr(80 + 56 * m + 4 * ks, 4)}, {vr(16 + 4 * ks, 4)}, {'0' if ks == 0 else acc}")
    a.i("s_nop 7")
    for r in range(4):
        round_bf(a, 72 + r, 72 + r); round_bf(a, 76 + r, 76 + r)
        sigmoid(a, 5, 72 + r, 6)
        a.i(f"v_mul_f32 {vr(72 + r)}, {vr(72 + r)}, v5"); round_bf(a, 72 + r, 72 + r)
        a.i(f"v_mul_f32 {vr(72 + r)}, {vr(72 + r)}, {vr(76 + r)}")
    a.i("v_cvt_pk_bf16_f32 v76, v72, v73"); a.i("v_cvt_pk_bf16_f32 v77, v74, v75")
    a.i("v_and_b32 v5, 15, v2"); a.i("v_lshlrev_b32 v6, 4, v5")
    a.i("v_lshrrev_b32 v7, 1, v12"); a.i("v_lshl_add_u32 v6, v7, 7, v6"); a.i("v_and_b32 v7, 1, v12"); a.i("v_lshl_add_u32 v6, v7, 3, v6")
    a.i("s_lshr_b32 s24, s2, 1"); a.i("s_lshl_b32 s24, s24, 9"); a.i("s_and_b32 s26, s2, 1"); a.i("s_lshl_b32 s26, s26, 8")
    a.i("s_add_u32 s24, s24, s26"); a.i(f"s_add_u32 s24, s24, {WS_GU}")
    a.i("v_cmp_gt_u32 vcc, 8, v5"); a.i("s_and_saveexec_b64 s[36:37], vcc")
    a.i("buffer_store_dwordx2 v[76:77], v6, s[20:23], s24 offen sc1")
    a.i("s_mov_b64 exec, s[36:37]")
    mstamp(a, st, 'gust')
    mstamps_out(a, st, 0)
    a.i("s_endpgm")
    a.label("KM_OTH")
    a.i(f"s_cmp_ge_u32 s2, {NG}"); a.i("s_cbranch_scc1 KM_PH2")
    a.i("s_waitcnt vmcnt(0)"); a.i("s_barrier")
    a.i("s_endpgm")
    a.label("KM_DN0")
    a.i("v_lshl_add_u32 v201, v12, 3, v11"); a.i("v_add_u32 v201, s25, v201")
    a.i(f"s_mov_b32 s24, {WS_X1}"); a.i("buffer_load_dwordx2 v[202:203], v201, s[20:23], s24 offen")
    a.i(f"s_mov_b32 s24, {WS_H2}"); a.i("buffer_load_dwordx2 v[204:205], v201, s[20:23], s24 offen")
    a.i("v_lshlrev_b32 v13, 3, v12"); a.i("v_add_u32 v13, s25, v13")
    a.i(f"s_mov_b32 s24, {WS_GB}"); a.i("buffer_load_dwordx2 v[206:207], v13, s[20:23], s24 offen")
    a.i("v_lshrrev_b32 v13, 16, v9")
    a.i("v_and_b32 v14, 0x8000, v13"); a.i("v_cmp_ne_u32 vcc, 0, v14")
    a.i("v_xor_b32 v14, 0x8000, v13"); a.i("v_xor_b32 v15, 0xffff, v13")
    a.i("v_cndmask_b32 v13, v15, v14, vcc"); a.i("v_lshlrev_b32 v208, 16, v13")
    a.label("KM_PH2")
    mstamp(a, st, 'polled')
    a.i("s_waitcnt vmcnt(0)")
    a.i("v_lshrrev_b32 v12, 4, v2")
    a.i("v_bfe_u32 v13, v2, 2, 2"); a.i("v_lshl_add_u32 v13, v12, 3, v13"); a.i("v_lshlrev_b32 v13, 5, v13")
    a.i("v_and_b32 v14, 3, v2"); a.i("v_lshl_add_u32 v13, v14, 3, v13"); a.i("v_add_u32 v13, s28, v13")
    for ks in range(14):
        for r2 in range(2):
            a.i(f"ds_read_b64_tr_b16 {vr(80 + 4 * ks + 2 * r2, 2)}, v13 offset:{1024 * ks + 128 * r2}")
        if ks % 7 == 6: a.i("s_waitcnt lgkmcnt(0)")
    a.i("v_and_b32 v5, 7, v2"); a.i("v_lshlrev_b32 v6, 4, v5"); a.i("v_lshl_add_u32 v6, v12, 7, v6")
    a.i(f"s_mul_i32 s24, s3, {14 * 512}"); a.i(f"s_add_u32 s24, s24, {WS_GU}"); a.i("s_add_u32 s29, s24, 4096")
    a.i("s_mov_b32 s26, 0x40000")
    a.label("KM_POLL")
    for ks in range(14):
        a.i(f"buffer_load_dwordx4 {vr(16 + 4 * ks, 4)}, v6, s[20:23], {'s24' if ks < 8 else 's29'} offen offset:{512 * (ks % 8)} sc1")
    a.i("s_waitcnt vmcnt(0)")
    a.i("v_max3_u32 v7, v16, v17, v18")
    for k in range(19, 71, 2): a.i(f"v_max3_u32 v7, v7, {vr(k)}, {vr(k + 1)}")
    a.i("v_max_u32 v7, v7, v71")
    a.i("v_cmp_eq_u32 vcc, -1, v7")
    a.i("s_sub_u32 s26, s26, 1"); a.i("s_cbranch_scc1 KM_GOT")
    a.i("s_cbranch_vccnz KM_POLL")
    a.label("KM_GOT")
    mstamp(a, st, 'guld')
    for ks in range(14):
        a.i(f"v_mfma_f32_16x16x32_bf16 v[72:75], {vr(80 + 4 * ks, 4)}, {vr(16 + 4 * ks, 4)}, {'0' if ks == 0 else 'v[72:75]'}")
    a.i("s_nop 7")
    a.i("v_lshlrev_b32 v3, 4, v2"); a.i("s_lshl_b32 s24, s3, 10"); a.i(f"s_add_u32 s24, s24, {L_RED}"); a.i("v_add_u32 v3, s24, v3")
    a.i("ds_write_b128 v3, v[72:75]")
    a.i("s_waitcnt lgkmcnt(0)"); a.i("s_barrier")
    a.i("s_cmp_lg_u32 s3, 0"); a.i("s_cbranch_scc1 KM_DONE")
    for w in range(1, 4): a.i(f"ds_read_b128 {vr(16 + 4 * w, 4)}, v3 offset:{1024 * w}")
    srd(a, 16, 42, 2048 * 896)
    sigmoid(a, 5, 208, 6); round_bf(a, 5, 5)
    a.i("s_waitcnt lgkmcnt(0)")
    for r in range(4):
        for w in range(1, 4): a.i(f"v_add_f32 {vr(72 + r)}, {vr(72 + r)}, {vr(16 + 4 * w + r)}")
        round_bf(a, 72 + r, 72 + r)
        a.i(f"v_mul_f32 {vr(72 + r)}, {vr(72 + r)}, v5"); round_bf(a, 72 + r, 72 + r)
    for half in range(2):
        bf_lo(a, 16 + 2 * half, 204 + half); bf_hi(a, 17 + 2 * half, 204 + half)
        bf_lo(a, 20 + 2 * half, 202 + half); bf_hi(a, 21 + 2 * half, 202 + half)
        bf_lo(a, 24 + 2 * half, 206 + half); bf_hi(a, 25 + 2 * half, 206 + half)
    for r in range(4):
        a.i(f"v_add_f32 {vr(72 + r)}, {vr(72 + r)}, {vr(16 + r)}"); round_bf(a, 72 + r, 72 + r)
        a.i(f"v_mul_f32 {vr(72 + r)}, {vr(72 + r)}, {vr(24 + r)}"); round_bf(a, 72 + r, 72 + r)
        a.i(f"v_add_f32 {vr(72 + r)}, {vr(72 + r)}, {vr(20 + r)}")
    a.i("v_cvt_pk_bf16_f32 v76, v72, v73"); a.i("v_cvt_pk_bf16_f32 v77, v74, v75")
    a.i("v_and_b32 v5, 15, v2")
    a.i("v_cmp_gt_u32 vcc, 8, v5"); a.i("s_and_saveexec_b64 s[36:37], vcc")
    a.i("buffer_store_dwordx2 v[76:77], v201, s[16:19], 0 offen")
    a.i("s_mov_b64 exec, s[36:37]")
    if HD:
        a.i("s_waitcnt vmcnt(0)"); hdbg(a, 3, 15, 48, 210, 211, wg=112)
    if st:
        a.i("s_waitcnt vmcnt(0)")
        mstamp(a, st, 'end')
        mstamps_out(a, st, 1)
    a.label("KM_DONE")
    a.i("s_endpgm")
    return kdesc(n, vgpr=216, accum=216, sgpr=96 if st else 56), NWG, L_RED + 4096
```

```python
from asmlib import *
from kern_small import (srd, bf_lo, bf_hi, round_bf, sigmoid, f2u, wave_max_u32, hdbg,
                        WS_PART, WS_X1, WS_H2, WS_R, WS_GA, WS_A2, WS_SB, WS_GB, WS_GU, WS_SYNC, WS_RR)

NG = 128; NEND = 160
L_W = 65536
L_CAND = 131072; L_SEL = L_CAND + 128; L_RED = L_CAND + 256; L_R = 139264; L_RG = 147456; L_MB = 147712

def wave_sum2(a, v0, v1, t0, t1):
    for ctl in ("quad_perm:[1,0,3,2]", "quad_perm:[2,3,0,1]", "row_half_mirror", "row_mirror"):
        a.i("s_nop 0")
        a.i(f"v_add_f32_dpp {vr(v0)}, {vr(v0)}, {vr(v0)} {ctl} row_mask:0xf bank_mask:0xf")
        a.i(f"v_add_f32_dpp {vr(v1)}, {vr(v1)}, {vr(v1)} {ctl} row_mask:0xf bank_mask:0xf")
    for sw in ("v_permlane16_swap_b32", "v_permlane32_swap_b32"):
        a.i(f"v_mov_b32 {vr(t0)}, {vr(v0)}"); a.i(f"v_mov_b32 {vr(t1)}, {vr(v1)}")
        a.i("s_nop 0")
        a.i(f"{sw} {vr(v0)}, {vr(t0)}"); a.i(f"{sw} {vr(v1)}, {vr(t1)}")
        a.i("s_nop 0")
        a.i(f"v_add_f32 {vr(v0)}, {vr(v0)}, {vr(t0)}"); a.i(f"v_add_f32 {vr(v1)}, {vr(v1)}, {vr(t1)}")

def tail(a, R, stamp):
    W, G, QW, WS = R['W'], R['G'], R['QW'], R['SRD_WS']
    T0, T1, T2, T3 = R['T']
    ws = sr(WS, 4)
    SX, SO, SWR, SM = 4, 8, 12, 68
    a.i(f"v_mov_b32 v5, {L_MB}"); a.i("v_mov_b32 v6, 0"); a.i("ds_write_b32 v5, v6")
    a.i("s_waitcnt vmcnt(0) lgkmcnt(0)")
    a.i("s_barrier")
    a.i(f"s_lshl_b32 {sr(T3)}, {sr(QW)}, 7"); a.i(f"s_add_u32 {sr(T3)}, {sr(T3)}, {WS_SYNC}")
    a.i(f"s_cmp_lg_u32 {sr(W)}, 0"); a.i("s_cbranch_scc1 KT_NA")
    a.i("s_mov_b64 exec, 1"); a.i(f"s_lshl_b32 {sr(T0)}, {sr(G)}, 2"); a.i(f"v_mov_b32 v5, {sr(T0)}"); a.i("v_mov_b32 v6, 1")
    a.i(f"buffer_store_dword v6, v5, {ws}, {sr(T3)} offen sc1")
    a.i("s_mov_b64 exec, -1")
    a.label("KT_NA")
    stamp('pub')
    srd(a, SX, R['P_X'], 2048 * 896); srd(a, SO, R['P_OUT'], 2048 * 896); srd(a, SWR, R['P_WR'], 896)
    a.i("v_lshlrev_b32 v1, 4, v0")
    a.i("v_cmp_gt_u32 vcc, 56, v0"); a.i("v_mov_b32 v2, 0x7fff0000"); a.i("s_nop 0")
    a.i("v_cndmask_b32 v1, v2, v1, vcc")
    a.i(f"s_lshl_b32 {sr(T0)}, {sr(QW)}, 6"); a.i(f"s_lshl_b32 {sr(T1)}, {sr(G)}, 3"); a.i(f"s_add_u32 {sr(T0)}, {sr(T0)}, {sr(T1)}")
    a.i(f"s_lshl_b32 {sr(T1)}, {sr(W)}, 1"); a.i(f"s_add_u32 s46, {sr(T0)}, {sr(T1)}")
    a.i("s_mul_i32 s47, s46, 896")
    P = lambda j, g: 16 + 32 * j + 4 * g
    XR = lambda j: 80 + 4 * j
    GA, A2, SB, GB, WR = 88, 92, 96, 100, 104
    ACC = lambda j: 112 + 8 * j
    CEN = lambda j: 128 + 8 * j
    U = 144
    for j in range(2):
        a.i(f"buffer_load_dwordx4 {vr(XR(j), 4)}, v1, {sr(SX, 4)}, s47 offen offset:{896 * j}")
    for reg, off in ((GA, WS_GA), (A2, WS_A2), (SB, WS_SB), (GB, WS_GB)):
        a.i(f"s_mov_b32 {sr(T0)}, {off}")
        a.i(f"buffer_load_dwordx4 {vr(reg, 4)}, v1, {ws}, {sr(T0)} offen")
    a.i(f"buffer_load_dwordx4 {vr(WR, 4)}, v1, {sr(SWR, 4)}, 0 offen")
    a.i("v_and_b32 v5, 7, v0"); a.i("v_lshlrev_b32 v5, 2, v5"); a.i("s_mov_b32 s26, 0x400000"); a.i("s_mov_b32 s27, 0")
    a.i(f"v_mov_b32 v7, {L_MB}")
    a.label("KT_POLL")
    a.i(f"s_cmp_lg_u32 {sr(W)}, 0"); a.i("s_cbranch_scc1 KT_PL")
    a.i(f"buffer_load_dword v6, v5, {ws}, {sr(T3)} offen sc1")
    a.i("s_waitcnt vmcnt(0)")
    a.i("v_cmp_ne_u32 vcc, 0, v6")
    a.i("s_nop 4")
    a.i("s_and_b32 s28, vcc_lo, 0xff")
    a.i("v_mov_b32 v6, s28"); a.i("ds_write_b32 v7, v6")
    a.i("s_branch KT_PJ")
    a.label("KT_PL")
    a.i("ds_read_b32 v6, v7")
    a.i("s_waitcnt lgkmcnt(0)")
    a.i("v_readfirstlane_b32 s28, v6")
    a.label("KT_PJ")
    a.i("s_andn2_b32 s29, s28, s27"); a.i("s_or_b32 s27, s27, s28")
    for g in range(8):
        a.i(f"s_bitcmp1_b32 s29, {g}"); a.i(f"s_cbranch_scc0 KT_PS{g}")
        a.i(f"s_add_u32 {sr(T0)}, s47, {WS_PART + g * 2048 * 896}")
        for j in range(2):
            a.i(f"buffer_load_dwordx4 {vr(P(j, g), 4)}, v1, {ws}, {sr(T0)} offen offset:{896 * j} sc1")
        a.label(f"KT_PS{g}")
    a.i("s_sub_u32 s26, s26, 1"); a.i("s_cbranch_scc1 KT_NP")
    a.i("s_cmp_lg_u32 s27, 0xff"); a.i("s_cbranch_scc1 KT_POLL")
    a.label("KT_NP")
    a.i("s_waitcnt lgkmcnt(0)")
    stamp('got')
    a.i("s_waitcnt vmcnt(0)")
    for g in range(8):
        for j in range(2):
            for k in range(4):
                if g == 0:
                    bf_lo(a, ACC(j) + 2 * k, P(j, 0) + k); bf_hi(a, ACC(j) + 2 * k + 1, P(j, 0) + k)
                else:
                    bf_lo(a, 4 + 2 * j, P(j, g) + k); bf_hi(a, 5 + 2 * j, P(j, g) + k)
                    a.i(f"v_pk_add_f32 {vr(ACC(j) + 2 * k, 2)}, {vr(ACC(j) + 2 * k, 2)}, {vr(4 + 2 * j, 2)}")
    stamp('sum')
    def unpack(dst, src):
        for k in range(4):
            bf_lo(a, dst + 2 * k, src + k); bf_hi(a, dst + 2 * k + 1, src + k)
    unpack(U, GA)
    for j in range(2):
        unpack(CEN(j), XR(j))
        for k in range(8):
            x = ACC(j) + k
            round_bf(a, x, x)
            a.i(f"v_mul_f32 {vr(x)}, {vr(U + k)}, {vr(x)}"); round_bf(a, x, x)
            a.i(f"v_add_f32 {vr(x)}, {vr(CEN(j) + k)}, {vr(x)}"); round_bf(a, x, x)
        for k in range(4):
            a.i(f"v_cvt_pk_bf16_f32 {vr(P(j, 0) + k)}, {vr(ACC(j) + 2 * k)}, {vr(ACC(j) + 2 * k + 1)}")
        a.i(f"s_add_u32 {sr(T0)}, s47, {WS_X1}")
        a.i(f"buffer_store_dwordx4 {vr(P(j, 0), 4)}, v1, {ws}, {sr(T0)} offen offset:{896 * j} sc1")
    for j in range(2):
        a.i(f"v_add_f32 {vr(4 + j)}, {vr(ACC(j))}, {vr(ACC(j) + 1)}")
        for k in range(2, 8): a.i(f"v_add_f32 {vr(4 + j)}, {vr(4 + j)}, {vr(ACC(j) + k)}")
    wave_sum2(a, 4, 5, 6, 7)
    a.i("v_cmp_gt_u32 vcc, 56, v0")
    for j in range(2):
        a.i(f"v_mul_f32 {vr(4 + j)}, {hex(f2u(1.0 / 448))}, {vr(4 + j)}")
        for k in range(8): a.i(f"v_sub_f32 {vr(CEN(j) + k)}, {vr(ACC(j) + k)}, {vr(4 + j)}")
        a.i(f"v_mul_f32 {vr(8 + j)}, {vr(CEN(j))}, {vr(CEN(j))}")
        for k in range(1, 8): a.i(f"v_fmac_f32 {vr(8 + j)}, {vr(CEN(j) + k)}, {vr(CEN(j) + k)}")
        a.i(f"v_cndmask_b32 {vr(8 + j)}, 0, {vr(8 + j)}, vcc")
    wave_sum2(a, 8, 9, 6, 7)
    for j in range(2):
        a.i(f"v_mul_f32 {vr(8 + j)}, {hex(f2u(1.0 / 448))}, {vr(8 + j)}")
        a.i(f"v_add_f32 {vr(8 + j)}, {hex(f2u(1e-5))}, {vr(8 + j)}")
        a.i(f"v_rsq_f32 {vr(8 + j)}, {vr(8 + j)}")
    unpack(U, A2); unpack(U + 8, SB)
    for j in range(2):
        for k in range(8):
            x = CEN(j) + k
            a.i(f"v_mul_f32 {vr(x)}, {vr(x)}, {vr(8 + j)}")
            a.i(f"v_fma_f32 {vr(x)}, {vr(x)}, {vr(U + k)}, {vr(U + 8 + k)}")
            round_bf(a, x, x)
        for k in range(4):
            a.i(f"v_cvt_pk_bf16_f32 {vr(P(j, 1) + k)}, {vr(CEN(j) + 2 * k)}, {vr(CEN(j) + 2 * k + 1)}")
        a.i(f"s_add_u32 {sr(T0)}, s47, {WS_H2}")
        a.i(f"buffer_store_dwordx4 {vr(P(j, 1), 4)}, v1, {ws}, {sr(T0)} offen offset:{896 * j} sc1")
    unpack(U, GB)
    for j in range(2):
        for k in range(8):
            t = U + 8 + k
            a.i(f"v_mul_f32 {vr(t)}, {vr(U + k)}, {vr(CEN(j) + k)}"); round_bf(a, t, t)
            a.i(f"v_add_f32 {vr(t)}, {vr(t)}, {vr(ACC(j) + k)}")
        for k in range(4):
            a.i(f"v_cvt_pk_bf16_f32 {vr(P(j, 2) + k)}, {vr(U + 8 + 2 * k)}, {vr(U + 8 + 2 * k + 1)}")
        a.i(f"buffer_store_dwordx4 {vr(P(j, 2), 4)}, v1, {sr(SO, 4)}, s47 offen offset:{896 * j} sc1")
    unpack(U, WR)
    for j in range(2):
        a.i(f"v_mul_f32 {vr(4 + j)}, {vr(CEN(j))}, {vr(U)}")
        for k in range(1, 8): a.i(f"v_fmac_f32 {vr(4 + j)}, {vr(CEN(j) + k)}, {vr(U + k)}")
    wave_sum2(a, 4, 5, 6, 7)
    round_bf(a, 4, 4); round_bf(a, 5, 5)
    a.i("s_waitcnt vmcnt(0)")
    a.i(f"s_lshl_b32 {sr(T0)}, {sr(W)}, 3"); a.i(f"s_add_u32 {sr(T0)}, {sr(T0)}, {L_RG}"); a.i(f"v_mov_b32 v8, {sr(T0)}")
    a.i("s_mov_b64 exec, 1")
    a.i("ds_write_b64 v8, v[4:5]")
    a.i("s_mov_b64 exec, -1")
    a.i("s_waitcnt lgkmcnt(0)"); a.i("s_barrier")
    a.i(f"s_cmp_lg_u32 {sr(W)}, 0"); a.i("s_cbranch_scc1 KT_NR")
    a.i("v_and_b32 v8, 1, v0"); a.i("v_lshlrev_b32 v8, 4, v8"); a.i(f"v_add_u32 v9, {L_RG}, v8")
    a.i("ds_read_b128 v[4:7], v9")
    a.i("v_lshrrev_b32 v9, 1, v0"); a.i("v_lshl_add_u32 v8, v9, 13, v8")
    a.i(f"s_lshl_b32 {sr(T0)}, s46, 2"); a.i(f"s_add_u32 {sr(T0)}, {sr(T0)}, {WS_RR}")
    a.i("s_waitcnt lgkmcnt(0)")
    a.i("s_mov_b64 exec, 0xffff")
    a.i(f"buffer_store_dwordx4 v[4:7], v8, {ws}, {sr(T0)} offen sc1")
    a.i("s_mov_b64 exec, -1")
    a.label("KT_NR")
    stamp('r')
    a.i("s_and_b32 s24, s2, 7"); a.i("s_lshr_b32 s25, s2, 3")
    a.i(f"s_cmp_ge_u32 s2, {NEND}"); a.i("s_cbranch_scc1 K1_TE")
    a.i(f"s_cmp_ge_u32 s2, {NG}"); a.i("s_cbranch_scc1 KT_RD")
    a.i("s_lshr_b32 s26, s25, 2"); a.i("s_lshl_b32 s26, s26, 3"); a.i("s_add_u32 s26, s26, s24")
    a.i("s_cmp_ge_u32 s26, 28"); a.i("s_cbranch_scc1 K1_TE")
    a.i("s_lshl_b32 s26, s26, 2"); a.i("s_and_b32 s25, s25, 3"); a.i("s_add_u32 s45, s26, s25")
    a.i("s_branch KT_RJ")
    a.label("KT_RD")
    a.i("s_cmp_ge_u32 s24, 7"); a.i("s_cbranch_scc1 K1_TE")
    a.i(f"s_sub_u32 s25, s25, {NG // 8}"); a.i("s_lshl_b32 s24, s24, 2"); a.i("s_add_u32 s45, s24, s25")
    a.label("KT_RJ")
    a.i("s_lshl_b32 s25, s45, 5")
    a.i("v_mov_b32 v201, 0x7fffffff")
    a.i(f"s_cmp_eq_u32 {sr(W)}, 0"); a.i("s_cbranch_scc1 KT_RP0")
    a.i("v_lshrrev_b32 v4, 1, v0"); a.i("v_and_b32 v6, 1, v0")
    a.i(f"s_sub_u32 s26, {sr(W)}, 1")
    a.i(f"s_cmp_ge_u32 s2, {NG}"); a.i("s_cbranch_scc1 KT_SD")
    a.i("v_mul_u32_u24 v5, 3584, v4"); a.i("v_lshl_add_u32 v5, v6, 4, v5"); a.i("v_add_u32 v5, s25, v5")
    a.i(f"s_mov_b32 {sr(SM + 2)}, {448 * 3584}"); a.i(f"s_mov_b32 {sr(SM + 3)}, 0x20000")
    a.label("KT_GL")
    a.i("s_cmp_ge_u32 s26, 14")
    a.i(f"s_cselect_b32 {sr(SM)}, {sr(R['P_WU'])}, {sr(R['P_WG'])}"); a.i(f"s_cselect_b32 {sr(SM + 1)}, {sr(R['P_WU'] + 1)}, {sr(R['P_WG'] + 1)}")
    a.i("s_cselect_b32 s27, 14, 0"); a.i("s_sub_u32 s27, s26, s27"); a.i(f"s_mul_i32 s27, s27, {32 * 3584}")
    a.i("s_lshl_b32 s28, s26, 10"); a.i(f"s_add_u32 m0, s28, {L_W}")
    a.i("s_add_u32 s26, s26, 3")
    a.i(f"buffer_load_dwordx4 v5, {sr(SM, 4)}, s27 offen lds")
    a.i("s_cmp_lt_u32 s26, 28"); a.i("s_cbranch_scc1 KT_GL")
    a.i("s_branch KT_RB")
    a.label("KT_SD")
    srd(a, SM, R['P_WD'], 1792 * 896)
    a.i("v_mul_u32_u24 v5, 896, v4"); a.i("v_lshl_add_u32 v5, v6, 4, v5"); a.i("v_add_u32 v5, s25, v5")
    a.label("KT_DL")
    a.i(f"s_mul_i32 s27, s26, {32 * 896}")
    a.i("s_lshl_b32 s28, s26, 10"); a.i(f"s_add_u32 m0, s28, {L_W}")
    a.i("s_add_u32 s26, s26, 3")
    a.i(f"buffer_load_dwordx4 v5, {sr(SM, 4)}, s27 offen lds")
    a.i("s_cmp_lt_u32 s26, 56"); a.i("s_cbranch_scc1 KT_DL")
    a.i("s_branch KT_RB")
    a.label("KT_RP0")
    a.i("v_lshlrev_b32 v3, 4, v0"); a.i("s_and_b32 s24, s2, 7"); a.i("s_lshl_b32 s24, s24, 13"); a.i(f"s_add_u32 s24, s24, {WS_RR}")
    a.i(f"s_add_u32 s27, s24, 4096"); a.i("s_mov_b32 s26, 0x40000")
    a.label("KT_RPOLL")
    for i in range(8):
        a.i(f"buffer_load_dwordx4 {vr(16 + 4 * i, 4)}, v3, {ws}, {'s24' if i < 4 else 's27'} offen offset:{1024 * (i & 3)} sc1")
    a.i("s_waitcnt vmcnt(0)")
    a.i("v_max3_u32 v7, v16, v17, v18")
    for k in range(19, 47, 2): a.i(f"v_max3_u32 v7, v7, {vr(k)}, {vr(k + 1)}")
    a.i("v_max_u32 v7, v7, v47")
    a.i("v_cmp_eq_u32 vcc, -1, v7")
    a.i("s_sub_u32 s26, s26, 1"); a.i("s_cbranch_scc1 KT_RGOT")
    a.i("s_cbranch_vccnz KT_RPOLL")
    a.label("KT_RGOT")
    a.i(f"v_add_u32 v3, {L_R}, v3")
    for i in range(8): a.i(f"ds_write_b128 v3, {vr(16 + 4 * i, 4)} offset:{1024 * i}")
    a.i("s_waitcnt lgkmcnt(0)")
    a.label("KT_RB")
    a.i("s_barrier")
    a.i(f"s_lshl_b32 {sr(T0)}, {sr(W)}, 6"); a.i(f"v_add_u32 v10, {sr(T0)}, v0")
    a.i(f"v_lshlrev_b32 v3, 5, v10"); a.i(f"v_add_u32 v3, {L_R}, v3")
    a.i("ds_read_b128 v[16:19], v3"); a.i("ds_read_b128 v[20:23], v3 offset:16")
    a.i("s_waitcnt lgkmcnt(0)")
    stamp('rall')
    a.i("v_lshlrev_b32 v6, 3, v10"); a.i("v_sub_u32 v6, 2047, v6")
    for j in range(8):
        k = 16 + j
        a.i(f"v_ashrrev_i32 v7, 31, {vr(k)}")
        a.i("v_or_b32 v7, 0x80000000, v7")
        a.i(f"v_xor_b32 {vr(k)}, {vr(k)}, v7")
        a.i(f"v_and_b32 {vr(k)}, 0xffff0000, {vr(k)}")
        a.i(f"v_subrev_u32 v7, {j}, v6")
        a.i(f"v_or_b32 {vr(k)}, {vr(k)}, v7")
    net = [(0,1),(2,3),(4,5),(6,7),(0,2),(1,3),(4,6),(5,7),(1,2),(5,6),(0,4),(3,7),(1,5),(2,6),(1,4),(3,6),(2,4),(3,5),(3,4)]
    for x, y in net:
        a.i(f"v_max_u32 v7, {vr(16 + x)}, {vr(16 + y)}")
        a.i(f"v_min_u32 {vr(16 + y)}, {vr(16 + x)}, {vr(16 + y)}")
        a.i(f"v_mov_b32 {vr(16 + x)}, v7")
    a.i("v_mov_b32 v9, 0")
    for rnd in range(8):
        a.i("v_mov_b32 v8, v16")
        wave_max_u32(a, 8, 7)
        a.i(f"v_cmp_eq_u32 s[30:31], {rnd}, v0")
        if rnd < 7:
            a.i("v_cmp_eq_u32 vcc, v16, v8")
            a.i("s_nop 1")
            for j in range(7 - rnd):
                a.i(f"v_cndmask_b32 {vr(16 + j)}, {vr(16 + j)}, {vr(17 + j)}, vcc")
        else:
            a.i("s_nop 1")
        a.i("v_cndmask_b32 v9, v9, v8, s[30:31]")
    a.i(f"s_lshl_b32 s29, {sr(W)}, 5"); a.i("v_lshl_add_u32 v7, v0, 2, s29"); a.i(f"v_add_u32 v7, {L_CAND}, v7")
    a.i("v_cmp_gt_u32 vcc, 8, v0"); a.i("s_and_saveexec_b64 s[36:37], vcc")
    a.i("ds_write_b32 v7, v9")
    a.i("s_mov_b64 exec, s[36:37]")
    a.i("s_waitcnt lgkmcnt(0)")
    a.i("s_barrier")
    a.i("v_lshrrev_b32 v12, 4, v0")
    a.i(f"s_cmp_lg_u32 {sr(W)}, 0"); a.i("s_cbranch_scc1 KT_OTH")
    a.i("v_and_b32 v7, 31, v0"); a.i("v_lshlrev_b32 v7, 2, v7"); a.i(f"v_add_u32 v7, {L_CAND}, v7")
    a.i("ds_read_b32 v9, v7")
    a.i(f"v_mov_b32 v10, {L_CAND}")
    for j in range(8): a.i(f"ds_read_b128 {vr(16 + 4 * j, 4)}, v10 offset:{16 * j}")
    a.i("s_waitcnt lgkmcnt(0)")
    a.i("v_mov_b32 v11, 0")
    for j in range(0, 32, 2):
        a.i(f"v_cmp_gt_u32 s[32:33], {vr(16 + j)}, v9")
        a.i(f"v_cmp_gt_u32 s[34:35], {vr(17 + j)}, v9")
        a.i("s_nop 0")
        a.i("v_addc_co_u32 v11, vcc, 0, v11, s[32:33]")
        a.i("v_addc_co_u32 v11, vcc, 0, v11, s[34:35]")
    a.i("v_cmp_gt_u32 s[32:33], 8, v11"); a.i("v_cmp_gt_u32 s[34:35], 32, v0")
    a.i("s_and_b64 s[32:33], s[32:33], s[34:35]")
    a.i("v_lshlrev_b32 v11, 2, v11"); a.i(f"v_add_u32 v11, {L_SEL}, v11")
    a.i("s_and_saveexec_b64 s[36:37], s[32:33]")
    a.i("ds_write_b32 v11, v9")
    a.i("s_mov_b64 exec, s[36:37]")
    a.i("s_waitcnt lgkmcnt(0)")
    a.i("v_and_b32 v7, 7, v0"); a.i("v_lshlrev_b32 v7, 2, v7"); a.i(f"v_add_u32 v7, {L_SEL}, v7")
    a.i("ds_read_b32 v9, v7")
    a.i("s_waitcnt lgkmcnt(0)")
    stamp('idx')
    a.i("v_and_b32 v10, 0xffff, v9"); a.i("v_sub_u32 v10, 2047, v10")
    a.i("v_mul_u32_u24 v11, 896, v10")
    a.i(f"s_cmp_ge_u32 s2, {NG}"); a.i("s_cbranch_scc1 KT_DN0")
    a.i("v_lshl_add_u32 v200, v12, 4, v11")
    a.i(f"s_mov_b32 s24, {WS_H2}")
    for ks in range(14):
        a.i(f"buffer_load_dwordx4 {vr(16 + 4 * ks, 4)}, v200, {ws}, s24 offen offset:{64 * ks} sc1")
    a.i("s_barrier")
    a.i("v_bfe_u32 v13, v0, 2, 2"); a.i("v_lshl_add_u32 v13, v12, 3, v13"); a.i("v_lshlrev_b32 v13, 5, v13")
    a.i("v_and_b32 v14, 3, v0"); a.i("v_lshl_add_u32 v13, v14, 3, v13"); a.i(f"v_add_u32 v13, {L_W}, v13")
    for m in range(2):
        for ks in range(14):
            for r2 in range(2):
                a.i(f"ds_read_b64_tr_b16 {vr(80 + 56 * m + 4 * ks + 2 * r2, 2)}, v13 offset:{14336 * m + 1024 * ks + 128 * r2}")
            if ks % 7 == 6: a.i("s_waitcnt lgkmcnt(0)")
    a.i("s_waitcnt vmcnt(0)")
    for ks in range(14):
        for m in range(2):
            acc = vr(72 + 4 * m, 4)
            a.i(f"v_mfma_f32_16x16x32_bf16 {acc}, {vr(80 + 56 * m + 4 * ks, 4)}, {vr(16 + 4 * ks, 4)}, {'0' if ks == 0 else acc}")
    a.i("s_nop 7")
    for r in range(4):
        round_bf(a, 72 + r, 72 + r); round_bf(a, 76 + r, 76 + r)
        sigmoid(a, 5, 72 + r, 6)
        a.i(f"v_mul_f32 {vr(72 + r)}, {vr(72 + r)}, v5"); round_bf(a, 72 + r, 72 + r)
        a.i(f"v_mul_f32 {vr(72 + r)}, {vr(72 + r)}, {vr(76 + r)}")
    a.i("v_cvt_pk_bf16_f32 v76, v72, v73"); a.i("v_cvt_pk_bf16_f32 v77, v74, v75")
    a.i("v_and_b32 v5, 15, v0"); a.i("v_lshlrev_b32 v6, 4, v5")
    a.i("v_lshrrev_b32 v7, 1, v12"); a.i("v_lshl_add_u32 v6, v7, 7, v6"); a.i("v_and_b32 v7, 1, v12"); a.i("v_lshl_add_u32 v6, v7, 3, v6")
    a.i("s_lshr_b32 s24, s45, 1"); a.i("s_lshl_b32 s24, s24, 9"); a.i("s_and_b32 s26, s45, 1"); a.i("s_lshl_b32 s26, s26, 8")
    a.i("s_add_u32 s24, s24, s26"); a.i(f"s_add_u32 s24, s24, {WS_GU}")
    a.i("v_cmp_gt_u32 vcc, 8, v5"); a.i("s_and_saveexec_b64 s[36:37], vcc")
    a.i(f"buffer_store_dwordx2 v[76:77], v6, {ws}, s24 offen sc1")
    a.i("s_mov_b64 exec, s[36:37]")
    stamp('gu')
    a.i("s_branch K1_TE")
    a.label("KT_OTH")
    a.i("s_waitcnt vmcnt(0)")
    a.i(f"s_cmp_ge_u32 s2, {NG}"); a.i("s_cbranch_scc1 KT_PH2")
    a.i("s_barrier")
    a.i("s_branch K1_TE")
    a.label("KT_DN0")
    a.i("v_lshl_add_u32 v201, v12, 3, v11"); a.i("v_add_u32 v201, s25, v201")
    a.i(f"s_mov_b32 s24, {WS_X1}"); a.i(f"buffer_load_dwordx2 v[202:203], v201, {ws}, s24 offen sc1")
    a.i(f"s_mov_b32 s24, {WS_H2}"); a.i(f"buffer_load_dwordx2 v[204:205], v201, {ws}, s24 offen sc1")
    a.i("v_lshlrev_b32 v13, 3, v12"); a.i("v_add_u32 v13, s25, v13")
    a.i(f"s_mov_b32 s24, {WS_GB}"); a.i(f"buffer_load_dwordx2 v[206:207], v13, {ws}, s24 offen")
    a.i("v_lshrrev_b32 v13, 16, v9")
    a.i("v_and_b32 v14, 0x8000, v13"); a.i("v_cmp_ne_u32 vcc, 0, v14")
    a.i("v_xor_b32 v14, 0x8000, v13"); a.i("v_xor_b32 v15, 0xffff, v13")
    a.i("v_cndmask_b32 v13, v15, v14, vcc"); a.i("v_lshlrev_b32 v208, 16, v13")
    a.label("KT_PH2")
    a.i("s_barrier")
    a.i(f"s_mul_i32 s28, {sr(W)}, 14336"); a.i(f"s_add_u32 s28, s28, {L_W}")
    a.i("v_bfe_u32 v13, v0, 2, 2"); a.i("v_lshl_add_u32 v13, v12, 3, v13"); a.i("v_lshlrev_b32 v13, 5, v13")
    a.i("v_and_b32 v14, 3, v0"); a.i("v_lshl_add_u32 v13, v14, 3, v13"); a.i("v_add_u32 v13, s28, v13")
    for ks in range(14):
        for r2 in range(2):
            a.i(f"ds_read_b64_tr_b16 {vr(80 + 4 * ks + 2 * r2, 2)}, v13 offset:{1024 * ks + 128 * r2}")
        if ks % 7 == 6: a.i("s_waitcnt lgkmcnt(0)")
    a.i("v_and_b32 v5, 7, v0"); a.i("v_lshlrev_b32 v6, 4, v5"); a.i("v_lshl_add_u32 v6, v12, 7, v6")
    a.i(f"s_mul_i32 s24, {sr(W)}, {14 * 512}"); a.i(f"s_add_u32 s24, s24, {WS_GU}"); a.i("s_add_u32 s29, s24, 4096")
    a.i("s_mov_b32 s26, 0x40000")
    a.label("KT_GPOLL")
    for ks in range(14):
        a.i(f"buffer_load_dwordx4 {vr(16 + 4 * ks, 4)}, v6, {ws}, {'s24' if ks < 8 else 's29'} offen offset:{512 * (ks % 8)} sc1")
    a.i("s_waitcnt vmcnt(0)")
    a.i("v_max3_u32 v7, v16, v17, v18")
    for k in range(19, 71, 2): a.i(f"v_max3_u32 v7, v7, {vr(k)}, {vr(k + 1)}")
    a.i("v_max_u32 v7, v7, v71")
    a.i("v_cmp_eq_u32 vcc, -1, v7")
    a.i("s_sub_u32 s26, s26, 1"); a.i("s_cbranch_scc1 KT_GGOT")
    a.i("s_cbranch_vccnz KT_GPOLL")
    a.label("KT_GGOT")
    for ks in range(14):
        a.i(f"v_mfma_f32_16x16x32_bf16 v[72:75], {vr(80 + 4 * ks, 4)}, {vr(16 + 4 * ks, 4)}, {'0' if ks == 0 else 'v[72:75]'}")
    a.i("s_nop 7")
    a.i("v_lshlrev_b32 v3, 4, v0"); a.i(f"s_lshl_b32 s24, {sr(W)}, 10"); a.i(f"s_add_u32 s24, s24, {L_RED}"); a.i("v_add_u32 v3, s24, v3")
    a.i("ds_write_b128 v3, v[72:75]")
    a.i("s_waitcnt lgkmcnt(0)"); a.i("s_barrier")
    a.i(f"s_cmp_lg_u32 {sr(W)}, 0"); a.i("s_cbranch_scc1 K1_TE")
    for w in range(1, 4): a.i(f"ds_read_b128 {vr(16 + 4 * w, 4)}, v3 offset:{1024 * w}")
    sigmoid(a, 5, 208, 6); round_bf(a, 5, 5)
    a.i("s_waitcnt lgkmcnt(0)")
    for r in range(4):
        for w in range(1, 4): a.i(f"v_add_f32 {vr(72 + r)}, {vr(72 + r)}, {vr(16 + 4 * w + r)}")
        round_bf(a, 72 + r, 72 + r)
        a.i(f"v_mul_f32 {vr(72 + r)}, {vr(72 + r)}, v5"); round_bf(a, 72 + r, 72 + r)
    for half in range(2):
        bf_lo(a, 16 + 2 * half, 204 + half); bf_hi(a, 17 + 2 * half, 204 + half)
        bf_lo(a, 20 + 2 * half, 202 + half); bf_hi(a, 21 + 2 * half, 202 + half)
        bf_lo(a, 24 + 2 * half, 206 + half); bf_hi(a, 25 + 2 * half, 206 + half)
    for r in range(4):
        a.i(f"v_add_f32 {vr(72 + r)}, {vr(72 + r)}, {vr(16 + r)}"); round_bf(a, 72 + r, 72 + r)
        a.i(f"v_mul_f32 {vr(72 + r)}, {vr(72 + r)}, {vr(24 + r)}"); round_bf(a, 72 + r, 72 + r)
        a.i(f"v_add_f32 {vr(72 + r)}, {vr(72 + r)}, {vr(20 + r)}")
    a.i("v_cvt_pk_bf16_f32 v76, v72, v73"); a.i("v_cvt_pk_bf16_f32 v77, v74, v75")
    a.i("v_and_b32 v5, 15, v0")
    a.i("v_cmp_gt_u32 vcc, 8, v5"); a.i("s_and_saveexec_b64 s[36:37], vcc")
    a.i(f"buffer_store_dwordx2 v[76:77], v201, {sr(SO, 4)}, 0 offen sc1")
    a.i("s_mov_b64 exec, s[36:37]")
    stamp('fin')
```

```python
import sys
from asmlib import *
import kern_small as ks, kern_attn as ka
from core16 import Cfg

HEADER = open('adaLN_cond__gqa_block_cached__moe_arch_mod__prompt.s.ref').read().split('; Override launch geometry')[0]

def gen(cfg):
    ka.FUSE = getattr(cfg, 'fuse', True)
    ks.HD = getattr(cfg, 'stamps', 0) == 2
    ka.WARM_MOE = getattr(cfg, 'warm_moe', True)
    a = Asm()
    body = Asm()
    descs = []
    descs.append(ks.gen_k0(body, getattr(cfg, 'codewarm', 0)))
    d, n1, l1 = ka.gen_k1(body, cfg); descs.append(d)
    if not ka.FUSE:
        descs.append(ks.gen_k2(body))
        d, n3, l3 = ks.gen_moe(body, getattr(cfg, 'mst', False)); descs.append(d)
    body.label('ALL_END')
    hdr = HEADER
    hdr += "; @launch kernel=mod_kernel grid=(260,1,1) block=(256,1,1) lds=8192\n"
    hdr += f"; @launch kernel=attn_kernel grid=({n1},1,1) block=(256,1,1) lds={l1}\n"
    if not ka.FUSE:
        hdr += "; @launch kernel=red_kernel grid=(256,1,1) block=(512,1,1) lds=0\n"
        hdr += f"; @launch kernel=moe_kernel grid=({n3},1,1) block=(256,1,1) lds={l3}\n"
    hdr += '.amdgcn_target "amdgcn-amd-amdhsa--gfx950"\n.text\n'
    txt = hdr + body.text()
    for d in descs: txt += d
    return txt

if __name__ == "__main__":
    cfg = Cfg()
    for o in sys.argv[2:]:
        k, v = o.split("="); setattr(cfg, k, eval(v))
    open(sys.argv[1], "w").write(gen(cfg))
```

```python
from asmlib import *

S = 16
NEGM = 48
P0, P1 = 64, 80
FR = 96
E = 112
PS = 116
L = 120
DK = 124
DV = 8
KB = 12
VB = 13
TA, TB = 4, 5
Q = 128
SRD_K = 4; SRD_V = 8
S_KOFF = 20; S_VOFF = 21; S_W = 22; S_KM0 = 23; S_CNT = 24; S_THR = 25; S_KOFF2 = 26; S_VOFF2 = 27; S_VM0 = 28
S_RET = 30
KSLOT = 16896; VSLOT = 17408
KRING = 0; VRING = 4 * KSLOT
def kslot_off(par): return par * 2 * KSLOT
def vslot_off(par): return par * 2 * VSLOT

VB128 = False
class Cfg:
    PF = 3
    dma = True; valu = True; barrier = True
    xa = 48; xb = 112
    dmaKh_gaps = [2, 10, 18, 26, 34, 42]
    dmaV_gaps = [50, 58, 66, 74, 82, 90, 98, 106]
    dmaKt_gaps = [114, 122]
    ladd_gaps = [27, 29, 30, 31]
    s0_start = 35; s1_start = 67
    cap = 2
    poll_sleep = 0

def O(db, qb): return ar(16 * db + 4 * qb, 4)
def Sreg(kb, qb): return S + 16 * kb + 4 * qb

def frag_reads(f, par_k, par_v):
    r = FR + 4 * (f % 4)
    if f < 16:
        kb, ks = f >> 3, f & 7
        off = kslot_off(par_k) + kb * 8 * 1056 + 64 * ks
        return [f"ds_read_b128 {vr(r, 4)}, {vr(KB)} offset:{off}"]
    db = f - 16
    out = []
    if VB128:
        off = vslot_off(par_v) + 64 * (db >> 1)
        return [f"ds_read_b128 {vr(r, 4)}, {vr(KB)} offset:{(off + 1024 * (db & 7)) & 0xfff0}"]
    for r2 in range(2):
        off = vslot_off(par_v) + r2 * 8 * 1088 + 64 * (db >> 1)
        out.append(f"ds_read_b64_tr_b16 {vr(r + 2 * r2, 2)}, {vr(VB + (db & 1))} offset:{off}")
    return out

PKSUM = False
PSP = [116, 118, 2, 6]
def ps_reg(qb): return PSP[qb] if PKSUM else PS + qb
def softmax_ops(kb, Pn):
    if PKSUM: return softmax_ops_pk(kb, Pn)
    ops = []
    groups = [(qb, h) for qb in range(4) for h in range(2)]
    n = len(groups)
    for p in range(n + 1):
        if p < n:
            qb, h = groups[p]
            e = E + 2 * (p & 1); s = Sreg(kb, qb) + 2 * h
            ops.append((2, f"v_exp_f32 {vr(e)}, {vr(s)}"))
            ops.append((2, f"v_exp_f32 {vr(e + 1)}, {vr(s + 1)}"))
        if p >= 1:
            qb, h = groups[p - 1]
            e = E + 2 * ((p - 1) & 1)
            ps = vr(PS + qb)
            if kb == 0 and h == 0:
                ops.append((1, f"v_add_f32 {ps}, {vr(e)}, {vr(e + 1)}"))
            else:
                ops.append((1, f"v_add_f32 {ps}, {ps}, {vr(e)}"))
                ops.append((1, f"v_add_f32 {ps}, {ps}, {vr(e + 1)}"))
            ops.append((1, f"v_cvt_pk_bf16_f32 {vr(Pn + 4 * qb + 2 * kb + h)}, {vr(e)}, {vr(e + 1)}"))
    return ops

def softmax_ops_pk(kb, Pn):
    ops = []
    groups = [(qb, h) for qb in range(4) for h in range(2)]
    n = len(groups)
    for p in range(n + 1):
        if p < n:
            qb, h = groups[p]
            e = E + 2 * (p & 1); s = Sreg(kb, qb) + 2 * h
            ops.append((2, f"v_exp_f32 {vr(e)}, {vr(s)}"))
            ops.append((2, f"v_exp_f32 {vr(e + 1)}, {vr(s + 1)}"))
        if p >= 1:
            qb, h = groups[p - 1]
            e = E + 2 * ((p - 1) & 1)
            ps = vr(PSP[qb], 2)
            if kb == 0 and h == 0:
                ops.append((1, f"v_pk_add_f32 {ps}, {vr(e, 2)}, 0"))
            else:
                ops.append((1, f"v_pk_add_f32 {ps}, {ps}, {vr(e, 2)}"))
            ops.append((1, f"v_cvt_pk_bf16_f32 {vr(Pn + 4 * qb + 2 * kb + h)}, {vr(e)}, {vr(e + 1)}"))
            if kb == 1 and h == 1:
                ops.append((1, f"v_add_f32 {vr(PSP[qb])}, {vr(PSP[qb])}, {vr(PSP[qb] + 1)}"))
    return ops

def dma_tile(kind, par):
    if kind == 'K':
        base = KRING + kslot_off(par); m0b = S_KM0; srd = SRD_K; so = (S_KOFF, S_KOFF2); vo = DK; stride = 1056; tile = 16384
    else:
        base = VRING + vslot_off(par); m0b = S_VM0; srd = SRD_V; so = (S_VOFF, S_VOFF2); vo = DV; stride = 1088; tile = 16384
    groups = []
    for i in range(8):
        pre = []
        if i % 4 == 0:
            pre.append(f"s_add_u32 m0, {sr(m0b)}, {base + (i // 4) * 4 * stride}")
        ins = [f"buffer_load_dwordx4 {vr(vo + (i & 3))}, {sr(srd, 4)}, {sr(so[i // 4])} offen offset:{stride * (i & 3)} lds"]
        post = []
        if i % 4 == 3:
            post.append(f"s_add_u32 {sr(so[i // 4])}, {sr(so[i // 4])}, {tile}")
        groups.append((pre, ins, post))
    return groups

class Core16:
    def __init__(self, a, cfg):
        self.a = a; self.cfg = cfg
        self.fidx = 0
        self.tramps = []
        self.pend_l = False

    def issue_frag(self, absf, f, par_k, par_v):
        for s in frag_reads(f, par_k, par_v):
            self.a.lds(s, ("f", absf))

    def prefetch_first(self, t, start=0):
        for j in range(4):
            self.issue_frag(self.fidx + j, start + j, (t + 1) & 1, t & 1)

    def iteration(self, t, first=False, do_A=True, do_soft=True, dmaV=True, dmaKh=True, dmaKt=True, nxt='A', barA=True, barB=True,
                  vmA=8, vmB=8, extra_q=None, extra_start=0):
        a, cfg = self.a, self.cfg
        PF = cfg.PF
        Pu = (P0, P1)[t & 1]; Pn = (P0, P1)[(t + 1) & 1]
        pk, pv = (t + 1) & 1, t & 1
        f0 = 0 if do_A else 16
        nfr = 32 - f0
        plan = {}
        def put(g, s): plan.setdefault(g, []).append(s)
        if cfg.barrier:
            if barA and do_A:
                put(cfg.xa, f"s_waitcnt vmcnt({vmA})"); put(cfg.xa, "s_barrier")
            if barB:
                put(cfg.xb, f"s_waitcnt vmcnt({vmB})"); put(cfg.xb, "s_barrier")
        if cfg.dma:
            jobs = []
            if dmaKh: jobs.append((dma_tile('K', t & 1)[2:], cfg.dmaKh_gaps))
            if dmaV: jobs.append((dma_tile('V', (t + 1) & 1), cfg.dmaV_gaps))
            if dmaKt: jobs.append((dma_tile('K', (t + 1) & 1)[:2], cfg.dmaKt_gaps))
            for groups, gaps in jobs:
                for (pre, ins, post), g in zip(groups, gaps):
                    for s in pre: put(g - 1, s)
                    for s in ins + post: put(g, s)
        if self.pend_l:
            if do_A:
                for qb, g in enumerate(cfg.ladd_gaps): put(g, f"v_add_f32 {vr(L + qb)}, {vr(L + qb)}, {vr(ps_reg(qb))}")
            else:
                for qb in range(4): put(64 + 2 * qb + 1, f"v_add_f32 {vr(L + qb)}, {vr(L + qb)}, {vr(ps_reg(qb))}")
            self.pend_l = False
        vq0 = softmax_ops(0, Pn) if (do_soft and cfg.valu) else []
        vq1 = softmax_ops(1, Pn) if (do_soft and cfg.valu) else []
        pend_reads = []
        chain = getattr(cfg, 'chain2', False)
        def mf(i):
            if i < 64 and chain:
                return 2 * (i >> 3) + (i & 1), (i >> 1) & 3
            return i >> 2, i & 3
        last_use = {}
        for i in range(4 * f0, 128): last_use[mf(i)[0]] = i
        first_use = {}
        for i in range(127, 4 * f0 - 1, -1): first_use[mf(i)[0]] = i
        for i in range(4 * f0, 128):
            f, qb = mf(i)
            absf = self.fidx + (f - f0)
            if first_use[f] == i or (chain and i < 64 and (i & 7) == 0):
                tags = [("f", absf)]
                if chain and i < 64 and (i & 7) == 0: tags.append(("f", absf + 1))
                a.need(*tags)
            fr = vr(FR + 4 * (f % 4), 4)
            if f < 16:
                kb, ks = f >> 3, f & 7
                d = vr(Sreg(kb, qb), 4)
                cin = vr(NEGM + 4 * qb, 4) if ks == 0 else d
                a.i(f"v_mfma_f32_16x16x32_bf16 {d}, {fr}, {vr(Q + 32 * qb + 4 * ks, 4)}, {cin}")
            else:
                db = f - 16
                cin = "0" if first else O(db, qb)
                a.i(f"v_mfma_f32_16x16x32_bf16 {O(db, qb)}, {fr}, {vr(Pu + 4 * qb, 4)}, {cin}")
            budget = cfg.cap
            if last_use[f] == i:
                j = f + 4
                if j < 32:
                    pend_reads += [(s, ("f", self.fidx + j - f0)) for s in frag_reads(j, pk, pv)]
                elif nxt == 'A':
                    pend_reads += [(s, ("f", self.fidx + nfr + j - 32)) for s in frag_reads(j - 32, (t + 2) & 1, (t + 1) & 1)]
                elif nxt == 'B':
                    pend_reads += [(s, ("f", self.fidx + nfr + j - 32)) for s in frag_reads(16 + j - 32, 0, (t + 1) & 1)]
            for s in plan.pop(i, []):
                a.i(s); budget -= 1
            while pend_reads and budget >= 1:
                s, tag = pend_reads.pop(0)
                a.lds(s, tag); budget -= 1
            if i + 1 < 128 and first_use.get(mf(i + 1)[0]) == i + 1: budget -= 1
            while extra_q and i >= extra_start and budget >= 1:
                a.i(extra_q.pop(0)); budget -= 1
            for vq, st in ((vq0, cfg.s0_start), (vq1, cfg.s1_start)):
                if vq is vq1 and vq0: continue
                while vq and i >= st and budget >= vq[0][0]:
                    c, s = vq.pop(0); budget -= c
                    a.i(s)
        for s, tag in pend_reads: a.lds(s, tag)
        for s in (extra_q or []): a.i(s)
        left = len(vq0) + len(vq1)
        if left: a.c(f"leftover softmax ops: {left}")
        for c, s in vq0 + vq1:
            a.i(s)
        assert not plan, plan
        if do_soft and cfg.valu:
            tr = a.newlabel("TR"); ret = a.newlabel("RET")
            a.i(f"v_max3_f32 {vr(TA)}, {vr(ps_reg(0))}, {vr(ps_reg(1))}, {vr(ps_reg(2))}")
            a.i(f"v_max_f32 {vr(TA)}, {vr(TA)}, {vr(ps_reg(3))}")
            a.i(f"v_cmp_lt_f32 vcc, {sr(S_THR)}, {vr(TA)}")
            a.i(f"s_cbranch_vccnz {tr}")
            a.label(ret)
            self.pend_l = True
            self.tramps.append((tr, ret, (t + 1) & 1))
        self.fidx += nfr

    def rowmax4(self, qb, dst, tmp):
        a = self.a
        s0, s1 = Sreg(0, qb), Sreg(1, qb)
        a.i(f"v_max3_f32 {vr(dst)}, {vr(s0)}, {vr(s0 + 1)}, {vr(s0 + 2)}")
        a.i(f"v_max3_f32 {vr(dst)}, {vr(dst)}, {vr(s0 + 3)}, {vr(s1)}")
        a.i(f"v_max3_f32 {vr(dst)}, {vr(dst)}, {vr(s1 + 1)}, {vr(s1 + 2)}")
        a.i(f"v_max_f32 {vr(dst)}, {vr(dst)}, {vr(s1 + 3)}")
        self.xreduce(dst, tmp, "v_max_f32")

    def xreduce(self, dst, tmp, op):
        a = self.a
        a.i(f"v_mov_b32 {vr(tmp)}, {vr(dst)}")
        a.i("s_nop 1")
        a.i(f"v_permlane32_swap_b32 {vr(dst)}, {vr(tmp)}")
        a.i("s_nop 1")
        a.i(f"{op} {vr(dst)}, {vr(dst)}, {vr(tmp)}")
        a.i(f"v_mov_b32 {vr(tmp)}, {vr(dst)}")
        a.i("s_nop 1")
        a.i(f"v_permlane16_swap_b32 {vr(dst)}, {vr(tmp)}")
        a.i("s_nop 1")
        a.i(f"{op} {vr(dst)}, {vr(dst)}, {vr(tmp)}")

    def emit_rare(self):
        a = self.a
        for tr, ret, par in self.tramps:
            a.label(tr)
            a.i(f"s_call_b64 {sr(S_RET, 2)}, FB_{par}")
            a.i(f"s_branch {ret}")
        for par in sorted({p for _, _, p in self.tramps}):
            Pn = (P0, P1)[par]
            a.label(f"FB_{par}")
            a.i("s_nop 15")
            for qb in range(4):
                self.rowmax4(qb, TA, TB)
                a.i(f"v_max_f32 {vr(TA)}, 0, {vr(TA)}")
                a.i(f"v_exp_f32 {vr(TB)}, -{vr(TA)}")
                a.i("s_nop 0")
                for db in range(16):
                    for r in range(4):
                        x = 16 * db + 4 * qb + r
                        a.i(f"v_accvgpr_read_b32 {vr(1)}, {ar(x)}")
                        a.i(f"v_mul_f32 {vr(1)}, {vr(TB)}, {vr(1)}")
                        a.i(f"v_accvgpr_write_b32 {ar(x)}, {vr(1)}")
                a.i(f"v_mul_f32 {vr(L + qb)}, {vr(TB)}, {vr(L + qb)}")
                for r in range(4):
                    a.i(f"v_sub_f32 {vr(NEGM + 4 * qb + r)}, {vr(NEGM + 4 * qb + r)}, {vr(TA)}")
                    for kb in range(2):
                        a.i(f"v_sub_f32 {vr(Sreg(kb, qb) + r)}, {vr(Sreg(kb, qb) + r)}, {vr(TA)}")
            for kb in range(2):
                for c, s in softmax_ops(kb, Pn):
                    a.i(s)
                    if c == 2: a.i("s_nop 0")
            a.i("s_nop 3")
            a.i(f"s_setpc_b64 {sr(S_RET, 2)}")
```

```python
from asmlib import *
from core16 import *
import core16 as c16
import kern_tail as kt
from kern_small import (hdbg, srd, kstart, bf_lo, bf_hi, f2u, sigmoid, round_bf, QSCALE, WS_A1, WS_S1, WS_GA, WS_A2, WS_SB, WS_GB, WS_PART, WS_SIZE, WS_STAT)

SRD_X = 12
SRD_WS = 16
SRD_WQ = 68
S_KH = 32; S_RG = 33; S_G = 34; S_QW = 35
T0, T1, T2, T3 = 36, 37, 38, 39
S_WOFF = 40; S_WOFF2 = 41; S_WM0 = 42

WT = 33792
PHYS = [2 * WT, 1 * WT, 0 * WT, 3 * WT]
HB = 102912
MODB = 160256
QX = 98304
ST = 57344
XB = 67584
OX = 67584
WOT = 28672
WOSLOT = [0, WOT, 133120, 67584]
TB = 0; TSTR = 912

DBG = {}
WARM_MOE = True
FAKE32 = False
SKEW = 0
NGX = 1
FUSE = True

def k1_setup(a):
    a.i("s_load_dwordx2 s[44:45], s[0:1], 0")
    a.i("s_load_dwordx4 s[48:51], s[0:1], 8")
    a.i("s_load_dwordx4 s[52:55], s[0:1], 24")
    a.i("s_load_dwordx2 s[56:57], s[0:1], 112")
    a.i("s_load_dwordx4 s[60:63], s[0:1], 56")
    a.i("s_load_dwordx2 s[64:65], s[0:1], 72")
    a.i("s_load_dwordx2 s[66:67], s[0:1], 96")
    a.i("s_load_dwordx2 s[58:59], s[0:1], 48")
    a.i("v_lshrrev_b32 v1, 6, v0"); a.i("s_nop 0")
    a.i(f"v_readfirstlane_b32 {sr(S_W)}, v1")
    a.i("v_and_b32 v0, 63, v0")
    a.i(f"s_and_b32 {sr(S_KH)}, {sr(S_W)}, 1")
    a.i(f"s_lshr_b32 {sr(S_RG)}, {sr(S_W)}, 1")
    if NGX == 1:
        a.i(f"s_and_b32 {sr(S_G)}, s2, 7")
        a.i(f"s_lshr_b32 {sr(S_QW)}, s2, 3")
    else:
        a.i(f"s_and_b32 {sr(T0)}, s2, 3"); a.i(f"s_lshl_b32 {sr(T0)}, {sr(T0)}, 1"); a.i(f"s_bfe_u32 {sr(T1)}, s2, 0x10003")
        a.i(f"s_add_u32 {sr(S_G)}, {sr(T0)}, {sr(T1)}")
        a.i(f"s_bfe_u32 {sr(T0)}, s2, 0x10002"); a.i(f"s_lshl_b32 {sr(T0)}, {sr(T0)}, 4"); a.i(f"s_lshr_b32 {sr(T1)}, s2, 4")
        a.i(f"s_add_u32 {sr(S_QW)}, {sr(T0)}, {sr(T1)}")

def k1_srds(a):
    a.i("s_waitcnt lgkmcnt(0)")
    srd(a, SRD_X, 44, 2048 * 896)
    srd(a, SRD_WS, 56, 0x2000000)
    a.i(f"s_lshl_b32 {sr(T0)}, {sr(S_G)}, 10")
    a.i(f"s_add_u32 {sr(SRD_WQ)}, s52, {sr(T0)}"); a.i(f"s_addc_u32 {sr(SRD_WQ + 1)}, s53, 0")
    a.i(f"s_sub_u32 {sr(SRD_WQ + 2)}, {448 * 8192}, {sr(T0)}"); a.i(f"s_mov_b32 {sr(SRD_WQ + 3)}, 0x20000")

def kv_srds(a):
    a.i(f"s_lshl_b32 {sr(T0)}, {sr(S_G)}, 20")
    for d, p, bias in ((SRD_K, 48, 128), (SRD_V, 50, 256)):
        a.i(f"s_add_u32 {sr(d)}, {sr(p)}, {sr(T0)}"); a.i(f"s_addc_u32 {sr(d + 1)}, {sr(p + 1)}, 0")
        a.i(f"s_sub_u32 {sr(d)}, {sr(d)}, {bias}"); a.i(f"s_subb_u32 {sr(d + 1)}, {sr(d + 1)}, 0")
        a.i(f"s_mov_b32 {sr(d + 2)}, {0x100000 + bias}"); a.i(f"s_mov_b32 {sr(d + 3)}, 0x20000")

WQV = 4
def wq_setup(a):
    a.i(f"s_lshl_b32 {sr(T0)}, {sr(S_KH)}, 3"); a.i(f"v_xor_b32 v1, {sr(T0)}, v0")
    a.i("v_lshlrev_b32 v1, 4, v1")
    a.i(f"s_lshl_b32 {sr(T0)}, {sr(S_W)}, 16")
    a.i(f"v_add_u32 v1, {sr(T0)}, v1")
    for j in range(4):
        a.i(f"v_add_u32 {vr(WQV + j)}, {j * (8192 - 1056)}, v1")
    a.i(f"s_mul_i32 {sr(S_WM0)}, {sr(S_W)}, 8448")
    a.i(f"s_mov_b32 {sr(S_WOFF)}, 0"); a.i(f"s_mov_b32 {sr(S_WOFF2)}, {4 * 8192}")

def wq_tile(s):
    base = PHYS[s % 4]
    groups = []
    for i in range(8):
        pre = [f"s_add_u32 m0, {sr(S_WM0)}, {base + (i // 4) * 4224}"] if i % 4 == 0 else []
        so = (S_WOFF, S_WOFF2)[i // 4]
        ins = [f"buffer_load_dwordx4 {vr(WQV + (i & 3))}, {sr(SRD_WQ, 4)}, {sr(so)} offen offset:{1056 * (i & 3)} lds"]
        post = [f"s_add_u32 {sr(so)}, {sr(so)}, {32 * 8192}"] if i % 4 == 3 else []
        groups.append((pre, ins, post))
    return groups

def skew_ops(a, unit):
    if not unit: return []
    L = a.newlabel("SK")
    ops = []
    for w in range(3):
        ops += [f"s_cmp_eq_u32 {sr(S_W)}, {w}", f"s_cbranch_scc1 {L}", f"s_nop {unit - 1}"]
    return ops + [L + ":"]

def emit_groups(a, groups):
    for pre, ins, post in groups:
        for s in pre: a.i(s); a.i("s_nop 0")
        for s in ins + post: a.i(s)

def attn_setup(a):
    kh, rg = sr(S_KH), sr(S_RG)
    t = sr(T0)
    a.i(f"s_mul_i32 {sr(S_KM0)}, {kh}, {KSLOT}"); a.i(f"s_mul_i32 {t}, {rg}, {8 * 1056}"); a.i(f"s_add_u32 {sr(S_KM0)}, {sr(S_KM0)}, {t}")
    a.i(f"s_mul_i32 {sr(S_VM0)}, {kh}, {VSLOT}"); a.i(f"s_mul_i32 {t}, {rg}, {8 * 1088}"); a.i(f"s_add_u32 {sr(S_VM0)}, {sr(S_VM0)}, {t}")
    a.i(f"s_lshl_b32 {sr(S_KOFF)}, {kh}, 19"); a.i(f"s_add_u32 {sr(S_KOFF2)}, {sr(S_KOFF)}, 4096")
    a.i(f"s_mov_b32 {sr(S_VOFF)}, {sr(S_KOFF)}"); a.i(f"s_mov_b32 {sr(S_VOFF2)}, {sr(S_KOFF2)}")
    a.i(f"s_mov_b32 {sr(S_THR)}, 0x46800000")
    a.i("v_lshrrev_b32 v2, 5, v0"); a.i("v_and_b32 v1, 31, v0")
    a.i("v_xor_b32 v3, v1, v2"); a.i("v_lshlrev_b32 v3, 4, v3"); a.i("v_lshl_add_u32 v3, v2, 9, v3")
    a.i(f"s_lshl_b32 {t}, {rg}, 13"); a.i(f"v_add_u32 v3, {t}, v3")
    for j in range(4): a.i(f"v_add_u32 {vr(DK + j)}, {128 - 32 * j}, v3")

def attn_setup2(a):
    kh, rg = sr(S_KH), sr(S_RG); t = sr(T0)
    a.i("v_and_b32 v1, 15, v0"); a.i("v_lshrrev_b32 v2, 4, v0"); a.i("v_and_b32 v3, 1, v0")
    a.i("v_lshrrev_b32 v4, 1, v1"); a.i("v_mul_u32_u24 v4, 1056, v4"); a.i("v_lshl_add_u32 v4, v3, 9, v4")
    a.i("v_xor_b32 v5, v2, v3"); a.i("v_lshl_add_u32 v4, v5, 4, v4")
    a.i(f"s_mul_i32 {t}, {kh}, {KSLOT}"); a.i(f"v_add_u32 {vr(KB)}, {t}, v4")
    a.i("v_bfe_u32 v3, v0, 2, 1"); a.i("v_bfe_u32 v4, v0, 3, 1"); a.i("v_lshl_add_u32 v4, v2, 1, v4")
    a.i("v_mul_u32_u24 v4, 1088, v4"); a.i("v_lshl_add_u32 v4, v3, 9, v4")
    a.i("v_and_b32 v5, 3, v0"); a.i("v_lshl_add_u32 v4, v5, 3, v4")
    a.i(f"s_mul_i32 {t}, {kh}, {VSLOT}"); a.i(f"s_add_u32 {t}, {t}, {VRING}")
    a.i(f"v_add_u32 v4, {t}, v4")
    a.i(f"v_lshl_add_u32 {vr(VB)}, v3, 5, v4")
    a.i("v_xor_b32 v5, 1, v3"); a.i(f"v_lshl_add_u32 {vr(VB + 1)}, v5, 5, v4")
    a.i("v_lshrrev_b32 v2, 5, v0"); a.i("v_and_b32 v1, 31, v0")
    a.i("v_lshlrev_b32 v3, 1, v2"); a.i("v_xor_b32 v3, v1, v3"); a.i("v_lshlrev_b32 v3, 4, v3"); a.i("v_lshl_add_u32 v3, v2, 9, v3")
    a.i(f"s_lshl_b32 {t}, {rg}, 13"); a.i(f"v_add_u32 v3, {t}, v3")
    for j in range(4): a.i(f"v_add_u32 {vr(DV + j)}, {256 - 64 * j}, v3")

XF = 16
XR = 128
MV = 184
def x_issue(a):
    a.i("v_and_b32 v1, 15, v0"); a.i("v_lshrrev_b32 v2, 4, v0")
    a.i(f"s_lshl_b32 {sr(T0)}, {sr(S_QW)}, 6"); a.i(f"s_lshl_b32 {sr(T1)}, {sr(S_W)}, 4"); a.i(f"s_add_u32 {sr(T0)}, {sr(T0)}, {sr(T1)}")
    a.i(f"v_add_u32 v3, {sr(T0)}, v1")
    a.i("v_lshlrev_b32 v9, 3, v3"); a.i(f"s_mov_b32 {sr(T1)}, {WS_STAT}")
    a.i(f"buffer_load_dwordx2 v[14:15], v9, {sr(SRD_WS, 4)}, {sr(T1)} offen")
    a.i("v_lshlrev_b32 v8, 4, v0")
    a.i(f"s_lshl_b32 {sr(T0)}, {sr(S_W)}, 10"); a.i(f"s_add_u32 m0, {sr(T0)}, {MODB}")
    a.i(f"s_cmp_eq_u32 {sr(S_W)}, 3"); a.i("s_cselect_b32 exec_hi, 0, -1")
    a.i(f"buffer_load_dwordx4 v8, {sr(SRD_WS, 4)}, {sr(T0)} offen lds")
    a.i("s_mov_b32 exec_hi, -1")
    a.i("v_mul_u32_u24 v3, 896, v3"); a.i("v_lshl_add_u32 v3, v2, 4, v3")
    for i in range(14):
        a.i(f"buffer_load_dwordx4 {vr(XR + 4 * i, 4)}, v3, {sr(SRD_X, 4)}, 0 offen offset:{64 * i}")
    if NGX == 1:
        a.i(f"s_lshl_b32 {sr(T0)}, {sr(S_W)}, 5"); a.i(f"v_and_b32 v9, 31, v0"); a.i(f"v_add_u32 v9, {sr(T0)}, v9")
        a.i("v_lshrrev_b32 v10, 3, v9"); a.i(f"s_mul_i32 {sr(T0)}, {sr(S_QW)}, 14"); a.i(f"v_add_u32 v10, {sr(T0)}, v10")
    else:
        a.i(f"s_lshl_b32 {sr(T0)}, {sr(S_W)}, 6"); a.i(f"v_add_u32 v9, {sr(T0)}, v0")
        a.i("v_lshrrev_b32 v10, 3, v9"); a.i(f"s_and_b32 {sr(T0)}, {sr(S_QW)}, 15"); a.i(f"s_mul_i32 {sr(T0)}, {sr(T0)}, 28"); a.i(f"v_add_u32 v10, {sr(T0)}, v10")
    a.i("v_lshlrev_b32 v10, 13, v10"); a.i("v_and_b32 v9, 7, v9"); a.i("v_lshl_add_u32 v9, v9, 7, v10")
    a.i(f"buffer_load_dword v250, v9, {sr(SRD_WQ, 4)}, 0 offen")

def code_warm(a):
    a.i(f"s_lshr_b32 {sr(T1)}, s2, 3")
    a.i(f"s_cmp_gt_u32 {sr(T1)}, 9"); a.i("s_cbranch_scc1 K1_NCW")
    a.i(f"s_cmp_lg_u32 {sr(S_W)}, 3"); a.i("s_cbranch_scc1 K1_NCW")
    a.i("s_getpc_b64 s[92:93]")
    a.label("K1_PC")
    a.i("s_mov_b32 s94, K1_END - K1_PC"); a.i("s_mov_b32 s95, 0x20000")
    a.i(f"s_lshl_b32 {sr(T0)}, {sr(T1)}, 13"); a.i("v_lshlrev_b32 v9, 7, v0")
    a.i(f"buffer_load_dword v253, v9, s[92:95], {sr(T0)} offen")
    a.label("K1_NCW")

def prologue(a, cfg):
    if getattr(cfg, 'codewarm', 0) & 1: code_warm(a)
    x_issue(a)
    wq_setup(a)
    kv_srds(a)
    wqq = []
    for s in range(3):
        for pre, ins, post in wq_tile(s): wqq.append((pre, ins, post))
    def drip(n=1):
        for _ in range(n):
            if wqq:
                pre, ins, post = wqq.pop(0)
                for t in pre: a.i(t); a.i("s_nop 0")
                for t in ins + post: a.i(t)
    early = getattr(cfg, 'wq_early', 0)
    drip(early)
    a.i(f"s_waitcnt vmcnt({15 + early})"); a.i("s_barrier")
    stamp(a, cfg, 'modv')
    a.i("v_lshrrev_b32 v2, 4, v0"); a.i("v_lshlrev_b32 v2, 5, v2"); a.i(f"v_add_u32 v2, {MODB}, v2")
    a.i("v_lshlrev_b32 v1, 4, v0"); a.i(f"s_lshl_b32 {sr(T0)}, {sr(S_W)}, 10"); a.i(f"s_add_u32 {sr(T0)}, {sr(T0)}, {HB}")
    a.i(f"v_add_u32 v1, {sr(T0)}, v1")
    NB = getattr(cfg, 'mvbuf', 3)
    def mv_read(i):
        b = MV + 16 * (i % NB)
        for k in range(2):
            a.lds(f"ds_read_b128 {vr(b + 4 * k, 4)}, v2 offset:{128 * i + 16 * k}", ("mv", i))
            a.lds(f"ds_read_b128 {vr(b + 8 + 4 * k, 4)}, v2 offset:{1792 + 128 * i + 16 * k}", ("mv", i))
    for i in range(NB - 1): mv_read(i)
    a.i("v_mov_b32 v12, v15")
    ndrip = early
    for i in range(14):
        if i + NB - 1 < 14: mv_read(i + NB - 1)
        a.i(f"s_waitcnt vmcnt({13 - i + 1 + ndrip})")
        if i == 0: stamp(a, cfg, 'xarr')
        for j in range(4):
            x = XF + 8 * (i & 1) + 2 * j
            bf_lo(a, x, XR + 4 * i + j); bf_hi(a, x + 1, XR + 4 * i + j)
        for k in range(0, 8, 2):
            x = XF + 8 * (i & 1) + k
            a.i(f"v_pk_fma_f32 {vr(x, 2)}, {vr(x, 2)}, v[14:15], v[12:13] op_sel_hi:[1,0,0]")
        a.need(("mv", i))
        b = MV + 16 * (i % NB)
        for k in range(0, 8, 2):
            x = XF + 8 * (i & 1) + k
            a.i(f"v_pk_fma_f32 {vr(x, 2)}, {vr(x, 2)}, {vr(b + k, 2)}, {vr(b + 8 + k, 2)}")
        for k in range(0, 8, 2):
            x = XF + 8 * (i & 1) + k
            a.i(f"v_cvt_pk_bf16_f32 {vr(XR + 4 * i + k // 2)}, {vr(x)}, {vr(x + 1)}")
        a.lds(f"ds_write_b128 v1, {vr(XR + 4 * i, 4)} offset:{4096 * i}")
        if i >= 2 and wqq:
            k = min(2, len(wqq)); drip(k); ndrip += k
    assert not wqq
    stamp(a, cfg, 'ln')
    a.lds_drain(); a.i("s_barrier")
    a.i(f"v_lshlrev_b32 v14, 4, v0"); a.i(f"v_add_u32 v14, {HB}, v14")
    for ks in range(8):
        for qb in range(4):
            a.lds(f"ds_read_b128 {ar((ks * 4 + qb) * 4, 4)}, v14 offset:{(ks * 4 + qb) * 1024}", ("hf", ks))
        if ks % 3 == 2: a.lds_drain()
    a.lds_drain()

WA = 8
WAH = 12
QACC = 128
def qproj(a):
    attn_setup(a)
    a.i("v_lshrrev_b32 v1, 4, v0"); a.i("v_bfe_u32 v2, v0, 2, 2"); a.i("v_lshl_add_u32 v2, v1, 3, v2"); a.i("v_mul_u32_u24 v2, 1056, v2")
    a.i("v_and_b32 v3, 3, v0"); a.i("v_lshl_add_u32 v2, v3, 3, v2")
    a.i(f"s_lshl_b32 {sr(T0)}, {sr(S_W)}, 8")
    a.i(f"v_add_u32 v2, {sr(T0)}, v2")
    a.i("v_and_b32 v3, 1, v1"); a.i("v_lshlrev_b32 v3, 7, v3")
    a.i(f"v_add_u32 {vr(WA)}, v2, v3"); a.i(f"v_sub_u32 {vr(WA + 1)}, v2, v3")
    a.i(f"v_add_u32 {vr(WAH)}, {2 * WT}, {vr(WA)}"); a.i(f"v_add_u32 {vr(WAH + 1)}, {2 * WT}, {vr(WA + 1)}")
    a.i("s_waitcnt vmcnt(16)"); a.i("s_barrier")
    PF = 3
    def fread(absf):
        s, db = absf // 8, absf % 8
        ph = PHYS[s % 4]
        breg, off = (WA, ph) if ph < 2 * WT else (WAH, ph - 2 * WT)
        breg += db >> 2
        r = FR + 4 * (absf % 4)
        return [(f"ds_read_b64_tr_b16 {vr(r + 2 * r2, 2)}, {vr(breg)} offset:{off + 4224 * r2 + 32 * db}", ("wf", absf)) for r2 in range(2)]
    for f in range(PF):
        for s, tag in fread(f): a.lds(s, tag)
    pend = []
    for s in range(14):
        plan = {}
        def put(g, t): plan.setdefault(g, []).append(t)
        if s + 1 < 14:
            vm = 8
            put(1, f"s_waitcnt vmcnt({vm})"); put(1, "s_barrier")
        else:
            put(1, "s_barrier")
        for t in skew_ops(a, SKEW): put(1, t)
        groups = None
        if s + 3 < 14: groups = wq_tile(s + 3)
        elif s == 11: groups = dma_tile('K', 0)
        if groups:
            for (pre, ins, post), g in zip(groups, [3, 6, 10, 14, 18, 22, 26, 30]):
                for t in pre: put(g - 1, t)
                for t in ins + post: put(g, t)
        hq = []
        if s < 6:
            hq = [(f"ds_read_b128 {ar(((8 + s) * 4 + qb) * 4, 4)}, v14 offset:{((8 + s) * 4 + qb) * 1024}", ("hf", 8 + s)) for qb in range(4)]
        for i in range(32):
            db, qb = i >> 2, i & 3
            absf = 8 * s + db
            if qb == 0: a.need(("wf", absf))
            if i == 0 and s >= 8: a.need(("hf", s))
            if hq and i % 8 == 3:
                t, tag = hq.pop(0); a.lds(t, tag)
            acc = vr(QACC + 16 * db + 4 * qb, 4)
            if FAKE32:
                if i % 2 == 0:
                    a32 = vr(QACC + 16 * ((i // 2) % 8), 16)
                    a.i(f"v_mfma_f32_32x32x16_bf16 {a32}, {vr(FR + 4 * (absf % 4), 4)}, {ar((s * 4 + qb) * 4, 4)}, {'0' if s == 0 and i < 16 else a32}")
            else:
                a.i(f"v_mfma_f32_16x16x32_bf16 {acc}, {vr(FR + 4 * (absf % 4), 4)}, {ar((s * 4 + qb) * 4, 4)}, {'0' if s == 0 else acc}")
            if qb == 0 and absf + PF < 8 * 14: pend += fread(absf + PF)
            for t in plan.pop(i, []):
                if t.endswith(":"): a.label(t[:-1])
                else: a.i(t)
            k = 0
            while pend and k < 2:
                t, tag = pend.pop(0); a.lds(t, tag); k += 1
        assert not plan

def qexchange(a):
    a.i("s_nop 7")
    a.i("v_and_b32 v1, 15, v0"); a.i("v_lshlrev_b32 v1, 4, v1"); a.i("v_bfe_u32 v2, v0, 4, 1"); a.i("v_lshl_add_u32 v1, v2, 3, v1")
    a.i("v_lshrrev_b32 v2, 5, v0"); a.i("v_lshl_add_u32 v1, v2, 8, v1")
    a.i(f"s_lshl_b32 {sr(T0)}, {sr(S_RG)}, 15"); a.i(f"s_add_u32 {sr(T0)}, {sr(T0)}, {QX}")
    a.i(f"s_lshl_b32 {sr(T1)}, {sr(S_KH)}, 12"); a.i(f"s_add_u32 {sr(T1)}, {sr(T1)}, {sr(T0)}")
    a.i(f"v_add_u32 v3, {sr(T1)}, v1")
    n = 0
    for db in range(8):
        for qb in range(4):
            x = QACC + 16 * db + 4 * qb
            t = 96 + 2 * (n % 8); n += 1
            a.i(f"v_cvt_pk_bf16_f32 {vr(t)}, {vr(x)}, {vr(x + 1)}")
            a.i(f"v_cvt_pk_bf16_f32 {vr(t + 1)}, {vr(x + 2)}, {vr(x + 3)}")
            a.lds(f"ds_write_b64 v3, {vr(t, 2)} offset:{8192 * qb + 1024 * (db >> 1) + 512 * (db & 1)}")
    a.i("v_lshlrev_b32 v3, 4, v0"); a.i(f"v_add_u32 v3, {sr(T0)}, v3")
    a.lds_drain(); a.i("s_barrier")
    kq = []
    for pre, ins, post in dma_tile('K', 1):
        kq.append([t for t in pre] + (["s_nop 0"] if pre else []) + ins + post)
    for ks in range(8):
        for qb in range(4):
            a.lds(f"ds_read_b128 {vr(Q + 32 * qb + 4 * ks, 4)}, v3 offset:{8192 * qb + 1024 * ks}", ("qf", ks))
        for t in kq.pop(0): a.i(t)
        if ks % 2 == 1: a.need(("qf", ks - 1))
    attn_setup2(a)
    a.lds_drain()
    a.i("s_waitcnt vmcnt(8)"); a.i("s_barrier")

def attention(a, cfg):
    core = Core16(a, cfg)
    vq = []
    for pre, ins, post in dma_tile('V', 0):
        vq.append([t for t in pre] + (["s_nop 0"] if pre else []) + ins + post)
    def rd0(f):
        for t in frag_reads(f, 0, 0): a.lds(t, ("a0", f))
    for f in range(4): rd0(f)
    for f in range(16):
        kb, ks = f >> 3, f & 7
        a.need(("a0", f))
        for qb in range(4):
            d = vr(Sreg(kb, qb), 4)
            a.i(f"v_mfma_f32_16x16x32_bf16 {d}, {vr(FR + 4 * (f % 4), 4)}, {vr(Q + 32 * qb + 4 * ks, 4)}, {'0' if ks == 0 else d}")
            if qb == 1 and f % 2 == 0 and vq:
                for t in vq.pop(0): a.i(t)
        if f + 4 < 16: rd0(f + 4)
    assert not vq
    a.i("s_nop 7")
    mx = [E + qb for qb in range(4)]; tm = [PS + qb for qb in range(4)]
    for qb in range(4):
        s0 = Sreg(0, qb); a.i(f"v_max3_f32 {vr(mx[qb])}, {vr(s0)}, {vr(s0 + 1)}, {vr(s0 + 2)}")
    for qb in range(4):
        s0, s1 = Sreg(0, qb), Sreg(1, qb); a.i(f"v_max3_f32 {vr(mx[qb])}, {vr(mx[qb])}, {vr(s0 + 3)}, {vr(s1)}")
    for qb in range(4):
        s1 = Sreg(1, qb); a.i(f"v_max3_f32 {vr(mx[qb])}, {vr(mx[qb])}, {vr(s1 + 1)}, {vr(s1 + 2)}")
    for qb in range(4):
        s1 = Sreg(1, qb); a.i(f"v_max_f32 {vr(mx[qb])}, {vr(mx[qb])}, {vr(s1 + 3)}")
    for sw in ("v_permlane32_swap_b32", "v_permlane16_swap_b32"):
        for qb in range(4): a.i(f"v_mov_b32 {vr(tm[qb])}, {vr(mx[qb])}")
        a.i("s_nop 0")
        for qb in range(4): a.i(f"{sw} {vr(mx[qb])}, {vr(tm[qb])}")
        a.i("s_nop 0")
        for qb in range(4): a.i(f"v_max_f32 {vr(mx[qb])}, {vr(mx[qb])}, {vr(tm[qb])}")
    for qb in range(4):
        for r in range(4):
            a.i(f"v_sub_f32 {vr(NEGM + 4 * qb + r)}, 0, {vr(mx[qb])}")
            for kb in range(2):
                a.i(f"v_sub_f32 {vr(Sreg(kb, qb) + r)}, {vr(Sreg(kb, qb) + r)}, {vr(mx[qb])}")
        a.i(f"v_mov_b32 {vr(L + qb)}, 0")
    for kb in range(2):
        for c, t in softmax_ops(kb, P0): a.i(t)
    for qb in range(4):
        a.i(f"v_add_f32 {vr(L + qb)}, {vr(L + qb)}, {vr(c16.ps_reg(qb))}")
    a.i("s_waitcnt vmcnt(8)"); a.i("s_barrier")
    emit_groups(a, dma_tile('K', 0)[:2])
    core.prefetch_first(0)
    core.iteration(0, first=True)
    a.i(f"s_mov_b32 {sr(S_CNT)}, 14")
    st0 = a.lds_state(); base0 = core.fidx
    st0 = {k: v for k, v in st0.items() if k[0] == 'f'}
    a.lds_done = a.tag_last[("f", core.fidx)] - 1
    a.raw(".p2align 3")
    a.label("K1_LOOP")
    core.pend_l = True
    core.iteration(1); core.iteration(2)
    a.i(f"s_sub_u32 {sr(S_CNT)}, {sr(S_CNT)}, 1")
    a.i(f"s_cmp_lg_u32 {sr(S_CNT)}, 0")
    a.i("s_cbranch_scc1 K1_LOOP")
    st1 = {k: v for k, v in a.lds_state().items() if k[0] == 'f'}
    rel0 = {k[1] - base0: v for k, v in st0.items()}; rel1 = {k[1] - core.fidx: v for k, v in st1.items()}
    assert all(rel0.get(k) == v for k, v in rel1.items()), (rel0, rel1)
    a.i(f"s_mul_i32 {sr(T2)}, {sr(S_G)}, {512 * 896}")
    a.i(f"s_add_u32 {sr(SRD_X)}, s54, {sr(T2)}"); a.i(f"s_addc_u32 {sr(SRD_X + 1)}, s55, 0")
    a.i(f"s_mov_b32 {sr(SRD_X + 2)}, {512 * 896}"); a.i(f"s_mov_b32 {sr(SRD_X + 3)}, 0x20000")
    if NGX == 1:
        a.i(f"s_mul_i32 {sr(T2)}, {sr(S_QW)}, {112 * 128}"); a.i(f"s_lshl_b32 {sr(T3)}, {sr(S_W)}, 12"); a.i(f"s_add_u32 {sr(T2)}, {sr(T2)}, {sr(T3)}")
        a.i(f"v_and_b32 {vr(TA)}, 31, v0"); a.i(f"v_lshlrev_b32 {vr(TA)}, 7, {vr(TA)}")
    else:
        a.i(f"s_and_b32 {sr(T2)}, {sr(S_QW)}, 15"); a.i(f"s_mul_i32 {sr(T2)}, {sr(T2)}, {224 * 128}"); a.i(f"s_lshl_b32 {sr(T3)}, {sr(S_W)}, 13"); a.i(f"s_add_u32 {sr(T2)}, {sr(T2)}, {sr(T3)}")
        a.i(f"v_lshlrev_b32 {vr(TA)}, 7, v0")
    a.i(f"buffer_load_dword v15, {vr(TA)}, {sr(SRD_X, 4)}, {sr(T2)} offen")
    core.iteration(1, dmaKt=False)
    core.iteration(2, dmaKh=False, dmaKt=False, nxt='B', vmA=0, vmB=0)
    class L_:
        def __init__(self): self.q = []
        def i(self, t): self.q.append(t)
    lq = L_(); wo_setup(lq)
    for s_ in range(2):
        for pre, ins, post in wo_tile(s_):
            for t in pre: lq.i(t); lq.i("s_nop 0")
            for t in ins + post: lq.i(t)
    core.iteration(3, do_A=False, do_soft=False, dmaV=False, dmaKh=False, dmaKt=False, nxt=None, barB=False, extra_q=lq.q, extra_start=64)
    return core

TB_ = c16.TB

def merge(a, core, cfg):
    for qb in range(4): core.xreduce(L + qb, TA, "v_add_f32")
    a.i("v_lshlrev_b32 v1, 2, v0"); a.i(f"s_lshl_b32 {sr(T0)}, {sr(S_W)}, 11"); a.i(f"s_add_u32 {sr(T1)}, {sr(T0)}, {ST}")
    a.i(f"v_add_u32 v2, {sr(T1)}, v1")
    for qb in range(4):
        a.lds(f"ds_write_b32 v2, {vr(NEGM + 4 * qb)} offset:{256 * qb}")
        a.lds(f"ds_write_b32 v2, {vr(L + qb)} offset:{1024 + 256 * qb}")
    a.i(f"s_xor_b32 {sr(T0)}, {sr(T0)}, 2048"); a.i(f"s_add_u32 {sr(T1)}, {sr(T0)}, {ST}")
    a.i(f"v_add_u32 v2, {sr(T1)}, v1")
    a.i("v_lshlrev_b32 v1, 4, v0")
    a.i(f"s_lshl_b32 {sr(T0)}, {sr(S_W)}, 14"); a.i(f"s_add_u32 {sr(T1)}, {sr(T0)}, {XB}"); a.i(f"v_add_u32 v6, {sr(T1)}, v1")
    a.i(f"s_xor_b32 {sr(T0)}, {sr(T0)}, 16384"); a.i(f"s_add_u32 {sr(T1)}, {sr(T0)}, {XB}"); a.i(f"v_add_u32 v7, {sr(T1)}, v1")
    a.lds_drain(); a.i("s_barrier")
    R = 72; OWN = 128
    a.i(f"s_cmp_eq_u32 {sr(S_KH)}, 0"); a.i("s_cbranch_scc0 K1_MG1")
    for kh in range(2):
        if kh == 1: a.label("K1_MG1")
        for qb in range(4):
            a.lds(f"ds_read_b32 {vr(16 + qb)}, v2 offset:{256 * qb}")
            a.lds(f"ds_read_b32 {vr(20 + qb)}, v2 offset:{1024 + 256 * qb}", ("st", kh))
        alpha = [("need", ("st", kh))]
        for qb in range(4):
            t = 104 + 4 * qb; alpha.append(f"v_min_f32 {vr(t)}, {vr(NEGM + 4 * qb)}, {vr(16 + qb)}")
        for qb in range(4):
            t = 104 + 4 * qb; alpha += [f"v_sub_f32 {vr(t + 1)}, {vr(t)}, {vr(NEGM + 4 * qb)}", f"v_sub_f32 {vr(t + 2)}, {vr(t)}, {vr(16 + qb)}"]
        for qb in range(4):
            t = 104 + 4 * qb; alpha += [f"v_exp_f32 {vr(t + 1)}, {vr(t + 1)}", f"v_exp_f32 {vr(t + 2)}, {vr(t + 2)}"]
        for qb in range(4):
            t = 104 + 4 * qb; alpha.append(f"v_mul_f32 {vr(t + 3)}, {vr(t + 1)}, {vr(L + qb)}")
        for qb in range(4):
            t = 104 + 4 * qb; alpha.append(f"v_fmac_f32 {vr(t + 3)}, {vr(t + 2)}, {vr(20 + qb)}")
        for qb in range(4):
            t = 104 + 4 * qb; alpha.append(f"v_rcp_f32 {vr(t + 3)}, {vr(t + 3)}")
        alpha.append("s_nop 0")
        for qb in range(4):
            t = 104 + 4 * qb; alpha += [f"v_mul_f32 {vr(24 + 2 * qb)}, {vr(t + 1)}, {vr(t + 3)}", f"v_mul_f32 {vr(32 + 2 * qb)}, {vr(t + 2)}, {vr(t + 3)}"]
        def rd(k):
            dbp, qb = k >> 2, k & 3; x = 16 * (8 * kh + dbp) + 4 * qb; o = OWN + 4 * k
            return [f"v_accvgpr_read_b32 {vr(o + j)}, {ar(x + j)}" for j in range(4)]
        def sc(k):
            qb = k & 3; o = OWN + 4 * k
            return [f"v_pk_mul_f32 {vr(o + j, 2)}, {vr(o + j, 2)}, {vr(24 + 2 * qb, 2)} op_sel_hi:[1,0]" for j in (0, 2)]
        dma2 = []
        for pre, ins, post in wo_tile(2):
            dma2.append([t for t in pre] + (["s_nop 0"] if pre else []) + ins + post)
        f0 = []
        for k in range(8): f0 += rd(k)
        f0 += alpha
        for k in range(8): f0 += sc(k)
        for k in range(8, 16): f0 += rd(k) + sc(k)
        f1 = []
        for k in range(16, 32): f1 += rd(k) + sc(k)
        fill = {0: f0, 1: f1}
        ownq = None
        for rho in range(2):
            if rho == 1: a.i("s_barrier")
            for d4 in range(4):
                db = 8 * (1 - kh) + 4 * rho + d4
                for qb in range(4):
                    a.lds(f"ds_write_b128 v6, {ar(16 * db + 4 * qb, 4)} offset:{(d4 * 4 + qb) * 1024}")
                    n_left = 16 - (d4 * 4 + qb)
                    take = -(-len(fill[rho]) // n_left)
                    for t in [fill[rho].pop(0) for _ in range(min(take, len(fill[rho])))]:
                        if isinstance(t, tuple): a.need(t[1])
                        else: a.i(t)
                    if rho == 0 and dma2 and (d4 * 4 + qb) % 2 == 1:
                        for t in dma2.pop(0): a.i(t)
            assert not fill[rho] and not (rho == 0 and dma2)
            a.lds_drain(); a.i("s_barrier")
            for half in range(2):
                for kk in range(8):
                    t16 = 8 * half + kk
                    a.lds(f"ds_read_b128 {vr(R + 4 * kk, 4)}, v7 offset:{t16 * 1024}", ("mg", kh, rho, t16))
                for kk in range(8):
                    t16 = 8 * half + kk
                    k = 16 * rho + t16; qb = k & 3; rr = R + 4 * kk; o = OWN + 4 * k
                    a.need(("mg", kh, rho, t16))
                    for j in (0, 2):
                        a.i(f"v_pk_fma_f32 {vr(o + j, 2)}, {vr(rr + j, 2)}, {vr(32 + 2 * qb, 2)}, {vr(o + j, 2)} op_sel_hi:[1,0,1]")
                    a.i(f"v_cvt_pk_bf16_f32 {vr(o)}, {vr(o)}, {vr(o + 1)}")
                    a.i(f"v_cvt_pk_bf16_f32 {vr(o + 1)}, {vr(o + 2)}, {vr(o + 3)}")
        if kh == 0: a.i("s_branch K1_MGJ")
    a.label("K1_MGJ")
    a.i("v_and_b32 v1, 15, v0"); a.i("v_lshlrev_b32 v1, 4, v1"); a.i("v_bfe_u32 v2, v0, 4, 1"); a.i("v_lshl_add_u32 v1, v2, 3, v1")
    a.i("v_lshrrev_b32 v2, 5, v0"); a.i("v_lshl_add_u32 v1, v2, 8, v1")
    a.i(f"s_lshl_b32 {sr(T0)}, {sr(S_W)}, 14"); a.i(f"s_add_u32 {sr(T0)}, {sr(T0)}, {OX}"); a.i(f"v_add_u32 v3, {sr(T0)}, v1")
    a.i("s_barrier")
    for dbp in range(8):
        for qb in range(4):
            a.lds(f"ds_write_b64 v3, {vr(OWN + 4 * (dbp * 4 + qb), 2)} offset:{(dbp >> 1) * 4096 + qb * 1024 + 512 * (dbp & 1)}")
    a.i(f"v_lshlrev_b32 v14, 4, v0"); a.i(f"v_add_u32 v14, {OX}, v14")
    a.lds_drain(); a.i("s_barrier")
    for ks in range(8):
        for qb in range(4):
            a.lds(f"ds_read_b128 {ar((ks * 4 + qb) * 4, 4)}, v14 offset:{(ks * 4 + qb) * 1024}", ("ox", ks))
        if ks % 2 == 1: a.need(("ox", ks - 1))

WOV = 64
WOA = 16
OACC = 128
S_OOFF = 40; S_OM0 = 42
def wo_setup(a):
    a.i(f"s_mul_i32 {sr(S_OM0)}, {sr(S_W)}, 7168"); a.i(f"s_mov_b32 {sr(S_OOFF)}, 0")
    for i in range(7):
        d = WOV + i
        a.i(f"s_mul_i32 {sr(T2)}, {sr(S_W)}, 448"); a.i(f"s_add_u32 {sr(T2)}, {sr(T2)}, {64 * i}")
        a.i(f"v_add_u32 {vr(d)}, {sr(T2)}, v0")
        a.i(f"v_mul_u32_u24 v1, 18725, {vr(d)}"); a.i("v_lshrrev_b32 v1, 20, v1")
        a.i("v_bfe_u32 v15, v1, 1, 1"); a.i("v_bfe_u32 v1, v1, 3, 1"); a.i("v_lshl_or_b32 v15, v1, 1, v15")
        a.i("v_lshlrev_b32 v15, 5, v15"); a.i(f"v_lshlrev_b32 {vr(d)}, 4, {vr(d)}"); a.i(f"v_xor_b32 {vr(d)}, {vr(d)}, v15")
        if i & 3: a.i(f"v_subrev_u32 {vr(d)}, {1024 * (i & 3)}, {vr(d)}")

def wo_tile(s):
    base = WOSLOT[s % 4]
    groups = []
    for i in range(7):
        pre = [f"s_add_u32 m0, {sr(S_OM0)}, {base + (i // 4) * 4096}"] if i % 4 == 0 else []
        ins = [f"buffer_load_dwordx4 {vr(WOV + i)}, {sr(SRD_X, 4)}, {sr(S_OOFF)} offen offset:{1024 * (i & 3)} lds"]
        post = [f"s_add_u32 {sr(S_OOFF)}, {sr(S_OOFF)}, {WOT}"] if i == 6 else []
        groups.append((pre, ins, post))
    return groups

def oproj(a):
    a.i("v_lshrrev_b32 v1, 4, v0"); a.i("v_bfe_u32 v2, v0, 2, 2"); a.i("v_lshl_add_u32 v2, v1, 3, v2"); a.i("v_mul_u32_u24 v2, 896, v2")
    a.i("v_and_b32 v3, 3, v0"); a.i("v_lshl_add_u32 v2, v3, 3, v2")
    a.i("v_bfe_u32 v3, v0, 3, 1"); a.i("v_bfe_u32 v4, v0, 4, 1"); a.i("v_lshl_or_b32 v3, v4, 1, v3")
    a.i(f"s_mul_i32 {sr(T0)}, {sr(S_W)}, 7")
    for j in range(7):
        a.i(f"s_add_u32 {sr(T1)}, {sr(T0)}, {j}")
        a.i(f"v_xor_b32 v4, {sr(T1)}, v3"); a.i(f"v_lshl_add_u32 {vr(WOA + j)}, v4, 5, v2")
        a.i(f"v_add_u32 {vr(WOA + 7 + j)}, {WOSLOT[3]}, {vr(WOA + j)}")
        a.i(f"v_add_u32 {vr(WOA + 14 + j)}, {WOSLOT[2]}, {vr(WOA + j)}")
    a.lds_drain()
    a.i("s_waitcnt vmcnt(14)"); a.i("s_barrier")
    emit_groups(a, wo_tile(3))
    PF = 3
    NF = 7 * 16
    def fread(absf):
        s, j = absf // 7, absf % 7
        sl = s % 4
        breg, off = {0: (WOA + j, 0), 1: (WOA + j, WOT), 2: (WOA + 14 + j, 0), 3: (WOA + 7 + j, 0)}[sl]
        r = FR + 4 * (absf % 4)
        return [(f"ds_read_b64_tr_b16 {vr(r + 2 * r2, 2)}, {vr(breg)} offset:{off + 3584 * r2}", ("of", absf)) for r2 in range(2)]
    for f in range(PF):
        for s, tag in fread(f): a.lds(s, tag)
    pend = []
    for s in range(16):
        plan = {}
        def put(g, t): plan.setdefault(g, []).append(t)
        if s + 1 < 16:
            vm = 14 if s == 0 else (7 if s + 2 <= 15 else 0)
            put(1, f"s_waitcnt vmcnt({vm})"); put(1, "s_barrier")
            for t in skew_ops(a, SKEW): put(1, t)
        if s >= 1 and s + 3 < 16:
            for (pre, ins, post), g in zip(wo_tile(s + 3), [3, 6, 10, 14, 18, 22, 26]):
                for t in pre: put(g - 1, t)
                for t in ins + post: put(g, t)
        if s == 15 and WARM_MOE:
            put(2, f"s_cmp_eq_u32 {sr(S_W)}, 1"); put(2, "s_cselect_b32 s4, s62, s60"); put(2, "s_cselect_b32 s5, s63, s61")
            put(3, f"s_cmp_ge_u32 {sr(S_W)}, 2"); put(3, "s_cselect_b32 s4, s64, s4"); put(3, "s_cselect_b32 s5, s65, s5")
            put(4, f"s_mov_b32 s6, {448 * 3584}"); put(4, "s_mov_b32 s7, 0x20000")
            put(5, f"s_mul_i32 {sr(T2)}, s2, {49 * 128}"); put(5, "v_lshlrev_b32 v4, 7, v0")
            put(7, f"buffer_load_dword v250, v4, s[4:7], {sr(T2)} offen")
        hq = []
        if s < 8:
            hq = [(f"ds_read_b128 {ar(((8 + s) * 4 + qb) * 4, 4)}, v14 offset:{((8 + s) * 4 + qb) * 1024}", ("ox", 8 + s)) for qb in range(4)]
        for i in range(28):
            j, qb = i >> 2, i & 3
            absf = 7 * s + j
            if qb == 0: a.need(("of", absf))
            if i == 0 and s >= 8: a.need(("ox", s))
            if hq and i % 7 == 3:
                t, tag = hq.pop(0); a.lds(t, tag)
            acc = vr(OACC + 16 * j + 4 * qb, 4)
            if FAKE32:
                if i % 2 == 0:
                    a32 = vr(OACC + 16 * ((i // 2) % 7), 16)
                    a.i(f"v_mfma_f32_32x32x16_bf16 {a32}, {vr(FR + 4 * (absf % 4), 4)}, {ar((s * 4 + qb) * 4, 4)}, {'0' if s == 0 and i < 14 else a32}")
            else:
                a.i(f"v_mfma_f32_16x16x32_bf16 {acc}, {vr(FR + 4 * (absf % 4), 4)}, {ar((s * 4 + qb) * 4, 4)}, {'0' if s == 0 else acc}")
            if qb == 0 and absf + PF < NF: pend += fread(absf + PF)
            for t in plan.pop(i, []):
                if t.endswith(":"): a.label(t[:-1])
                else: a.i(t)
            k = 0
            while pend and k < 2:
                t, tag = pend.pop(0); a.lds(t, tag); k += 1
        assert not plan, plan

def store_partials(a, cfg):
    a.i("s_nop 7")
    a.i("v_and_b32 v1, 15, v0"); a.i(f"v_mul_u32_u24 v1, {TSTR}, v1"); a.i("v_lshrrev_b32 v2, 4, v0"); a.i("v_lshl_add_u32 v1, v2, 3, v1")
    a.i(f"s_mul_i32 {sr(T0)}, {sr(S_W)}, 224"); a.i(f"v_add_u32 v1, {sr(T0)}, v1")
    n = 0
    for j in range(7):
        for qb in range(4):
            x = OACC + 16 * j + 4 * qb; t = 96 + 2 * (n % 8); n += 1
            a.i(f"v_cvt_pk_bf16_f32 {vr(t)}, {vr(x)}, {vr(x + 1)}")
            a.i(f"v_cvt_pk_bf16_f32 {vr(t + 1)}, {vr(x + 2)}, {vr(x + 3)}")
            a.lds(f"ds_write_b64 v1, {vr(t, 2)} offset:{TB + 16 * TSTR * qb + 32 * j}")
    a.lds_drain(); a.i("s_barrier")
    stamp(a, cfg, 'tb')
    a.i("v_lshlrev_b32 v1, 4, v0")
    a.i(f"s_mul_i32 {sr(T0)}, {sr(S_W)}, {16 * TSTR}"); a.i(f"v_add_u32 v2, {sr(T0)}, v1")
    a.i(f"s_lshl_b32 {sr(T0)}, {sr(S_QW)}, 6"); a.i(f"s_lshl_b32 {sr(T1)}, {sr(S_W)}, 4"); a.i(f"s_add_u32 {sr(T0)}, {sr(T0)}, {sr(T1)}")
    a.i(f"s_lshl_b32 {sr(T1)}, {sr(S_G)}, 11"); a.i(f"s_add_u32 {sr(T0)}, {sr(T0)}, {sr(T1)}")
    a.i(f"s_mul_i32 {sr(T0)}, {sr(T0)}, 896"); a.i(f"s_add_u32 {sr(T0)}, {sr(T0)}, {WS_PART}")
    a.i("v_cmp_gt_u32 vcc, 56, v0"); a.i(f"s_and_saveexec_b64 s[46:47], vcc")
    for i in range(16):
        a.lds(f"ds_read_b128 {vr(128 + 4 * i, 4)}, v2 offset:{TB + TSTR * i}", ("tb", i))
    if FUSE: a.i(f"s_lshl_b32 {sr(T2)}, {sr(S_W)}, 1")
    for i in range(16):
        if FUSE and i % 8 == 0 and not kt.DBG_OWN:
            a.i(f"s_add_u32 {sr(T3)}, {sr(T2)}, {i // 8}"); a.i(f"s_cmp_eq_u32 {sr(T3)}, {sr(S_G)}"); a.i(f"s_cbranch_scc1 K1_SK{i // 8}")
        a.need(("tb", i))
        a.i(f"s_add_u32 {sr(T1)}, {sr(T0)}, {896 * i}")
        a.i(f"buffer_store_dwordx4 {vr(128 + 4 * i, 4)}, v1, {sr(SRD_WS, 4)}, {sr(T1)} offen{' sc1' if FUSE else ''}")
        if FUSE and i % 8 == 7:
            a.label(f"K1_SK{i // 8}")
            a.lds_done = min(a.lds_done, a.tag_last[("tb", i - 7)] - 1)
    a.lds_drain()
    a.i("s_mov_b64 exec, s[46:47]")
    stamp(a, cfg, 'iss')

def dump_regs(a, kind, first, n, slot):
    a.i("s_nop 15")
    a.i("s_mov_b32 s60, s56"); a.i("s_mov_b32 s61, s57"); a.i("s_mov_b32 s62, 0x10000000"); a.i("s_mov_b32 s63, 0x20000")
    a.i(f"s_lshl_b32 s58, s2, 2"); a.i(f"s_add_u32 s58, s58, {sr(S_W)}"); a.i("s_lshl_b32 s58, s58, 16")
    a.i(f"s_add_u32 s58, s58, {0x8000000 + slot * 0x4000000}")
    a.i("v_lshlrev_b32 v15, 2, v0")
    for r in range(n):
        a.i(f"s_add_u32 s59, s58, {256 * r}")
        if kind == 'a':
            a.i(f"v_accvgpr_read_b32 v1, {ar(first + r)}"); a.i(f"buffer_store_dword v1, v15, s[60:63], s59 offen"); a.i("s_nop 1")
        else:
            a.i(f"buffer_store_dword {vr(first + r)}, v15, s[60:63], s59 offen")
    a.i("s_waitcnt vmcnt(0)")

STAMPS = []
def stamp(a, cfg, name):
    if not getattr(cfg, 'stamps', 0): return
    if name in getattr(cfg, 'skip', ()): return
    k = len(STAMPS); STAMPS.append(name)
    if cfg.stamps == 2:
        if name in ('modv', 'xarr', 'ln'): return
        hdbg(a, 1, 1 + k, 72, 1, 2)
        return
    a.i(f"s_memrealtime s[{72 + 2 * k}:{73 + 2 * k}]")

def stamps_out(a, cfg):
    if getattr(cfg, 'stamps', 0) != 1: return
    a.i("s_waitcnt lgkmcnt(0)")
    a.i("s_mov_b32 s60, s56"); a.i("s_mov_b32 s61, s57"); a.i("s_mov_b32 s62, 0x10000000"); a.i("s_mov_b32 s63, 0x20000")
    a.i(f"s_lshl_b32 s58, s2, 2"); a.i(f"s_add_u32 s58, s58, {sr(S_W)}"); a.i("s_lshl_b32 s58, s58, 7"); a.i("s_add_u32 s58, s58, 0x6000000")
    a.i("v_mov_b32 v15, 0")
    for k in range(len(STAMPS)):
        a.i(f"v_mov_b32 v14, s{72 + 2 * k}")
        a.i(f"buffer_store_dword v14, v15, s[60:63], s58 offen offset:{4 * k}")
        a.i("s_nop 1")

def gen_k1(a, cfg, stop=None):
    n = "attn_kernel"
    kstart(a, n)
    a.i("s_cmp_ge_u32 s2, 256"); a.i("s_cbranch_scc1 K1_DONE")
    stamp(a, cfg, 'start')
    k1_setup(a); k1_srds(a)
    prologue(a, cfg)
    if getattr(cfg, 'dbg', 0): dump_regs(a, 'a', 0, 224, 0)
    stamp(a, cfg, 'hfrag')
    qproj(a)
    stamp(a, cfg, 'qproj')
    qexchange(a)
    if getattr(cfg, 'dbg', 0): dump_regs(a, 'v', 128, 128, 1)
    stamp(a, cfg, 'qx')
    core = attention(a, cfg)
    stamp(a, cfg, 'attn')
    merge(a, core, cfg)
    stamp(a, cfg, 'merge')
    oproj(a)
    stamp(a, cfg, 'oproj')
    store_partials(a, cfg)
    if FUSE:
        R = dict(W=S_W, G=S_G, QW=S_QW, SRD_WS=SRD_WS, T=(T0, T1, T2, T3), P_X=44, P_OUT=66, P_WR=58, P_WG=60, P_WU=62, P_WD=64)
        kt.tail(a, R, lambda n: stamp(a, cfg, n))
        a.label("K1_TE")
    a.i("s_waitcnt vmcnt(0)")
    stamp(a, cfg, 'store')
    stamps_out(a, cfg)
    a.label("K1_DONE")
    a.i("s_endpgm")
    core.emit_rare()
    a.label("K1_END")
    return kdesc(n, vgpr=512, accum=256, sgpr=102), 256, 163840
```

```python
from asmlib import *

WS_A1 = 0
WS_S1 = 1792
WS_GA = 4096; WS_A2 = 5120; WS_SB = 6144; WS_GB = 7168
WS_R = 8192
WS_IDX = 16384
WS_RSEL = 16448
WS_GU = 20480
WS_STAT = 0x10000
WS_RR = 0x20000
WS_SYNC = 0x18000
WS_X1 = 0x100000
WS_H2 = 0x300000
WS_PART = 0x800000
WS_SIZE = 0x10000000
QSCALE = 1.4426950408889634 / 16
HD = False

import struct
def f2u(x): return struct.unpack('<I', struct.pack('<f', x))[0]

def kstart(a, name):
    a.raw(f".globl {name}\n.p2align 8\n.type {name},@function\n{name}:")

def srd(a, dst, ptr, size, off=0):
    if off == 0:
        a.i(f"s_mov_b32 {sr(dst)}, {sr(ptr)}"); a.i(f"s_mov_b32 {sr(dst + 1)}, {sr(ptr + 1)}")
    else:
        a.i(f"s_add_u32 {sr(dst)}, {sr(ptr)}, {off}"); a.i(f"s_addc_u32 {sr(dst + 1)}, {sr(ptr + 1)}, 0")
    a.i(f"s_mov_b32 {sr(dst + 2)}, {size}"); a.i(f"s_mov_b32 {sr(dst + 3)}, 0x20000")

def hdbg(a, launch, word, sb, va, vb, wg=0):
    L = a.newlabel("HD")
    a.i(f"s_cmp_lg_u32 s2, {wg}"); a.i(f"s_cbranch_scc1 {L}")
    a.i(f"s_memrealtime s[{sb + 4}:{sb + 5}]"); a.i(f"s_load_dwordx2 s[{sb}:{sb + 1}], s[0:1], 104")
    a.i("s_waitcnt lgkmcnt(0)")
    a.i(f"s_add_u32 s{sb}, s{sb}, {512 * (3 - launch)}"); a.i(f"s_addc_u32 s{sb + 1}, s{sb + 1}, 0")
    a.i(f"s_mov_b32 s{sb + 2}, 256"); a.i(f"s_mov_b32 s{sb + 3}, 0x20000")
    a.i(f"v_mov_b32 v{va}, {4 * word}"); a.i(f"v_mov_b32 v{vb}, s{sb + 4}")
    a.i(f"buffer_store_dword v{vb}, v{va}, s[{sb}:{sb + 3}], 0 offen")
    a.label(L)

def bf_lo(a, d, s): a.i(f"v_lshlrev_b32 {vr(d)}, 16, {vr(s)}")
def bf_hi(a, d, s): a.i(f"v_and_b32 {vr(d)}, 0xffff0000, {vr(s)}")
def round_bf(a, d, s, tmp=None):
    a.i(f"v_cvt_pk_bf16_f32 {vr(d)}, {vr(s)}, {vr(s)}")
    a.i(f"v_lshlrev_b32 {vr(d)}, 16, {vr(d)}")

def wave_sum(a, v, t, n=1):
    for ctl in ("quad_perm:[1,0,3,2]", "quad_perm:[2,3,0,1]", "row_half_mirror", "row_mirror"):
        a.i("s_nop 1")
        a.i(f"v_add_f32_dpp {vr(v)}, {vr(v)}, {vr(v)} {ctl} row_mask:0xf bank_mask:0xf")
    for sw in ("v_permlane16_swap_b32", "v_permlane32_swap_b32"):
        a.i(f"v_mov_b32 {vr(t)}, {vr(v)}")
        a.i("s_nop 1")
        a.i(f"{sw} {vr(v)}, {vr(t)}")
        a.i("s_nop 1")
        a.i(f"v_add_f32 {vr(v)}, {vr(v)}, {vr(t)}")

def sigmoid(a, d, x, t):
    a.i(f"v_mul_f32 {vr(t)}, {hex(f2u(-1.4426950408889634))}, {vr(x)}")
    a.i(f"v_exp_f32 {vr(t)}, {vr(t)}")
    a.i("s_nop 0")
    a.i(f"v_add_f32 {vr(t)}, 1.0, {vr(t)}")
    a.i(f"v_rcp_f32 {vr(d)}, {vr(t)}")
    a.i("s_nop 0")

def gen_k0(a, codewarm=0):
    n = "mod_kernel"
    kstart(a, n)
    if HD: hdbg(a, 0, 0, 32, 60, 61)
    a.i("s_cmp_ge_u32 s2, 260"); a.i("s_cbranch_scc1 K0_DONE")
    a.i("s_cmp_ge_u32 s2, 148"); a.i("s_cbranch_scc1 K0_WARM")
    a.i("s_cmp_ge_u32 s2, 84"); a.i("s_cbranch_scc1 K0_STAT")
    a.i("s_load_dwordx4 s[4:7], s[0:1], 80")
    a.i("s_load_dwordx2 s[8:9], s[0:1], 112")
    a.i("v_and_b32 v1, 3, v0")
    a.i("v_lshrrev_b32 v2, 2, v0")
    a.i("v_mul_u32_u24 v3, 14, v2")
    a.i("v_mul_u32_u24 v4, 37632, v2")
    a.i("v_lshl_add_u32 v4, v1, 4, v4")
    a.i("s_lshl_b32 s3, s2, 6")
    a.i("v_add_u32 v4, s3, v4")
    a.i("s_waitcnt lgkmcnt(0)")
    srd(a, 12, 4, 896); srd(a, 16, 6, 448 * 5376); srd(a, 20, 8, WS_SIZE)
    for i in range(7):
        a.i(f"buffer_load_ushort {vr(8 + i)}, v3, s[12:15], 0 offen offset:{2 * i}")
    for i in range(7):
        a.i(f"s_mov_b32 s24, {5376 * i}")
        a.i(f"buffer_load_dwordx4 {vr(16 + 4 * i, 4)}, v4, s[16:19], s24 offen")
    a.i("s_waitcnt vmcnt(7)")
    for i in range(7): a.i(f"v_lshlrev_b32 {vr(8 + i)}, 16, {vr(8 + i)}")
    for i in range(7): a.i(f"v_mul_f32 {vr(56 + i)}, {hex(f2u(-1.4426950408889634))}, {vr(8 + i)}")
    for i in range(7): a.i(f"v_exp_f32 {vr(56 + i)}, {vr(56 + i)}")
    for i in range(7): a.i(f"v_add_f32 {vr(56 + i)}, 1.0, {vr(56 + i)}")
    for i in range(7): a.i(f"v_rcp_f32 {vr(56 + i)}, {vr(56 + i)}")
    for i in range(7): a.i(f"v_mul_f32 {vr(8 + i)}, {vr(8 + i)}, {vr(56 + i)}")
    for i in range(7): a.i(f"v_cvt_pk_bf16_f32 {vr(8 + i)}, {vr(8 + i)}, {vr(8 + i)}")
    for i in range(7): a.i(f"v_lshlrev_b32 {vr(8 + i)}, 16, {vr(8 + i)}")
    for j in range(8): a.i(f"v_mov_b32 {vr(48 + j)}, 0")
    for i in range(7):
        a.i(f"s_waitcnt vmcnt({6 - i})")
        for j in range(4):
            bf_lo(a, 5, 16 + 4 * i + j); bf_hi(a, 6, 16 + 4 * i + j)
            a.i(f"v_fmac_f32 {vr(48 + 2 * j)}, {vr(8 + i)}, v5")
            a.i(f"v_fmac_f32 {vr(48 + 2 * j + 1)}, {vr(8 + i)}, v6")
    for rot in (4, 8):
        a.i("s_nop 1")
        for j in range(8): a.i(f"v_add_f32_dpp {vr(48 + j)}, {vr(48 + j)}, {vr(48 + j)} row_ror:{rot} row_mask:0xf bank_mask:0xf")
    a.i("v_lshrrev_b32 v7, 4, v0"); a.i("v_lshlrev_b32 v7, 7, v7"); a.i("v_lshl_add_u32 v7, v1, 5, v7")
    a.i("v_and_b32 v5, 12, v0"); a.i("v_cmp_eq_u32 vcc, 0, v5"); a.i("s_and_saveexec_b64 s[26:27], vcc")
    a.i("ds_write_b128 v7, v[48:51]"); a.i("ds_write_b128 v7, v[52:55] offset:16")
    a.i("s_mov_b64 exec, s[26:27]")
    a.i("s_waitcnt lgkmcnt(0)"); a.i("s_barrier")
    a.i("v_cmp_gt_u32 vcc, 32, v0"); a.i("s_and_saveexec_b64 s[26:27], vcc")
    a.i("s_cbranch_execz K0_DONE")
    a.i("v_lshlrev_b32 v7, 2, v0")
    for j in range(15): a.i(f"ds_read_b32 {vr(16 + j)}, v7 offset:{128 * j}")
    a.i("s_waitcnt lgkmcnt(7)")
    a.i(f"ds_read_b32 v31, v7 offset:{128 * 15}")
    a.i("v_add_f32 v16, v16, v17"); a.i("v_add_f32 v18, v18, v19"); a.i("v_add_f32 v20, v20, v21"); a.i("v_add_f32 v22, v22, v23")
    a.i("v_add_f32 v16, v16, v18"); a.i("v_add_f32 v20, v20, v22")
    a.i("s_waitcnt lgkmcnt(0)")
    a.i("v_add_f32 v24, v24, v25"); a.i("v_add_f32 v26, v26, v27"); a.i("v_add_f32 v28, v28, v29"); a.i("v_add_f32 v30, v30, v31")
    a.i("v_add_f32 v16, v16, v20"); a.i("v_add_f32 v24, v24, v26"); a.i("v_add_f32 v28, v28, v30"); a.i("v_add_f32 v24, v24, v28")
    a.i("v_add_f32 v8, v16, v24")
    round_bf(a, 8, 8)
    a.i("s_mul_i32 s24, s2, 4682"); a.i("s_lshr_b32 s24, s24, 16")
    a.i("s_mul_i32 s25, s24, 14"); a.i("s_sub_u32 s25, s2, s25"); a.i("s_lshl_b32 s25, s25, 5")
    a.i("v_add_u32 v9, s25, v0")
    a.i("v_add_f32 v10, 1.0, v8"); round_bf(a, 10, 10)
    a.i(f"s_mov_b32 s28, {hex(f2u(QSCALE))}")
    a.i("s_cmp_eq_u32 s24, 0"); a.i("s_cbranch_scc1 K0_S0")
    a.i("s_cmp_eq_u32 s24, 1"); a.i("s_cbranch_scc1 K0_S1")
    a.i("s_cmp_eq_u32 s24, 4")
    a.i("s_cbranch_scc0 K0_NB")
    a.i("v_mov_b32 v8, v10")
    a.label("K0_NB")
    a.i("v_lshrrev_b32 v8, 16, v8")
    a.i(f"s_mov_b32 s29, {WS_GA}")
    a.i("s_cmp_eq_u32 s24, 3"); a.i(f"s_cselect_b32 s29, {WS_SB}, s29")
    a.i("s_cmp_eq_u32 s24, 4"); a.i(f"s_cselect_b32 s29, {WS_A2}, s29")
    a.i("s_cmp_eq_u32 s24, 5"); a.i(f"s_cselect_b32 s29, {WS_GB}, s29")
    a.i("v_lshlrev_b32 v9, 1, v9")
    a.i("buffer_store_short v8, v9, s[20:23], s29 offen")
    a.i("s_branch K0_END")
    a.label("K0_S0")
    a.i("v_mul_f32 v8, s28, v8"); a.i("v_lshlrev_b32 v9, 2, v9")
    a.i(f"buffer_store_dword v8, v9, s[20:23], 0 offen offset:{WS_S1}")
    a.i("s_branch K0_END")
    a.label("K0_S1")
    a.i("v_mul_f32 v8, s28, v10"); a.i("v_lshlrev_b32 v9, 2, v9")
    a.i(f"buffer_store_dword v8, v9, s[20:23], 0 offen offset:{WS_A1}")
    a.label("K0_END")
    a.i("s_waitcnt vmcnt(0)")
    a.label("K0_DONE")
    a.i("s_endpgm")
    a.label("K0_WARM")
    a.i("s_load_dwordx2 s[4:5], s[0:1], 24")
    a.i("s_sub_u32 s3, s2, 148"); a.i("s_lshl_b32 s3, s3, 15"); a.i("v_lshlrev_b32 v1, 7, v0")
    a.i("s_waitcnt lgkmcnt(0)")
    srd(a, 8, 4, 448 * 8192)
    a.i("buffer_load_dword v2, v1, s[8:11], s3 offen")
    if codewarm & 2:
        a.i("s_cmp_ge_u32 s2, 151"); a.i("s_cbranch_scc1 K0_WE")
        a.i("s_getpc_b64 s[12:13]")
        a.label("K0_PC")
        a.i("s_mov_b32 s14, ALL_END - K0_PC"); a.i("s_mov_b32 s15, 0x20000")
        a.i("buffer_load_dword v3, v1, s[12:15], s3 offen")
        a.label("K0_WE")
    a.i("s_endpgm")
    a.label("K0_STAT")
    a.i("s_load_dwordx2 s[4:5], s[0:1], 0"); a.i("s_load_dwordx2 s[6:7], s[0:1], 112")
    a.i("v_lshrrev_b32 v1, 3, v0"); a.i("s_sub_u32 s3, s2, 84"); a.i("s_lshl_b32 s3, s3, 5"); a.i("v_add_u32 v1, s3, v1")
    a.i("v_and_b32 v2, 7, v0"); a.i("v_mul_u32_u24 v3, 896, v1"); a.i("v_lshl_add_u32 v3, v2, 4, v3")
    a.i("s_waitcnt lgkmcnt(0)")
    srd(a, 8, 4, 2048 * 896); srd(a, 12, 6, 0x2000000)
    for i in range(7): a.i(f"buffer_load_dwordx4 {vr(8 + 4 * i, 4)}, v3, s[8:11], 0 offen offset:{128 * i}")
    a.i("s_cmp_lg_u32 s2, 84"); a.i("s_cbranch_scc1 K0_NZ")
    a.i("v_lshrrev_b32 v4, 3, v0"); a.i("v_lshlrev_b32 v4, 7, v4"); a.i("v_and_b32 v5, 7, v0"); a.i("v_lshl_add_u32 v4, v5, 2, v4")
    a.i("v_mov_b32 v5, 0"); a.i(f"s_mov_b32 s16, {WS_SYNC}")
    a.i("buffer_store_dword v5, v4, s[12:15], s16 offen")
    a.label("K0_NZ")
    a.i("s_cmp_lg_u32 s2, 85"); a.i("s_cbranch_scc1 K0_NF")
    a.i("v_lshlrev_b32 v4, 4, v0")
    for j in range(4): a.i(f"v_mov_b32 {vr(92 + j)}, -1")
    for j in range(7):
        a.i(f"s_mov_b32 s16, {WS_GU + 4096 * j}")
        a.i("buffer_store_dwordx4 v[92:95], v4, s[12:15], s16 offen")
    a.label("K0_NF")
    a.i("s_cmp_lt_u32 s2, 86"); a.i("s_cbranch_scc1 K0_NR"); a.i("s_cmp_ge_u32 s2, 102"); a.i("s_cbranch_scc1 K0_NR")
    a.i("v_lshlrev_b32 v4, 4, v0")
    for j in range(4): a.i(f"v_mov_b32 {vr(92 + j)}, -1")
    a.i(f"s_sub_u32 s16, s2, 86"); a.i("s_lshl_b32 s16, s16, 12"); a.i(f"s_add_u32 s16, s16, {WS_RR}")
    a.i("buffer_store_dwordx4 v[92:95], v4, s[12:15], s16 offen")
    a.label("K0_NR")
    a.i("s_waitcnt vmcnt(0)")
    X = 40
    for i in range(7):
        for j in range(4):
            bf_lo(a, X + 8 * i + 2 * j, 8 + 4 * i + j); bf_hi(a, X + 8 * i + 2 * j + 1, 8 + 4 * i + j)
    def red8(v):
        for ctl in ("quad_perm:[1,0,3,2]", "quad_perm:[2,3,0,1]", "row_half_mirror"):
            a.i("s_nop 1"); a.i(f"v_add_f32_dpp {vr(v)}, {vr(v)}, {vr(v)} {ctl} row_mask:0xf bank_mask:0xf")
    a.i(f"v_pk_add_f32 v[4:5], {vr(X, 2)}, {vr(X + 2, 2)}")
    for k in range(4, 56, 2): a.i(f"v_pk_add_f32 v[4:5], v[4:5], {vr(X + k, 2)}")
    a.i("v_add_f32 v4, v4, v5"); red8(4)
    a.i(f"v_mul_f32 v4, {hex(f2u(-1.0 / 448))}, v4")
    for k in range(0, 56, 2): a.i(f"v_pk_add_f32 {vr(X + k, 2)}, {vr(X + k, 2)}, v[4:5] op_sel_hi:[1,0]")
    a.i(f"v_pk_mul_f32 v[6:7], {vr(X, 2)}, {vr(X, 2)}")
    for k in range(2, 56, 2): a.i(f"v_pk_fma_f32 v[6:7], {vr(X + k, 2)}, {vr(X + k, 2)}, v[6:7]")
    a.i("v_add_f32 v6, v6, v7"); red8(6)
    a.i(f"v_mul_f32 v6, {hex(f2u(1.0 / 448))}, v6"); a.i(f"v_add_f32 v6, {hex(f2u(1e-5))}, v6")
    a.i("v_rsq_f32 v6, v6"); a.i("s_nop 0"); a.i("v_mul_f32 v7, v4, v6")
    a.i("v_lshlrev_b32 v1, 3, v1"); a.i(f"s_mov_b32 s16, {WS_STAT}")
    a.i("v_cmp_eq_u32 vcc, 0, v2"); a.i("s_and_saveexec_b64 s[18:19], vcc")
    a.i("buffer_store_dwordx2 v[6:7], v1, s[12:15], s16 offen")
    a.i("s_endpgm")
    return kdesc(n, vgpr=96, accum=96, sgpr=40)

def gen_k2(a):
    n = "red_kernel"
    kstart(a, n)
    if HD: hdbg(a, 2, 12, 36, 120, 121)
    a.i("s_cmp_ge_u32 s2, 256"); a.i("s_cbranch_scc1 K2_DONE")
    a.i("s_load_dwordx2 s[4:5], s[0:1], 0")
    a.i("s_load_dwordx2 s[6:7], s[0:1], 48")
    a.i("s_load_dwordx2 s[8:9], s[0:1], 96")
    a.i("s_load_dwordx2 s[10:11], s[0:1], 112")
    a.i("v_lshrrev_b32 v1, 6, v0"); a.i("s_nop 0"); a.i("v_readfirstlane_b32 s3, v1")
    a.i("v_and_b32 v0, 63, v0")
    a.i("s_lshl_b32 s28, s2, 3"); a.i("s_add_u32 s28, s28, s3")
    a.i("s_mul_i32 s29, s28, 896")
    a.i("v_lshlrev_b32 v1, 4, v0")
    a.i("v_cmp_gt_u32 vcc, 56, v0"); a.i("v_mov_b32 v2, 0x7fff0000"); a.i("s_nop 0")
    a.i("v_cndmask_b32 v1, v2, v1, vcc")
    a.i("s_waitcnt lgkmcnt(0)")
    srd(a, 12, 4, 2048 * 896); srd(a, 16, 6, 896); srd(a, 20, 8, 2048 * 896); srd(a, 24, 10, 0x2000000)
    for g in range(8):
        a.i(f"s_add_u32 s30, s29, {WS_PART + g * 2048 * 896}")
        a.i(f"buffer_load_dwordx4 {vr(16 + 4 * g, 4)}, v1, s[24:27], s30 offen")
    a.i(f"buffer_load_dwordx4 v[48:51], v1, s[12:15], s29 offen")
    for k, off in enumerate((WS_GA, WS_A2, WS_SB, WS_GB)):
        a.i(f"s_mov_b32 s30, {off}")
        a.i(f"buffer_load_dwordx4 {vr(52 + 4 * k, 4)}, v1, s[24:27], s30 offen")
    a.i(f"buffer_load_dwordx4 v[68:71], v1, s[16:19], 0 offen")
    for g in range(8):
        a.i(f"s_waitcnt vmcnt({13 - g})")
        for j in range(4):
            if g == 0:
                bf_lo(a, 72 + 2 * j, 16 + j); bf_hi(a, 73 + 2 * j, 16 + j)
            else:
                bf_lo(a, 4, 16 + 4 * g + j); bf_hi(a, 5, 16 + 4 * g + j)
                a.i(f"v_add_f32 {vr(72 + 2 * j)}, {vr(72 + 2 * j)}, v4")
                a.i(f"v_add_f32 {vr(73 + 2 * j)}, {vr(73 + 2 * j)}, v5")
    a.i("s_waitcnt vmcnt(0)")
    def unpack(dst, src):
        for j in range(4):
            bf_lo(a, dst + 2 * j, src + j); bf_hi(a, dst + 2 * j + 1, src + j)
    unpack(80, 48)
    unpack(88, 52)
    for j in range(8):
        round_bf(a, 72 + j, 72 + j)
        a.i(f"v_mul_f32 {vr(72 + j)}, {vr(88 + j)}, {vr(72 + j)}")
        round_bf(a, 72 + j, 72 + j)
        a.i(f"v_add_f32 {vr(80 + j)}, {vr(80 + j)}, {vr(72 + j)}")
        round_bf(a, 80 + j, 80 + j)
    for j in range(4):
        a.i(f"v_cvt_pk_bf16_f32 {vr(16 + j)}, {vr(80 + 2 * j)}, {vr(81 + 2 * j)}")
    a.i(f"s_add_u32 s30, s29, {WS_X1}")
    a.i("buffer_store_dwordx4 v[16:19], v1, s[24:27], s30 offen")
    a.i("v_add_f32 v4, v80, v81")
    for j in range(2, 8): a.i(f"v_add_f32 v4, v4, {vr(80 + j)}")
    wave_sum(a, 4, 5)
    a.i(f"v_mul_f32 v4, {hex(f2u(1.0 / 448))}, v4")
    for j in range(8): a.i(f"v_sub_f32 {vr(96 + j)}, {vr(80 + j)}, v4")
    a.i("v_mul_f32 v6, v96, v96")
    for j in range(1, 8): a.i(f"v_fmac_f32 v6, {vr(96 + j)}, {vr(96 + j)}")
    a.i("v_cmp_gt_u32 vcc, 56, v0"); a.i("s_nop 1")
    a.i("v_cndmask_b32 v6, 0, v6, vcc")
    wave_sum(a, 6, 5)
    a.i(f"v_mul_f32 v6, {hex(f2u(1.0 / 448))}, v6")
    a.i(f"v_add_f32 v6, {hex(f2u(1e-5))}, v6")
    a.i("v_rsq_f32 v6, v6"); a.i("s_nop 0")
    unpack(88, 56)
    unpack(104, 60)
    for j in range(8):
        a.i(f"v_mul_f32 {vr(96 + j)}, {vr(96 + j)}, v6")
        a.i(f"v_fma_f32 {vr(96 + j)}, {vr(96 + j)}, {vr(88 + j)}, {vr(104 + j)}")
        round_bf(a, 96 + j, 96 + j)
    for j in range(4):
        a.i(f"v_cvt_pk_bf16_f32 {vr(20 + j)}, {vr(96 + 2 * j)}, {vr(97 + 2 * j)}")
    a.i(f"s_add_u32 s30, s29, {WS_H2}")
    a.i("buffer_store_dwordx4 v[20:23], v1, s[24:27], s30 offen")
    unpack(88, 68)
    a.i("v_mul_f32 v7, v96, v88")
    for j in range(1, 8): a.i(f"v_fmac_f32 v7, {vr(96 + j)}, {vr(88 + j)}")
    wave_sum(a, 7, 5)
    round_bf(a, 7, 7)
    unpack(88, 64)
    for j in range(8):
        a.i(f"v_mul_f32 {vr(88 + j)}, {vr(88 + j)}, {vr(96 + j)}")
        round_bf(a, 88 + j, 88 + j)
        a.i(f"v_add_f32 {vr(88 + j)}, {vr(88 + j)}, {vr(80 + j)}")
    for j in range(4):
        a.i(f"v_cvt_pk_bf16_f32 {vr(24 + j)}, {vr(88 + 2 * j)}, {vr(89 + 2 * j)}")
    a.i("buffer_store_dwordx4 v[24:27], v1, s[20:23], s29 offen")
    a.i("v_cmp_eq_u32 vcc, 0, v0"); a.i("s_and_saveexec_b64 s[32:33], vcc")
    a.i("s_lshl_b32 s30, s28, 2"); a.i(f"s_add_u32 s30, s30, {WS_R}")
    a.i("v_mov_b32 v8, 0")
    a.i("buffer_store_dword v7, v8, s[24:27], s30 offen")
    a.i("s_mov_b64 exec, s[32:33]")
    a.i("s_waitcnt vmcnt(0)")
    if HD: hdbg(a, 2, 13, 36, 120, 121)
    a.label("K2_DONE")
    a.i("s_endpgm")
    return kdesc(n, vgpr=128, accum=128, sgpr=48)

def wave_max_u32(a, v, t):
    for ctl in ("quad_perm:[1,0,3,2]", "quad_perm:[2,3,0,1]", "row_half_mirror", "row_mirror"):
        a.i("s_nop 1")
        a.i(f"v_max_u32_dpp {vr(v)}, {vr(v)}, {vr(v)} {ctl} row_mask:0xf bank_mask:0xf")
    for sw in ("v_permlane16_swap_b32", "v_permlane32_swap_b32"):
        a.i(f"v_mov_b32 {vr(t)}, {vr(v)}")
        a.i("s_nop 1")
        a.i(f"{sw} {vr(v)}, {vr(t)}")
        a.i("s_nop 1")
        a.i(f"v_max_u32 {vr(v)}, {vr(v)}, {vr(t)}")

def gen_k3(a):
    n = "gate_kernel"
    NWG = 112
    L_CAND = 28672; L_SEL = 28672 + 128
    kstart(a, n)
    a.i(f"s_cmp_ge_u32 s2, {NWG}"); a.i("s_cbranch_scc1 K3_DONE")
    a.i("s_load_dwordx4 s[4:7], s[0:1], 56")
    a.i("s_load_dwordx2 s[8:9], s[0:1], 112")
    a.i("v_lshrrev_b32 v1, 6, v0"); a.i("s_nop 0"); a.i("v_readfirstlane_b32 s3, v1")
    a.i("v_and_b32 v2, 63, v0")
    a.i("s_waitcnt lgkmcnt(0)")
    srd(a, 20, 8, 0x2000000)
    a.i("v_lshlrev_b32 v3, 5, v0")
    a.i(f"s_mov_b32 s24, {WS_R}")
    a.i("buffer_load_dwordx4 v[16:19], v3, s[20:23], s24 offen")
    a.i("buffer_load_dwordx4 v[20:23], v3, s[20:23], s24 offen offset:16")
    a.i("s_cmp_ge_u32 s3, 2")
    a.i("s_cselect_b32 s12, s6, s4"); a.i("s_cselect_b32 s13, s7, s5")
    a.i(f"s_mov_b32 s14, {448 * 3584}"); a.i("s_mov_b32 s15, 0x20000")
    a.i("v_lshrrev_b32 v4, 1, v2"); a.i("v_mul_u32_u24 v4, 3584, v4")
    a.i("v_and_b32 v5, 1, v2"); a.i("v_lshl_add_u32 v4, v5, 4, v4")
    a.i("s_lshl_b32 s25, s2, 5"); a.i("v_add_u32 v4, s25, v4")
    a.i("s_and_b32 s26, s3, 1"); a.i("s_mul_i32 s27, s26, 7")
    a.i("s_mul_i32 s28, s3, 7168")
    a.i(f"s_mul_i32 s27, s27, {32 * 3584}")
    for i in range(7):
        a.i(f"s_add_u32 m0, s28, {1024 * i}")
        a.i(f"s_add_u32 s29, s27, {32 * 3584 * i}")
        a.i("buffer_load_dwordx4 v4, s[12:15], s29 offen lds")
    a.i("s_waitcnt vmcnt(7)")
    a.i("v_lshlrev_b32 v6, 3, v0"); a.i("v_sub_u32 v6, 2047, v6")
    for j in range(8):
        k = 16 + j
        a.i(f"v_ashrrev_i32 v7, 31, {vr(k)}")
        a.i("v_or_b32 v7, 0x80000000, v7")
        a.i(f"v_xor_b32 {vr(k)}, {vr(k)}, v7")
        a.i(f"v_and_b32 {vr(k)}, 0xffff0000, {vr(k)}")
        a.i(f"v_subrev_u32 v7, {j}, v6")
        a.i(f"v_or_b32 {vr(k)}, {vr(k)}, v7")
    a.i("v_mov_b32 v9, 0")
    for rnd in range(8):
        a.i("v_max3_u32 v8, v16, v17, v18"); a.i("v_max3_u32 v8, v8, v19, v20")
        a.i("v_max3_u32 v8, v8, v21, v22"); a.i("v_max_u32 v8, v8, v23")
        wave_max_u32(a, 8, 7)
        a.i(f"v_cmp_eq_u32 s[30:31], {rnd}, v2")
        if rnd < 7:
            for j in range(0, 8, 2):
                a.i(f"v_cmp_eq_u32 s[32:33], {vr(16 + j)}, v8")
                a.i(f"v_cmp_eq_u32 s[34:35], {vr(17 + j)}, v8")
                a.i("s_nop 0")
                a.i(f"v_cndmask_b32 {vr(16 + j)}, {vr(16 + j)}, 0, s[32:33]")
                a.i(f"v_cndmask_b32 {vr(17 + j)}, {vr(17 + j)}, 0, s[34:35]")
        else:
            a.i("s_nop 1")
        a.i("v_cndmask_b32 v9, v9, v8, s[30:31]")
    a.i("s_lshl_b32 s29, s3, 5"); a.i("v_lshl_add_u32 v7, v2, 2, s29"); a.i(f"v_add_u32 v7, {L_CAND}, v7")
    a.i("v_cmp_gt_u32 vcc, 8, v2"); a.i("s_and_saveexec_b64 s[36:37], vcc")
    a.i("ds_write_b32 v7, v9")
    a.i("s_mov_b64 exec, s[36:37]")
    a.i("s_waitcnt lgkmcnt(0) vmcnt(0)"); a.i("s_barrier")
    a.i("s_cmp_lg_u32 s3, 0"); a.i("s_cbranch_scc1 K3_DONE")
    a.i("v_and_b32 v7, 31, v2"); a.i("v_lshlrev_b32 v7, 2, v7"); a.i(f"v_add_u32 v7, {L_CAND}, v7")
    a.i("ds_read_b32 v9, v7")
    a.i(f"v_mov_b32 v10, {L_CAND}")
    for j in range(8): a.i(f"ds_read_b128 {vr(16 + 4 * j, 4)}, v10 offset:{16 * j}")
    a.i("s_waitcnt lgkmcnt(0)")
    a.i("v_mov_b32 v11, 0")
    for j in range(0, 32, 2):
        a.i(f"v_cmp_gt_u32 s[32:33], {vr(16 + j)}, v9")
        a.i(f"v_cmp_gt_u32 s[34:35], {vr(17 + j)}, v9")
        a.i("s_nop 0")
        a.i("v_addc_co_u32 v11, vcc, 0, v11, s[32:33]")
        a.i("v_addc_co_u32 v11, vcc, 0, v11, s[34:35]")
    a.i("v_cmp_gt_u32 s[32:33], 8, v11"); a.i("v_cmp_gt_u32 s[34:35], 32, v2")
    a.i("s_and_b64 s[32:33], s[32:33], s[34:35]")
    a.i("v_lshlrev_b32 v11, 2, v11"); a.i(f"v_add_u32 v11, {L_SEL}, v11")
    a.i("s_and_saveexec_b64 s[36:37], s[32:33]")
    a.i("ds_write_b32 v11, v9")
    a.i("s_mov_b64 exec, s[36:37]")
    a.i("s_waitcnt lgkmcnt(0)")
    a.i("v_and_b32 v7, 7, v2"); a.i("v_lshlrev_b32 v7, 2, v7"); a.i(f"v_add_u32 v7, {L_SEL}, v7")
    a.i("ds_read_b32 v9, v7")
    a.i("s_waitcnt lgkmcnt(0)")
    a.i("v_and_b32 v10, 0xffff, v9"); a.i("v_sub_u32 v10, 2047, v10")
    a.i("v_mul_u32_u24 v11, 896, v10"); a.i("v_lshrrev_b32 v12, 4, v2"); a.i("v_lshl_add_u32 v11, v12, 4, v11")
    a.i(f"s_mov_b32 s24, {WS_H2}")
    for ks in range(14):
        a.i(f"buffer_load_dwordx4 {vr(16 + 4 * ks, 4)}, v11, s[20:23], s24 offen offset:{64 * ks}")
    a.i("s_cmp_lg_u32 s2, 0"); a.i("s_cbranch_scc1 K3_NOPUB")
    a.i("v_lshrrev_b32 v13, 16, v9")
    a.i("v_and_b32 v14, 0x8000, v13"); a.i("v_cmp_ne_u32 vcc, 0, v14")
    a.i("v_xor_b32 v14, 0x8000, v13"); a.i("v_xor_b32 v15, 0xffff, v13")
    a.i("v_cndmask_b32 v13, v15, v14, vcc"); a.i("v_lshlrev_b32 v13, 16, v13")
    a.i("v_lshlrev_b32 v14, 2, v2")
    a.i("v_cmp_gt_u32 vcc, 8, v2"); a.i("s_and_saveexec_b64 s[36:37], vcc")
    a.i(f"s_mov_b32 s24, {WS_IDX}")
    a.i("buffer_store_dword v10, v14, s[20:23], s24 offen")
    a.i("buffer_store_dword v13, v14, s[20:23], s24 offen offset:64")
    a.i("s_mov_b64 exec, s[36:37]")
    a.label("K3_NOPUB")
    a.i("v_bfe_u32 v13, v2, 2, 2"); a.i("v_lshl_add_u32 v13, v12, 3, v13"); a.i("v_lshlrev_b32 v13, 5, v13")
    a.i("v_and_b32 v14, 3, v2"); a.i("v_lshl_add_u32 v13, v14, 3, v13")
    for m in range(2):
        for ks in range(14):
            for r2 in range(2):
                a.i(f"ds_read_b64_tr_b16 {vr(80 + 56 * m + 4 * ks + 2 * r2, 2)}, v13 offset:{14336 * m + 1024 * ks + 128 * r2}")
            if ks % 7 == 6: a.i("s_waitcnt lgkmcnt(0)")
    a.i("s_waitcnt vmcnt(0)")
    for ks in range(14):
        for m in range(2):
            acc = vr(72 + 4 * m, 4)
            a.i(f"v_mfma_f32_16x16x32_bf16 {acc}, {vr(80 + 56 * m + 4 * ks, 4)}, {vr(16 + 4 * ks, 4)}, {'0' if ks == 0 else acc}")
    a.i("s_nop 15")
    for r in range(4):
        round_bf(a, 72 + r, 72 + r); round_bf(a, 76 + r, 76 + r)
        sigmoid(a, 5, 72 + r, 6)
        a.i(f"v_mul_f32 {vr(72 + r)}, {vr(72 + r)}, v5"); round_bf(a, 72 + r, 72 + r)
        a.i(f"v_mul_f32 {vr(72 + r)}, {vr(72 + r)}, {vr(76 + r)}")
    a.i("v_cvt_pk_bf16_f32 v76, v72, v73"); a.i("v_cvt_pk_bf16_f32 v77, v74, v75")
    a.i("v_and_b32 v5, 15, v2"); a.i("v_mul_u32_u24 v6, 3584, v5"); a.i("v_lshl_add_u32 v6, v12, 3, v6")
    a.i(f"s_lshl_b32 s24, s2, 5"); a.i(f"s_add_u32 s24, s24, {WS_GU}")
    a.i("v_cmp_gt_u32 vcc, 8, v5"); a.i("s_and_saveexec_b64 s[36:37], vcc")
    a.i("buffer_store_dwordx2 v[76:77], v6, s[20:23], s24 offen")
    a.i("s_mov_b64 exec, s[36:37]")
    a.i("s_waitcnt vmcnt(0)")
    a.label("K3_DONE")
    a.i("s_endpgm")
    return kdesc(n, vgpr=200, accum=200, sgpr=48), NWG, 28672 + 256

def gen_k4(a):
    n = "down_kernel"
    NWG = 28
    L_RED = 57344
    kstart(a, n)
    a.i(f"s_cmp_ge_u32 s2, {NWG}"); a.i("s_cbranch_scc1 K4_DONE")
    a.i("s_load_dwordx2 s[4:5], s[0:1], 72")
    a.i("s_load_dwordx2 s[6:7], s[0:1], 96")
    a.i("s_load_dwordx2 s[8:9], s[0:1], 112")
    a.i("v_lshrrev_b32 v1, 6, v0"); a.i("s_nop 0"); a.i("v_readfirstlane_b32 s3, v1")
    a.i("v_and_b32 v2, 63, v0")
    a.i("s_waitcnt lgkmcnt(0)")
    srd(a, 12, 4, 1792 * 896); srd(a, 16, 6, 2048 * 896); srd(a, 20, 8, 0x2000000)
    a.i("v_lshrrev_b32 v4, 1, v2"); a.i("v_mul_u32_u24 v4, 896, v4")
    a.i("v_and_b32 v5, 1, v2"); a.i("v_lshl_add_u32 v4, v5, 4, v4")
    a.i("s_lshl_b32 s25, s2, 5"); a.i("v_add_u32 v4, s25, v4")
    a.i(f"s_mul_i32 s27, s3, {448 * 896}"); a.i("s_mul_i32 s28, s3, 14336")
    for i in range(14):
        a.i(f"s_add_u32 m0, s28, {1024 * i}")
        a.i(f"s_add_u32 s29, s27, {32 * 896 * i}")
        a.i("buffer_load_dwordx4 v4, s[12:15], s29 offen lds")
    a.i("v_and_b32 v5, 7, v2"); a.i("v_mul_u32_u24 v6, 3584, v5"); a.i("v_lshrrev_b32 v12, 4, v2"); a.i("v_lshl_add_u32 v6, v12, 4, v6")
    a.i(f"s_mul_i32 s24, s3, 896"); a.i(f"s_add_u32 s24, s24, {WS_GU}")
    for ks in range(14):
        a.i(f"buffer_load_dwordx4 {vr(16 + 4 * ks, 4)}, v6, s[20:23], s24 offen offset:{64 * ks}")
    a.i("v_lshlrev_b32 v7, 2, v5"); a.i(f"s_mov_b32 s24, {WS_IDX}")
    a.i("buffer_load_dword v8, v7, s[20:23], s24 offen")
    a.i("buffer_load_dword v9, v7, s[20:23], s24 offen offset:64")
    a.i("v_bfe_u32 v13, v2, 2, 2"); a.i("v_lshl_add_u32 v13, v12, 3, v13"); a.i("v_lshlrev_b32 v13, 5, v13")
    a.i("v_and_b32 v14, 3, v2"); a.i("v_lshl_add_u32 v13, v14, 3, v13"); a.i("v_add_u32 v13, s28, v13")
    a.i("s_waitcnt vmcnt(0)")
    a.i("v_mul_u32_u24 v10, 896, v8"); a.i("v_lshl_add_u32 v10, v12, 3, v10"); a.i("v_add_u32 v10, s25, v10")
    a.i(f"s_mov_b32 s24, {WS_X1}"); a.i("buffer_load_dwordx2 v[76:77], v10, s[20:23], s24 offen")
    a.i(f"s_mov_b32 s24, {WS_H2}"); a.i("buffer_load_dwordx2 v[78:79], v10, s[20:23], s24 offen")
    a.i("v_lshlrev_b32 v11, 3, v12"); a.i("v_add_u32 v11, s25, v11")
    a.i(f"s_mov_b32 s24, {WS_GB}"); a.i("buffer_load_dwordx2 v[14:15], v11, s[20:23], s24 offen")
    for ks in range(14):
        for r2 in range(2):
            a.i(f"ds_read_b64_tr_b16 {vr(80 + 4 * ks + 2 * r2, 2)}, v13 offset:{1024 * ks + 128 * r2}")
        if ks % 7 == 6: a.i("s_waitcnt lgkmcnt(0)")
    for ks in range(14):
        a.i(f"v_mfma_f32_16x16x32_bf16 v[72:75], {vr(80 + 4 * ks, 4)}, {vr(16 + 4 * ks, 4)}, {'0' if ks == 0 else 'v[72:75]'}")
    a.i("s_nop 15")
    a.i("v_lshlrev_b32 v3, 4, v2"); a.i("s_lshl_b32 s24, s3, 10"); a.i(f"s_add_u32 s24, s24, {L_RED}"); a.i("v_add_u32 v3, s24, v3")
    a.i("ds_write_b128 v3, v[72:75]")
    a.i("s_waitcnt lgkmcnt(0)"); a.i("s_barrier")
    a.i("s_cmp_lg_u32 s3, 0"); a.i("s_cbranch_scc1 K4_DONE")
    for w in range(1, 4): a.i(f"ds_read_b128 {vr(16 + 4 * w, 4)}, v3 offset:{1024 * w}")
    a.i("s_waitcnt lgkmcnt(0) vmcnt(0)")
    sigmoid(a, 5, 9, 6); round_bf(a, 5, 5)
    for r in range(4):
        for w in range(1, 4): a.i(f"v_add_f32 {vr(72 + r)}, {vr(72 + r)}, {vr(16 + 4 * w + r)}")
        round_bf(a, 72 + r, 72 + r)
        a.i(f"v_mul_f32 {vr(72 + r)}, {vr(72 + r)}, v5"); round_bf(a, 72 + r, 72 + r)
    for half in range(2):
        bf_lo(a, 16 + 2 * half, 78 + half); bf_hi(a, 17 + 2 * half, 78 + half)
        bf_lo(a, 20 + 2 * half, 76 + half); bf_hi(a, 21 + 2 * half, 76 + half)
        bf_lo(a, 24 + 2 * half, 14 + half); bf_hi(a, 25 + 2 * half, 14 + half)
    for r in range(4):
        a.i(f"v_add_f32 {vr(72 + r)}, {vr(72 + r)}, {vr(16 + r)}"); round_bf(a, 72 + r, 72 + r)
        a.i(f"v_mul_f32 {vr(72 + r)}, {vr(72 + r)}, {vr(24 + r)}"); round_bf(a, 72 + r, 72 + r)
        a.i(f"v_add_f32 {vr(72 + r)}, {vr(72 + r)}, {vr(20 + r)}")
    a.i("v_cvt_pk_bf16_f32 v76, v72, v73"); a.i("v_cvt_pk_bf16_f32 v77, v74, v75")
    a.i("v_and_b32 v5, 15, v2")
    a.i("v_cmp_gt_u32 vcc, 8, v5"); a.i("s_and_saveexec_b64 s[36:37], vcc")
    a.i("buffer_store_dwordx2 v[76:77], v10, s[16:19], 0 offen")
    a.i("s_mov_b64 exec, s[36:37]")
    a.i("s_waitcnt vmcnt(0)")
    a.label("K4_DONE")
    a.i("s_endpgm")
    return kdesc(n, vgpr=144, accum=144, sgpr=48), NWG, L_RED + 4096

MST = []
def mstamp(a, on, name):
    if not on: return
    k = len(MST); MST.append(name)
    a.i(f"s_memrealtime s[{60 + 2 * k}:{61 + 2 * k}]")
def mstamps_out(a, on, which=0):
    if not on: return
    a.i("s_mov_b64 exec, -1")
    a.i("s_waitcnt lgkmcnt(0)")
    a.i("s_mov_b32 s52, s8"); a.i("s_mov_b32 s53, s9"); a.i("s_mov_b32 s54, 0x10000000"); a.i("s_mov_b32 s55, 0x20000")
    a.i("s_lshl_b32 s56, s2, 7"); a.i("s_add_u32 s56, s56, 0x6100000")
    a.i("v_mov_b32 v15, 0")
    for k in range(len(MST)):
        a.i(f"v_mov_b32 v14, s{60 + 2 * k}")
        a.i(f"buffer_store_dword v14, v15, s[52:55], s56 offen offset:{4 * k}")
        a.i("s_nop 1")

def gen_moe(a, st=False):
    n = "moe_kernel"
    NG = 112; NDOWN = 28; NWG = NG + NDOWN
    L_CAND = 57344; L_SEL = L_CAND + 128; L_RED = L_CAND + 256
    NSH = 8
    kstart(a, n)
    if HD: hdbg(a, 3, 14, 48, 210, 211)
    a.i(f"s_cmp_ge_u32 s2, {NWG}"); a.i("s_cbranch_scc1 KM_DONE")
    mstamp(a, st, 'start')
    a.i("s_load_dwordx4 s[4:7], s[0:1], 56")
    a.i("s_load_dwordx2 s[40:41], s[0:1], 72")
    a.i("s_load_dwordx2 s[42:43], s[0:1], 96")
    a.i("s_load_dwordx2 s[8:9], s[0:1], 112")
    a.i("v_lshrrev_b32 v1, 6, v0"); a.i("s_nop 0"); a.i("v_readfirstlane_b32 s3, v1")
    a.i("v_and_b32 v2, 63, v0")
    a.i("v_mov_b32 v201, 0x7fffffff")
    a.i("v_lshlrev_b32 v3, 5, v0")
    a.i("s_waitcnt lgkmcnt(0)")
    srd(a, 20, 8, 0x2000000)
    a.i(f"s_mov_b32 s24, {WS_R}")
    a.i("buffer_load_dwordx4 v[16:19], v3, s[20:23], s24 offen")
    a.i("buffer_load_dwordx4 v[20:23], v3, s[20:23], s24 offen offset:16")
    a.i("v_lshrrev_b32 v4, 1, v2"); a.i("v_and_b32 v6, 1, v2")
    a.i(f"s_cmp_ge_u32 s2, {NG}"); a.i("s_cbranch_scc1 KM_SD")
    a.i("s_cmp_ge_u32 s3, 2")
    a.i("s_cselect_b32 s12, s6, s4"); a.i("s_cselect_b32 s13, s7, s5")
    a.i(f"s_mov_b32 s14, {448 * 3584}"); a.i("s_mov_b32 s15, 0x20000")
    a.i("v_mul_u32_u24 v5, 3584, v4"); a.i("v_lshl_add_u32 v5, v6, 4, v5")
    a.i("s_lshl_b32 s25, s2, 5"); a.i("v_add_u32 v5, s25, v5")
    a.i("s_and_b32 s26, s3, 1"); a.i(f"s_mul_i32 s27, s26, {7 * 32 * 3584}")
    a.i("s_mul_i32 s28, s3, 7168"); a.i(f"s_mov_b32 s39, {32 * 3584}")
    a.i("s_branch KM_SJ")
    a.label("KM_SD")
    srd(a, 12, 40, 1792 * 896)
    a.i(f"s_sub_u32 s25, s2, {NG}"); a.i("s_lshl_b32 s25, s25, 5")
    a.i("v_mul_u32_u24 v5, 896, v4"); a.i("v_lshl_add_u32 v5, v6, 4, v5"); a.i("v_add_u32 v5, s25, v5")
    a.i(f"s_mul_i32 s27, s3, {448 * 896}"); a.i("s_mul_i32 s28, s3, 14336"); a.i(f"s_mov_b32 s39, {32 * 896}")
    a.label("KM_SJ")
    def wdma(i):
        a.i(f"s_add_u32 m0, s28, {1024 * i}")
        a.i("s_nop 0")
        a.i("buffer_load_dwordx4 v5, s[12:15], s27 offen lds")
        a.i("s_add_u32 s27, s27, s39")
    for i in range(7): wdma(i)
    a.i(f"s_cmp_lt_u32 s2, {NG}"); a.i("s_cbranch_scc1 KM_ND")
    a.i("s_waitcnt vmcnt(7)")
    for i in range(7, 14): wdma(i)
    a.i("s_branch KM_RA")
    a.label("KM_ND")
    a.i("s_waitcnt vmcnt(7)")
    a.label("KM_RA")
    mstamp(a, st, 'rarr')
    a.i("v_lshlrev_b32 v6, 3, v0"); a.i("v_sub_u32 v6, 2047, v6")
    for j in range(8):
        k = 16 + j
        a.i(f"v_ashrrev_i32 v7, 31, {vr(k)}")
        a.i("v_or_b32 v7, 0x80000000, v7")
        a.i(f"v_xor_b32 {vr(k)}, {vr(k)}, v7")
        a.i(f"v_and_b32 {vr(k)}, 0xffff0000, {vr(k)}")
        a.i(f"v_subrev_u32 v7, {j}, v6")
        a.i(f"v_or_b32 {vr(k)}, {vr(k)}, v7")
    net = [(0,1),(2,3),(4,5),(6,7),(0,2),(1,3),(4,6),(5,7),(1,2),(5,6),(0,4),(3,7),(1,5),(2,6),(1,4),(3,6),(2,4),(3,5),(3,4)]
    for x, y in net:
        a.i(f"v_max_u32 v7, {vr(16 + x)}, {vr(16 + y)}")
        a.i(f"v_min_u32 {vr(16 + y)}, {vr(16 + x)}, {vr(16 + y)}")
        a.i(f"v_mov_b32 {vr(16 + x)}, v7")
    a.i("v_mov_b32 v9, 0")
    for rnd in range(8):
        a.i("v_mov_b32 v8, v16")
        wave_max_u32(a, 8, 7)
        a.i(f"v_cmp_eq_u32 s[30:31], {rnd}, v2")
        if rnd < 7:
            a.i("v_cmp_eq_u32 vcc, v16, v8")
            a.i("s_nop 1")
            for j in range(7 - rnd):
                a.i(f"v_cndmask_b32 {vr(16 + j)}, {vr(16 + j)}, {vr(17 + j)}, vcc")
        else:
            a.i("s_nop 1")
        a.i("v_cndmask_b32 v9, v9, v8, s[30:31]")
    mstamp(a, st, 'rounds')
    a.i("s_lshl_b32 s29, s3, 5"); a.i("v_lshl_add_u32 v7, v2, 2, s29"); a.i(f"v_add_u32 v7, {L_CAND}, v7")
    a.i("v_cmp_gt_u32 vcc, 8, v2"); a.i("s_and_saveexec_b64 s[36:37], vcc")
    a.i("ds_write_b32 v7, v9")
    a.i("s_mov_b64 exec, s[36:37]")
    a.i("s_waitcnt lgkmcnt(0)")
    a.i("s_barrier")
    mstamp(a, st, 'bar1')
    a.i("s_cmp_lg_u32 s3, 0"); a.i("s_cbranch_scc1 KM_OTH")
    a.i("v_and_b32 v7, 31, v2"); a.i("v_lshlrev_b32 v7, 2, v7"); a.i(f"v_add_u32 v7, {L_CAND}, v7")
    a.i("ds_read_b32 v9, v7")
    a.i(f"v_mov_b32 v10, {L_CAND}")
    for j in range(8): a.i(f"ds_read_b128 {vr(16 + 4 * j, 4)}, v10 offset:{16 * j}")
    a.i("s_waitcnt lgkmcnt(0)")
    a.i("v_mov_b32 v11, 0")
    for j in range(0, 32, 2):
        a.i(f"v_cmp_gt_u32 s[32:33], {vr(16 + j)}, v9")
        a.i(f"v_cmp_gt_u32 s[34:35], {vr(17 + j)}, v9")
        a.i("s_nop 0")
        a.i("v_addc_co_u32 v11, vcc, 0, v11, s[32:33]")
        a.i("v_addc_co_u32 v11, vcc, 0, v11, s[34:35]")
    a.i("v_cmp_gt_u32 s[32:33], 8, v11"); a.i("v_cmp_gt_u32 s[34:35], 32, v2")
    a.i("s_and_b64 s[32:33], s[32:33], s[34:35]")
    a.i("v_lshlrev_b32 v11, 2, v11"); a.i(f"v_add_u32 v11, {L_SEL}, v11")
    a.i("s_and_saveexec_b64 s[36:37], s[32:33]")
    a.i("ds_write_b32 v11, v9")
    a.i("s_mov_b64 exec, s[36:37]")
    a.i("s_waitcnt lgkmcnt(0)")
    a.i("v_and_b32 v7, 7, v2"); a.i("v_lshlrev_b32 v7, 2, v7"); a.i(f"v_add_u32 v7, {L_SEL}, v7")
    a.i("ds_read_b32 v9, v7")
    a.i("s_waitcnt lgkmcnt(0)")
    mstamp(a, st, 'idx')
    a.i("v_and_b32 v10, 0xffff, v9"); a.i("v_sub_u32 v10, 2047, v10")
    a.i("v_mul_u32_u24 v11, 896, v10"); a.i("v_lshrrev_b32 v12, 4, v2")
    a.i(f"s_cmp_ge_u32 s2, {NG}"); a.i("s_cbranch_scc1 KM_DN0")
    a.i("v_lshl_add_u32 v200, v12, 4, v11")
    a.i(f"s_mov_b32 s24, {WS_H2}")
    for ks in range(14):
        a.i(f"buffer_load_dwordx4 {vr(16 + 4 * ks, 4)}, v200, s[20:23], s24 offen offset:{64 * ks}")
    a.i("s_waitcnt vmcnt(14)")
    a.i("s_barrier")
    a.i("v_bfe_u32 v13, v2, 2, 2"); a.i("v_lshl_add_u32 v13, v12, 3, v13"); a.i("v_lshlrev_b32 v13, 5, v13")
    a.i("v_and_b32 v14, 3, v2"); a.i("v_lshl_add_u32 v13, v14, 3, v13")
    for m in range(2):
        for ks in range(14):
            for r2 in range(2):
                a.i(f"ds_read_b64_tr_b16 {vr(80 + 56 * m + 4 * ks + 2 * r2, 2)}, v13 offset:{14336 * m + 1024 * ks + 128 * r2}")
            if ks % 7 == 6: a.i("s_waitcnt lgkmcnt(0)")
    a.i("s_waitcnt vmcnt(0)")
    mstamp(a, st, 'gath')
    for ks in range(14):
        for m in range(2):
            acc = vr(72 + 4 * m, 4)
            a.i(f"v_mfma_f32_16x16x32_bf16 {acc}, {vr(80 + 56 * m + 4 * ks, 4)}, {vr(16 + 4 * ks, 4)}, {'0' if ks == 0 else acc}")
    a.i("s_nop 7")
    for r in range(4):
        round_bf(a, 72 + r, 72 + r); round_bf(a, 76 + r, 76 + r)
        sigmoid(a, 5, 72 + r, 6)
        a.i(f"v_mul_f32 {vr(72 + r)}, {vr(72 + r)}, v5"); round_bf(a, 72 + r, 72 + r)
        a.i(f"v_mul_f32 {vr(72 + r)}, {vr(72 + r)}, {vr(76 + r)}")
    a.i("v_cvt_pk_bf16_f32 v76, v72, v73"); a.i("v_cvt_pk_bf16_f32 v77, v74, v75")
    a.i("v_and_b32 v5, 15, v2"); a.i("v_lshlrev_b32 v6, 4, v5")
    a.i("v_lshrrev_b32 v7, 1, v12"); a.i("v_lshl_add_u32 v6, v7, 7, v6"); a.i("v_and_b32 v7, 1, v12"); a.i("v_lshl_add_u32 v6, v7, 3, v6")
    a.i("s_lshr_b32 s24, s2, 1"); a.i("s_lshl_b32 s24, s24, 9"); a.i("s_and_b32 s26, s2, 1"); a.i("s_lshl_b32 s26, s26, 8")
    a.i("s_add_u32 s24, s24, s26"); a.i(f"s_add_u32 s24, s24, {WS_GU}")
    a.i("v_cmp_gt_u32 vcc, 8, v5"); a.i("s_and_saveexec_b64 s[36:37], vcc")
    a.i("buffer_store_dwordx2 v[76:77], v6, s[20:23], s24 offen sc1")
    a.i("s_mov_b64 exec, s[36:37]")
    mstamp(a, st, 'gust')
    mstamps_out(a, st, 0)
    a.i("s_endpgm")
    a.label("KM_OTH")
    a.i(f"s_cmp_ge_u32 s2, {NG}"); a.i("s_cbranch_scc1 KM_PH2")
    a.i("s_waitcnt vmcnt(0)"); a.i("s_barrier")
    a.i("s_endpgm")
    a.label("KM_DN0")
    a.i("v_lshl_add_u32 v201, v12, 3, v11"); a.i("v_add_u32 v201, s25, v201")
    a.i(f"s_mov_b32 s24, {WS_X1}"); a.i("buffer_load_dwordx2 v[202:203], v201, s[20:23], s24 offen")
    a.i(f"s_mov_b32 s24, {WS_H2}"); a.i("buffer_load_dwordx2 v[204:205], v201, s[20:23], s24 offen")
    a.i("v_lshlrev_b32 v13, 3, v12"); a.i("v_add_u32 v13, s25, v13")
    a.i(f"s_mov_b32 s24, {WS_GB}"); a.i("buffer_load_dwordx2 v[206:207], v13, s[20:23], s24 offen")
    a.i("v_lshrrev_b32 v13, 16, v9")
    a.i("v_and_b32 v14, 0x8000, v13"); a.i("v_cmp_ne_u32 vcc, 0, v14")
    a.i("v_xor_b32 v14, 0x8000, v13"); a.i("v_xor_b32 v15, 0xffff, v13")
    a.i("v_cndmask_b32 v13, v15, v14, vcc"); a.i("v_lshlrev_b32 v208, 16, v13")
    a.label("KM_PH2")
    mstamp(a, st, 'polled')
    a.i("s_waitcnt vmcnt(0)")
    a.i("v_lshrrev_b32 v12, 4, v2")
    a.i("v_bfe_u32 v13, v2, 2, 2"); a.i("v_lshl_add_u32 v13, v12, 3, v13"); a.i("v_lshlrev_b32 v13, 5, v13")
    a.i("v_and_b32 v14, 3, v2"); a.i("v_lshl_add_u32 v13, v14, 3, v13"); a.i("v_add_u32 v13, s28, v13")
    for ks in range(14):
        for r2 in range(2):
            a.i(f"ds_read_b64_tr_b16 {vr(80 + 4 * ks + 2 * r2, 2)}, v13 offset:{1024 * ks + 128 * r2}")
        if ks % 7 == 6: a.i("s_waitcnt lgkmcnt(0)")
    a.i("v_and_b32 v5, 7, v2"); a.i("v_lshlrev_b32 v6, 4, v5"); a.i("v_lshl_add_u32 v6, v12, 7, v6")
    a.i(f"s_mul_i32 s24, s3, {14 * 512}"); a.i(f"s_add_u32 s24, s24, {WS_GU}"); a.i("s_add_u32 s29, s24, 4096")
    a.i("s_mov_b32 s26, 0x40000")
    a.label("KM_POLL")
    for ks in range(14):
        a.i(f"buffer_load_dwordx4 {vr(16 + 4 * ks, 4)}, v6, s[20:23], {'s24' if ks < 8 else 's29'} offen offset:{512 * (ks % 8)} sc1")
    a.i("s_waitcnt vmcnt(0)")
    a.i("v_max3_u32 v7, v16, v17, v18")
    for k in range(19, 71, 2): a.i(f"v_max3_u32 v7, v7, {vr(k)}, {vr(k + 1)}")
    a.i("v_max_u32 v7, v7, v71")
    a.i("v_cmp_eq_u32 vcc, -1, v7")
    a.i("s_sub_u32 s26, s26, 1"); a.i("s_cbranch_scc1 KM_GOT")
    a.i("s_cbranch_vccnz KM_POLL")
    a.label("KM_GOT")
    mstamp(a, st, 'guld')
    for ks in range(14):
        a.i(f"v_mfma_f32_16x16x32_bf16 v[72:75], {vr(80 + 4 * ks, 4)}, {vr(16 + 4 * ks, 4)}, {'0' if ks == 0 else 'v[72:75]'}")
    a.i("s_nop 7")
    a.i("v_lshlrev_b32 v3, 4, v2"); a.i("s_lshl_b32 s24, s3, 10"); a.i(f"s_add_u32 s24, s24, {L_RED}"); a.i("v_add_u32 v3, s24, v3")
    a.i("ds_write_b128 v3, v[72:75]")
    a.i("s_waitcnt lgkmcnt(0)"); a.i("s_barrier")
    a.i("s_cmp_lg_u32 s3, 0"); a.i("s_cbranch_scc1 KM_DONE")
    for w in range(1, 4): a.i(f"ds_read_b128 {vr(16 + 4 * w, 4)}, v3 offset:{1024 * w}")
    srd(a, 16, 42, 2048 * 896)
    sigmoid(a, 5, 208, 6); round_bf(a, 5, 5)
    a.i("s_waitcnt lgkmcnt(0)")
    for r in range(4):
        for w in range(1, 4): a.i(f"v_add_f32 {vr(72 + r)}, {vr(72 + r)}, {vr(16 + 4 * w + r)}")
        round_bf(a, 72 + r, 72 + r)
        a.i(f"v_mul_f32 {vr(72 + r)}, {vr(72 + r)}, v5"); round_bf(a, 72 + r, 72 + r)
    for half in range(2):
        bf_lo(a, 16 + 2 * half, 204 + half); bf_hi(a, 17 + 2 * half, 204 + half)
        bf_lo(a, 20 + 2 * half, 202 + half); bf_hi(a, 21 + 2 * half, 202 + half)
        bf_lo(a, 24 + 2 * half, 206 + half); bf_hi(a, 25 + 2 * half, 206 + half)
    for r in range(4):
        a.i(f"v_add_f32 {vr(72 + r)}, {vr(72 + r)}, {vr(16 + r)}"); round_bf(a, 72 + r, 72 + r)
        a.i(f"v_mul_f32 {vr(72 + r)}, {vr(72 + r)}, {vr(24 + r)}"); round_bf(a, 72 + r, 72 + r)
        a.i(f"v_add_f32 {vr(72 + r)}, {vr(72 + r)}, {vr(20 + r)}")
    a.i("v_cvt_pk_bf16_f32 v76, v72, v73"); a.i("v_cvt_pk_bf16_f32 v77, v74, v75")
    a.i("v_and_b32 v5, 15, v2")
    a.i("v_cmp_gt_u32 vcc, 8, v5"); a.i("s_and_saveexec_b64 s[36:37], vcc")
    a.i("buffer_store_dwordx2 v[76:77], v201, s[16:19], 0 offen")
    a.i("s_mov_b64 exec, s[36:37]")
    if HD:
        a.i("s_waitcnt vmcnt(0)"); hdbg(a, 3, 15, 48, 210, 211, wg=112)
    if st:
        a.i("s_waitcnt vmcnt(0)")
        mstamp(a, st, 'end')
        mstamps_out(a, st, 1)
    a.label("KM_DONE")
    a.i("s_endpgm")
    return kdesc(n, vgpr=216, accum=216, sgpr=96 if st else 56), NWG, L_RED + 4096
```

```python
from asmlib import *
from kern_small import (srd, bf_lo, bf_hi, round_bf, sigmoid, f2u, wave_max_u32, hdbg,
                        WS_PART, WS_X1, WS_H2, WS_R, WS_GA, WS_A2, WS_SB, WS_GB, WS_GU, WS_SYNC, WS_RR)

DBG_OWN = False
NG = 128; NEND = 160
L_W = 65536
L_CAND = 131072; L_SEL = L_CAND + 128; L_RED = L_CAND + 256; L_R = 139264; L_RG = 147456; L_MB = 147712

def wave_sum2(a, v0, v1, t0, t1):
    for ctl in ("quad_perm:[1,0,3,2]", "quad_perm:[2,3,0,1]", "row_half_mirror", "row_mirror"):
        a.i("s_nop 0")
        a.i(f"v_add_f32_dpp {vr(v0)}, {vr(v0)}, {vr(v0)} {ctl} row_mask:0xf bank_mask:0xf")
        a.i(f"v_add_f32_dpp {vr(v1)}, {vr(v1)}, {vr(v1)} {ctl} row_mask:0xf bank_mask:0xf")
    for sw in ("v_permlane16_swap_b32", "v_permlane32_swap_b32"):
        a.i(f"v_mov_b32 {vr(t0)}, {vr(v0)}"); a.i(f"v_mov_b32 {vr(t1)}, {vr(v1)}")
        a.i("s_nop 0")
        a.i(f"{sw} {vr(v0)}, {vr(t0)}"); a.i(f"{sw} {vr(v1)}, {vr(t1)}")
        a.i("s_nop 0")
        a.i(f"v_add_f32 {vr(v0)}, {vr(v0)}, {vr(t0)}"); a.i(f"v_add_f32 {vr(v1)}, {vr(v1)}, {vr(t1)}")

def tail(a, R, stamp):
    W, G, QW, WS = R['W'], R['G'], R['QW'], R['SRD_WS']
    T0, T1, T2, T3 = R['T']
    ws = sr(WS, 4)
    SX, SO, SWR, SM = 4, 8, 12, 68
    a.i(f"v_mov_b32 v5, {L_MB}"); a.i("v_mov_b32 v6, 0"); a.i("ds_write_b32 v5, v6")
    a.i("s_waitcnt vmcnt(0) lgkmcnt(0)")
    a.i("s_barrier")
    a.i(f"s_lshl_b32 {sr(T3)}, {sr(QW)}, 7"); a.i(f"s_add_u32 {sr(T3)}, {sr(T3)}, {WS_SYNC}")
    a.i(f"s_cmp_lg_u32 {sr(W)}, 0"); a.i("s_cbranch_scc1 KT_NA")
    a.i("s_mov_b64 exec, 1"); a.i(f"s_lshl_b32 {sr(T0)}, {sr(G)}, 2"); a.i(f"v_mov_b32 v5, {sr(T0)}"); a.i("v_mov_b32 v6, 1")
    a.i(f"buffer_store_dword v6, v5, {ws}, {sr(T3)} offen sc1")
    a.i("s_mov_b64 exec, -1")
    a.label("KT_NA")
    stamp('pub')
    srd(a, SX, R['P_X'], 2048 * 896); srd(a, SO, R['P_OUT'], 2048 * 896); srd(a, SWR, R['P_WR'], 896)
    a.i("v_lshlrev_b32 v1, 4, v0")
    a.i("v_cmp_gt_u32 vcc, 56, v0"); a.i("v_mov_b32 v2, 0x7fff0000"); a.i("s_nop 0")
    a.i("v_cndmask_b32 v1, v2, v1, vcc")
    a.i(f"s_lshl_b32 {sr(T0)}, {sr(QW)}, 6"); a.i(f"s_lshl_b32 {sr(T1)}, {sr(G)}, 3"); a.i(f"s_add_u32 {sr(T0)}, {sr(T0)}, {sr(T1)}")
    a.i(f"s_lshl_b32 {sr(T1)}, {sr(W)}, 1"); a.i(f"s_add_u32 s46, {sr(T0)}, {sr(T1)}")
    a.i("s_mul_i32 s47, s46, 896")
    P = lambda j, g: 16 + 32 * j + 4 * g
    XR = lambda j: 80 + 4 * j
    GA, A2, SB, GB, WR = 88, 92, 96, 100, 104
    ACC = lambda j: 112 + 8 * j
    CEN = lambda j: 128 + 8 * j
    U = 144
    POWN = 160
    for j in range(2):
        a.i(f"buffer_load_dwordx4 {vr(XR(j), 4)}, v1, {sr(SX, 4)}, s47 offen offset:{896 * j}")
    for reg, off in ((GA, WS_GA), (A2, WS_A2), (SB, WS_SB), (GB, WS_GB)):
        a.i(f"s_mov_b32 {sr(T0)}, {off}")
        a.i(f"buffer_load_dwordx4 {vr(reg, 4)}, v1, {ws}, {sr(T0)} offen")
    a.i(f"buffer_load_dwordx4 {vr(WR, 4)}, v1, {sr(SWR, 4)}, 0 offen")
    for k in range(8): a.i(f"v_mov_b32 {vr(POWN + k)}, 0")
    a.i(f"s_lshl_b32 {sr(T0)}, {sr(G)}, 3"); a.i(f"s_lshl_b32 {sr(T1)}, {sr(W)}, 1"); a.i(f"s_add_u32 {sr(T0)}, {sr(T0)}, {sr(T1)}"); a.i(f"s_mul_i32 {sr(T0)}, {sr(T0)}, 912")
    a.i(f"v_lshlrev_b32 v6, 4, v0"); a.i(f"v_add_u32 v6, {sr(T0)}, v6")
    a.i("s_mov_b32 exec_hi, 0x00ffffff")
    for j in range(2): a.i(f"ds_read_b128 {vr(POWN + 4 * j, 4)}, v6 offset:{912 * j}")
    a.i("s_mov_b32 exec_hi, -1")
    a.i("v_and_b32 v5, 7, v0"); a.i("v_lshlrev_b32 v5, 2, v5"); a.i("s_mov_b32 s26, 0x400000")
    a.i(f"s_lshl_b32 s27, 1, {sr(G)}")
    a.i(f"v_mov_b32 v7, {L_MB}")
    a.label("KT_POLL")
    a.i(f"s_cmp_lg_u32 {sr(W)}, 0"); a.i("s_cbranch_scc1 KT_PL")
    a.i(f"buffer_load_dword v6, v5, {ws}, {sr(T3)} offen sc1")
    a.i("s_waitcnt vmcnt(0)")
    a.i("v_cmp_ne_u32 vcc, 0, v6")
    a.i("s_nop 4")
    a.i("s_and_b32 s28, vcc_lo, 0xff")
    a.i("v_mov_b32 v6, s28"); a.i("ds_write_b32 v7, v6")
    a.i("s_branch KT_PJ")
    a.label("KT_PL")
    a.i("ds_read_b32 v6, v7")
    a.i("s_waitcnt lgkmcnt(0)")
    a.i("v_readfirstlane_b32 s28, v6")
    a.label("KT_PJ")
    a.i("s_andn2_b32 s29, s28, s27"); a.i("s_or_b32 s27, s27, s28")
    for g in range(8):
        a.i(f"s_bitcmp1_b32 s29, {g}"); a.i(f"s_cbranch_scc0 KT_PS{g}")
        a.i(f"s_add_u32 {sr(T0)}, s47, {WS_PART + g * 2048 * 896}")
        for j in range(2):
            a.i(f"buffer_load_dwordx4 {vr(P(j, g), 4)}, v1, {ws}, {sr(T0)} offen offset:{896 * j} sc1")
        a.label(f"KT_PS{g}")
    a.i("s_sub_u32 s26, s26, 1"); a.i("s_cbranch_scc1 KT_NP")
    a.i("s_cmp_lg_u32 s27, 0xff"); a.i("s_cbranch_scc1 KT_POLL")
    a.label("KT_NP")
    a.i("s_waitcnt lgkmcnt(0)")
    stamp('got')
    a.i("s_waitcnt vmcnt(0)")
    if DBG_OWN:
        a.i(f"s_add_u32 {sr(T0)}, s47, 0x1800000")
        for j in range(2):
            a.i(f"buffer_store_dwordx4 {vr(POWN + 4 * j, 4)}, v1, {ws}, {sr(T0)} offen offset:{896 * j}")
    for j in range(2):
        for k in range(4):
            bf_lo(a, ACC(j) + 2 * k, POWN + 4 * j + k); bf_hi(a, ACC(j) + 2 * k + 1, POWN + 4 * j + k)
    for g in range(8):
        a.i(f"s_cmp_eq_u32 {sr(G)}, {g}"); a.i(f"s_cbranch_scc1 KT_AS{g}")
        for j in range(2):
            for k in range(4):
                bf_lo(a, 4 + 2 * j, P(j, g) + k); bf_hi(a, 5 + 2 * j, P(j, g) + k)
                a.i(f"v_pk_add_f32 {vr(ACC(j) + 2 * k, 2)}, {vr(ACC(j) + 2 * k, 2)}, {vr(4 + 2 * j, 2)}")
        a.label(f"KT_AS{g}")
    stamp('sum')
    def unpack(dst, src):
        for k in range(4):
            bf_lo(a, dst + 2 * k, src + k); bf_hi(a, dst + 2 * k + 1, src + k)
    unpack(U, GA)
    for j in range(2):
        unpack(CEN(j), XR(j))
        for k in range(8):
            x = ACC(j) + k
            round_bf(a, x, x)
            a.i(f"v_mul_f32 {vr(x)}, {vr(U + k)}, {vr(x)}"); round_bf(a, x, x)
            a.i(f"v_add_f32 {vr(x)}, {vr(CEN(j) + k)}, {vr(x)}"); round_bf(a, x, x)
        for k in range(4):
            a.i(f"v_cvt_pk_bf16_f32 {vr(P(j, 0) + k)}, {vr(ACC(j) + 2 * k)}, {vr(ACC(j) + 2 * k + 1)}")
        a.i(f"s_add_u32 {sr(T0)}, s47, {WS_X1}")
        a.i(f"buffer_store_dwordx4 {vr(P(j, 0), 4)}, v1, {ws}, {sr(T0)} offen offset:{896 * j} sc1")
    for j in range(2):
        a.i(f"v_add_f32 {vr(4 + j)}, {vr(ACC(j))}, {vr(ACC(j) + 1)}")
        for k in range(2, 8): a.i(f"v_add_f32 {vr(4 + j)}, {vr(4 + j)}, {vr(ACC(j) + k)}")
    wave_sum2(a, 4, 5, 6, 7)
    a.i("v_cmp_gt_u32 vcc, 56, v0")
    for j in range(2):
        a.i(f"v_mul_f32 {vr(4 + j)}, {hex(f2u(1.0 / 448))}, {vr(4 + j)}")
        for k in range(8): a.i(f"v_sub_f32 {vr(CEN(j) + k)}, {vr(ACC(j) + k)}, {vr(4 + j)}")
        a.i(f"v_mul_f32 {vr(8 + j)}, {vr(CEN(j))}, {vr(CEN(j))}")
        for k in range(1, 8): a.i(f"v_fmac_f32 {vr(8 + j)}, {vr(CEN(j) + k)}, {vr(CEN(j) + k)}")
        a.i(f"v_cndmask_b32 {vr(8 + j)}, 0, {vr(8 + j)}, vcc")
    wave_sum2(a, 8, 9, 6, 7)
    for j in range(2):
        a.i(f"v_mul_f32 {vr(8 + j)}, {hex(f2u(1.0 / 448))}, {vr(8 + j)}")
        a.i(f"v_add_f32 {vr(8 + j)}, {hex(f2u(1e-5))}, {vr(8 + j)}")
        a.i(f"v_rsq_f32 {vr(8 + j)}, {vr(8 + j)}")
    unpack(U, A2); unpack(U + 8, SB)
    for j in range(2):
        for k in range(8):
            x = CEN(j) + k
            a.i(f"v_mul_f32 {vr(x)}, {vr(x)}, {vr(8 + j)}")
            a.i(f"v_fma_f32 {vr(x)}, {vr(x)}, {vr(U + k)}, {vr(U + 8 + k)}")
            round_bf(a, x, x)
        for k in range(4):
            a.i(f"v_cvt_pk_bf16_f32 {vr(P(j, 1) + k)}, {vr(CEN(j) + 2 * k)}, {vr(CEN(j) + 2 * k + 1)}")
        a.i(f"s_add_u32 {sr(T0)}, s47, {WS_H2}")
        a.i(f"buffer_store_dwordx4 {vr(P(j, 1), 4)}, v1, {ws}, {sr(T0)} offen offset:{896 * j} sc1")
    unpack(U, GB)
    for j in range(2):
        for k in range(8):
            t = U + 8 + k
            a.i(f"v_mul_f32 {vr(t)}, {vr(U + k)}, {vr(CEN(j) + k)}"); round_bf(a, t, t)
            a.i(f"v_add_f32 {vr(t)}, {vr(t)}, {vr(ACC(j) + k)}")
        for k in range(4):
            a.i(f"v_cvt_pk_bf16_f32 {vr(P(j, 2) + k)}, {vr(U + 8 + 2 * k)}, {vr(U + 8 + 2 * k + 1)}")
        a.i(f"buffer_store_dwordx4 {vr(P(j, 2), 4)}, v1, {sr(SO, 4)}, s47 offen offset:{896 * j} sc1")
    unpack(U, WR)
    for j in range(2):
        a.i(f"v_mul_f32 {vr(4 + j)}, {vr(CEN(j))}, {vr(U)}")
        for k in range(1, 8): a.i(f"v_fmac_f32 {vr(4 + j)}, {vr(CEN(j) + k)}, {vr(U + k)}")
    wave_sum2(a, 4, 5, 6, 7)
    round_bf(a, 4, 4); round_bf(a, 5, 5)
    a.i("s_waitcnt vmcnt(0)")
    a.i(f"s_lshl_b32 {sr(T0)}, {sr(W)}, 3"); a.i(f"s_add_u32 {sr(T0)}, {sr(T0)}, {L_RG}"); a.i(f"v_mov_b32 v8, {sr(T0)}")
    a.i("s_mov_b64 exec, 1")
    a.i("ds_write_b64 v8, v[4:5]")
    a.i("s_mov_b64 exec, -1")
    a.i("s_waitcnt lgkmcnt(0)"); a.i("s_barrier")
    a.i(f"s_cmp_lg_u32 {sr(W)}, 0"); a.i("s_cbranch_scc1 KT_NR")
    a.i("v_and_b32 v8, 1, v0"); a.i("v_lshlrev_b32 v8, 4, v8"); a.i(f"v_add_u32 v9, {L_RG}, v8")
    a.i("ds_read_b128 v[4:7], v9")
    a.i("v_lshrrev_b32 v9, 1, v0"); a.i("v_lshl_add_u32 v8, v9, 13, v8")
    a.i(f"s_lshl_b32 {sr(T0)}, s46, 2"); a.i(f"s_add_u32 {sr(T0)}, {sr(T0)}, {WS_RR}")
    a.i("s_waitcnt lgkmcnt(0)")
    a.i("s_mov_b64 exec, 0xffff")
    a.i(f"buffer_store_dwordx4 v[4:7], v8, {ws}, {sr(T0)} offen sc1")
    a.i("s_mov_b64 exec, -1")
    a.label("KT_NR")
    stamp('r')
    a.i("s_and_b32 s24, s2, 7"); a.i("s_lshr_b32 s25, s2, 3")
    a.i(f"s_cmp_ge_u32 s2, {NEND}"); a.i("s_cbranch_scc1 K1_TE")
    a.i(f"s_cmp_ge_u32 s2, {NG}"); a.i("s_cbranch_scc1 KT_RD")
    a.i("s_lshr_b32 s26, s25, 2"); a.i("s_lshl_b32 s26, s26, 3"); a.i("s_add_u32 s26, s26, s24")
    a.i("s_cmp_ge_u32 s26, 28"); a.i("s_cbranch_scc1 K1_TE")
    a.i("s_lshl_b32 s26, s26, 2"); a.i("s_and_b32 s25, s25, 3"); a.i("s_add_u32 s45, s26, s25")
    a.i("s_branch KT_RJ")
    a.label("KT_RD")
    a.i("s_cmp_ge_u32 s24, 7"); a.i("s_cbranch_scc1 K1_TE")
    a.i(f"s_sub_u32 s25, s25, {NG // 8}"); a.i("s_lshl_b32 s24, s24, 2"); a.i("s_add_u32 s45, s24, s25")
    a.label("KT_RJ")
    a.i("s_lshl_b32 s25, s45, 5")
    a.i("v_mov_b32 v201, 0x7fffffff")
    a.i(f"s_cmp_eq_u32 {sr(W)}, 0"); a.i("s_cbranch_scc1 KT_RP0")
    a.i("v_lshrrev_b32 v4, 1, v0"); a.i("v_and_b32 v6, 1, v0")
    a.i(f"s_sub_u32 s26, {sr(W)}, 1")
    a.i(f"s_cmp_ge_u32 s2, {NG}"); a.i("s_cbranch_scc1 KT_SD")
    a.i("v_mul_u32_u24 v5, 3584, v4"); a.i("v_lshl_add_u32 v5, v6, 4, v5"); a.i("v_add_u32 v5, s25, v5")
    a.i(f"s_mov_b32 {sr(SM + 2)}, {448 * 3584}"); a.i(f"s_mov_b32 {sr(SM + 3)}, 0x20000")
    a.label("KT_GL")
    a.i("s_cmp_ge_u32 s26, 14")
    a.i(f"s_cselect_b32 {sr(SM)}, {sr(R['P_WU'])}, {sr(R['P_WG'])}"); a.i(f"s_cselect_b32 {sr(SM + 1)}, {sr(R['P_WU'] + 1)}, {sr(R['P_WG'] + 1)}")
    a.i("s_cselect_b32 s27, 14, 0"); a.i("s_sub_u32 s27, s26, s27"); a.i(f"s_mul_i32 s27, s27, {32 * 3584}")
    a.i("s_lshl_b32 s28, s26, 10"); a.i(f"s_add_u32 m0, s28, {L_W}")
    a.i("s_add_u32 s26, s26, 3")
    a.i(f"buffer_load_dwordx4 v5, {sr(SM, 4)}, s27 offen lds")
    a.i("s_cmp_lt_u32 s26, 28"); a.i("s_cbranch_scc1 KT_GL")
    a.i("s_branch KT_RB")
    a.label("KT_SD")
    srd(a, SM, R['P_WD'], 1792 * 896)
    a.i("v_mul_u32_u24 v5, 896, v4"); a.i("v_lshl_add_u32 v5, v6, 4, v5"); a.i("v_add_u32 v5, s25, v5")
    a.label("KT_DL")
    a.i(f"s_mul_i32 s27, s26, {32 * 896}")
    a.i("s_lshl_b32 s28, s26, 10"); a.i(f"s_add_u32 m0, s28, {L_W}")
    a.i("s_add_u32 s26, s26, 3")
    a.i(f"buffer_load_dwordx4 v5, {sr(SM, 4)}, s27 offen lds")
    a.i("s_cmp_lt_u32 s26, 56"); a.i("s_cbranch_scc1 KT_DL")
    a.i("s_branch KT_RB")
    a.label("KT_RP0")
    a.i("v_lshlrev_b32 v3, 4, v0"); a.i("s_and_b32 s24, s2, 7"); a.i("s_lshl_b32 s24, s24, 13"); a.i(f"s_add_u32 s24, s24, {WS_RR}")
    a.i(f"s_add_u32 s27, s24, 4096"); a.i("s_mov_b32 s26, 0x40000")
    a.label("KT_RPOLL")
    for i in range(8):
        a.i(f"buffer_load_dwordx4 {vr(16 + 4 * i, 4)}, v3, {ws}, {'s24' if i < 4 else 's27'} offen offset:{1024 * (i & 3)} sc1")
    a.i("s_waitcnt vmcnt(0)")
    a.i("v_max3_u32 v7, v16, v17, v18")
    for k in range(19, 47, 2): a.i(f"v_max3_u32 v7, v7, {vr(k)}, {vr(k + 1)}")
    a.i("v_max_u32 v7, v7, v47")
    a.i("v_cmp_eq_u32 vcc, -1, v7")
    a.i("s_sub_u32 s26, s26, 1"); a.i("s_cbranch_scc1 KT_RGOT")
    a.i("s_cbranch_vccnz KT_RPOLL")
    a.label("KT_RGOT")
    a.i(f"v_add_u32 v3, {L_R}, v3")
    for i in range(8): a.i(f"ds_write_b128 v3, {vr(16 + 4 * i, 4)} offset:{1024 * i}")
    a.i("s_waitcnt lgkmcnt(0)")
    a.label("KT_RB")
    a.i("s_barrier")
    a.i(f"s_lshl_b32 {sr(T0)}, {sr(W)}, 6"); a.i(f"v_add_u32 v10, {sr(T0)}, v0")
    a.i(f"v_lshlrev_b32 v3, 5, v10"); a.i(f"v_add_u32 v3, {L_R}, v3")
    a.i("ds_read_b128 v[16:19], v3"); a.i("ds_read_b128 v[20:23], v3 offset:16")
    a.i("s_waitcnt lgkmcnt(0)")
    stamp('rall')
    a.i("v_lshlrev_b32 v6, 3, v10"); a.i("v_sub_u32 v6, 2047, v6")
    for j in range(8):
        k = 16 + j
        a.i(f"v_ashrrev_i32 v7, 31, {vr(k)}")
        a.i("v_or_b32 v7, 0x80000000, v7")
        a.i(f"v_xor_b32 {vr(k)}, {vr(k)}, v7")
        a.i(f"v_and_b32 {vr(k)}, 0xffff0000, {vr(k)}")
        a.i(f"v_subrev_u32 v7, {j}, v6")
        a.i(f"v_or_b32 {vr(k)}, {vr(k)}, v7")
    net = [(0,1),(2,3),(4,5),(6,7),(0,2),(1,3),(4,6),(5,7),(1,2),(5,6),(0,4),(3,7),(1,5),(2,6),(1,4),(3,6),(2,4),(3,5),(3,4)]
    for x, y in net:
        a.i(f"v_max_u32 v7, {vr(16 + x)}, {vr(16 + y)}")
        a.i(f"v_min_u32 {vr(16 + y)}, {vr(16 + x)}, {vr(16 + y)}")
        a.i(f"v_mov_b32 {vr(16 + x)}, v7")
    a.i("v_mov_b32 v9, 0")
    for rnd in range(8):
        a.i("v_mov_b32 v8, v16")
        wave_max_u32(a, 8, 7)
        a.i(f"v_cmp_eq_u32 s[30:31], {rnd}, v0")
        if rnd < 7:
            a.i("v_cmp_eq_u32 vcc, v16, v8")
            a.i("s_nop 1")
            for j in range(7 - rnd):
                a.i(f"v_cndmask_b32 {vr(16 + j)}, {vr(16 + j)}, {vr(17 + j)}, vcc")
        else:
            a.i("s_nop 1")
        a.i("v_cndmask_b32 v9, v9, v8, s[30:31]")
    a.i(f"s_lshl_b32 s29, {sr(W)}, 5"); a.i("v_lshl_add_u32 v7, v0, 2, s29"); a.i(f"v_add_u32 v7, {L_CAND}, v7")
    a.i("v_cmp_gt_u32 vcc, 8, v0"); a.i("s_and_saveexec_b64 s[36:37], vcc")
    a.i("ds_write_b32 v7, v9")
    a.i("s_mov_b64 exec, s[36:37]")
    a.i("s_waitcnt lgkmcnt(0)")
    a.i("s_barrier")
    a.i("v_lshrrev_b32 v12, 4, v0")
    a.i(f"s_cmp_lg_u32 {sr(W)}, 0"); a.i("s_cbranch_scc1 KT_OTH")
    a.i("v_and_b32 v7, 31, v0"); a.i("v_lshlrev_b32 v7, 2, v7"); a.i(f"v_add_u32 v7, {L_CAND}, v7")
    a.i("ds_read_b32 v9, v7")
    a.i(f"v_mov_b32 v10, {L_CAND}")
    for j in range(8): a.i(f"ds_read_b128 {vr(16 + 4 * j, 4)}, v10 offset:{16 * j}")
    a.i("s_waitcnt lgkmcnt(0)")
    a.i("v_mov_b32 v11, 0")
    for j in range(0, 32, 2):
        a.i(f"v_cmp_gt_u32 s[32:33], {vr(16 + j)}, v9")
        a.i(f"v_cmp_gt_u32 s[34:35], {vr(17 + j)}, v9")
        a.i("s_nop 0")
        a.i("v_addc_co_u32 v11, vcc, 0, v11, s[32:33]")
        a.i("v_addc_co_u32 v11, vcc, 0, v11, s[34:35]")
    a.i("v_cmp_gt_u32 s[32:33], 8, v11"); a.i("v_cmp_gt_u32 s[34:35], 32, v0")
    a.i("s_and_b64 s[32:33], s[32:33], s[34:35]")
    a.i("v_lshlrev_b32 v11, 2, v11"); a.i(f"v_add_u32 v11, {L_SEL}, v11")
    a.i("s_and_saveexec_b64 s[36:37], s[32:33]")
    a.i("ds_write_b32 v11, v9")
    a.i("s_mov_b64 exec, s[36:37]")
    a.i("s_waitcnt lgkmcnt(0)")
    a.i("v_and_b32 v7, 7, v0"); a.i("v_lshlrev_b32 v7, 2, v7"); a.i(f"v_add_u32 v7, {L_SEL}, v7")
    a.i("ds_read_b32 v9, v7")
    a.i("s_waitcnt lgkmcnt(0)")
    stamp('idx')
    a.i("v_and_b32 v10, 0xffff, v9"); a.i("v_sub_u32 v10, 2047, v10")
    a.i("v_mul_u32_u24 v11, 896, v10")
    a.i(f"s_cmp_ge_u32 s2, {NG}"); a.i("s_cbranch_scc1 KT_DN0")
    a.i("v_lshl_add_u32 v200, v12, 4, v11")
    a.i(f"s_mov_b32 s24, {WS_H2}")
    for ks in range(14):
        a.i(f"buffer_load_dwordx4 {vr(16 + 4 * ks, 4)}, v200, {ws}, s24 offen offset:{64 * ks} sc1")
    a.i("s_barrier")
    a.i("v_bfe_u32 v13, v0, 2, 2"); a.i("v_lshl_add_u32 v13, v12, 3, v13"); a.i("v_lshlrev_b32 v13, 5, v13")
    a.i("v_and_b32 v14, 3, v0"); a.i("v_lshl_add_u32 v13, v14, 3, v13"); a.i(f"v_add_u32 v13, {L_W}, v13")
    for m in range(2):
        for ks in range(14):
            for r2 in range(2):
                a.i(f"ds_read_b64_tr_b16 {vr(80 + 56 * m + 4 * ks + 2 * r2, 2)}, v13 offset:{14336 * m + 1024 * ks + 128 * r2}")
            if ks % 7 == 6: a.i("s_waitcnt lgkmcnt(0)")
    a.i("s_waitcnt vmcnt(0)")
    for ks in range(14):
        for m in range(2):
            acc = vr(72 + 4 * m, 4)
            a.i(f"v_mfma_f32_16x16x32_bf16 {acc}, {vr(80 + 56 * m + 4 * ks, 4)}, {vr(16 + 4 * ks, 4)}, {'0' if ks == 0 else acc}")
    a.i("s_nop 7")
    for r in range(4):
        round_bf(a, 72 + r, 72 + r); round_bf(a, 76 + r, 76 + r)
        sigmoid(a, 5, 72 + r, 6)
        a.i(f"v_mul_f32 {vr(72 + r)}, {vr(72 + r)}, v5"); round_bf(a, 72 + r, 72 + r)
        a.i(f"v_mul_f32 {vr(72 + r)}, {vr(72 + r)}, {vr(76 + r)}")
    a.i("v_cvt_pk_bf16_f32 v76, v72, v73"); a.i("v_cvt_pk_bf16_f32 v77, v74, v75")
    a.i("v_and_b32 v5, 15, v0"); a.i("v_lshlrev_b32 v6, 4, v5")
    a.i("v_lshrrev_b32 v7, 1, v12"); a.i("v_lshl_add_u32 v6, v7, 7, v6"); a.i("v_and_b32 v7, 1, v12"); a.i("v_lshl_add_u32 v6, v7, 3, v6")
    a.i("s_lshr_b32 s24, s45, 1"); a.i("s_lshl_b32 s24, s24, 9"); a.i("s_and_b32 s26, s45, 1"); a.i("s_lshl_b32 s26, s26, 8")
    a.i("s_add_u32 s24, s24, s26"); a.i(f"s_add_u32 s24, s24, {WS_GU}")
    a.i("v_cmp_gt_u32 vcc, 8, v5"); a.i("s_and_saveexec_b64 s[36:37], vcc")
    a.i(f"buffer_store_dwordx2 v[76:77], v6, {ws}, s24 offen sc1")
    a.i("s_mov_b64 exec, s[36:37]")
    stamp('gu')
    a.i("s_branch K1_TE")
    a.label("KT_OTH")
    a.i("s_waitcnt vmcnt(0)")
    a.i(f"s_cmp_ge_u32 s2, {NG}"); a.i("s_cbranch_scc1 KT_PH2")
    a.i("s_barrier")
    a.i("s_branch K1_TE")
    a.label("KT_DN0")
    a.i("v_lshl_add_u32 v201, v12, 3, v11"); a.i("v_add_u32 v201, s25, v201")
    a.i(f"s_mov_b32 s24, {WS_X1}"); a.i(f"buffer_load_dwordx2 v[202:203], v201, {ws}, s24 offen sc1")
    a.i(f"s_mov_b32 s24, {WS_H2}"); a.i(f"buffer_load_dwordx2 v[204:205], v201, {ws}, s24 offen sc1")
    a.i("v_lshlrev_b32 v13, 3, v12"); a.i("v_add_u32 v13, s25, v13")
    a.i(f"s_mov_b32 s24, {WS_GB}"); a.i(f"buffer_load_dwordx2 v[206:207], v13, {ws}, s24 offen")
    a.i("v_lshrrev_b32 v13, 16, v9")
    a.i("v_and_b32 v14, 0x8000, v13"); a.i("v_cmp_ne_u32 vcc, 0, v14")
    a.i("v_xor_b32 v14, 0x8000, v13"); a.i("v_xor_b32 v15, 0xffff, v13")
    a.i("v_cndmask_b32 v13, v15, v14, vcc"); a.i("v_lshlrev_b32 v208, 16, v13")
    a.label("KT_PH2")
    a.i("s_barrier")
    a.i(f"s_mul_i32 s28, {sr(W)}, 14336"); a.i(f"s_add_u32 s28, s28, {L_W}")
    a.i("v_bfe_u32 v13, v0, 2, 2"); a.i("v_lshl_add_u32 v13, v12, 3, v13"); a.i("v_lshlrev_b32 v13, 5, v13")
    a.i("v_and_b32 v14, 3, v0"); a.i("v_lshl_add_u32 v13, v14, 3, v13"); a.i("v_add_u32 v13, s28, v13")
    for ks in range(14):
        for r2 in range(2):
            a.i(f"ds_read_b64_tr_b16 {vr(80 + 4 * ks + 2 * r2, 2)}, v13 offset:{1024 * ks + 128 * r2}")
        if ks % 7 == 6: a.i("s_waitcnt lgkmcnt(0)")
    a.i("v_and_b32 v5, 7, v0"); a.i("v_lshlrev_b32 v6, 4, v5"); a.i("v_lshl_add_u32 v6, v12, 7, v6")
    a.i(f"s_mul_i32 s24, {sr(W)}, {14 * 512}"); a.i(f"s_add_u32 s24, s24, {WS_GU}"); a.i("s_add_u32 s29, s24, 4096")
    a.i("s_mov_b32 s26, 0x40000")
    a.label("KT_GPOLL")
    for ks in range(14):
        a.i(f"buffer_load_dwordx4 {vr(16 + 4 * ks, 4)}, v6, {ws}, {'s24' if ks < 8 else 's29'} offen offset:{512 * (ks % 8)} sc1")
    a.i("s_waitcnt vmcnt(0)")
    a.i("v_max3_u32 v7, v16, v17, v18")
    for k in range(19, 71, 2): a.i(f"v_max3_u32 v7, v7, {vr(k)}, {vr(k + 1)}")
    a.i("v_max_u32 v7, v7, v71")
    a.i("v_cmp_eq_u32 vcc, -1, v7")
    a.i("s_sub_u32 s26, s26, 1"); a.i("s_cbranch_scc1 KT_GGOT")
    a.i("s_cbranch_vccnz KT_GPOLL")
    a.label("KT_GGOT")
    for ks in range(14):
        a.i(f"v_mfma_f32_16x16x32_bf16 v[72:75], {vr(80 + 4 * ks, 4)}, {vr(16 + 4 * ks, 4)}, {'0' if ks == 0 else 'v[72:75]'}")
    a.i("s_nop 7")
    a.i("v_lshlrev_b32 v3, 4, v0"); a.i(f"s_lshl_b32 s24, {sr(W)}, 10"); a.i(f"s_add_u32 s24, s24, {L_RED}"); a.i("v_add_u32 v3, s24, v3")
    a.i("ds_write_b128 v3, v[72:75]")
    a.i("s_waitcnt lgkmcnt(0)"); a.i("s_barrier")
    a.i(f"s_cmp_lg_u32 {sr(W)}, 0"); a.i("s_cbranch_scc1 K1_TE")
    for w in range(1, 4): a.i(f"ds_read_b128 {vr(16 + 4 * w, 4)}, v3 offset:{1024 * w}")
    sigmoid(a, 5, 208, 6); round_bf(a, 5, 5)
    a.i("s_waitcnt lgkmcnt(0)")
    for r in range(4):
        for w in range(1, 4): a.i(f"v_add_f32 {vr(72 + r)}, {vr(72 + r)}, {vr(16 + 4 * w + r)}")
        round_bf(a, 72 + r, 72 + r)
        a.i(f"v_mul_f32 {vr(72 + r)}, {vr(72 + r)}, v5"); round_bf(a, 72 + r, 72 + r)
    for half in range(2):
        bf_lo(a, 16 + 2 * half, 204 + half); bf_hi(a, 17 + 2 * half, 204 + half)
        bf_lo(a, 20 + 2 * half, 202 + half); bf_hi(a, 21 + 2 * half, 202 + half)
        bf_lo(a, 24 + 2 * half, 206 + half); bf_hi(a, 25 + 2 * half, 206 + half)
    for r in range(4):
        a.i(f"v_add_f32 {vr(72 + r)}, {vr(72 + r)}, {vr(16 + r)}"); round_bf(a, 72 + r, 72 + r)
        a.i(f"v_mul_f32 {vr(72 + r)}, {vr(72 + r)}, {vr(24 + r)}"); round_bf(a, 72 + r, 72 + r)
        a.i(f"v_add_f32 {vr(72 + r)}, {vr(72 + r)}, {vr(20 + r)}")
    a.i("v_cvt_pk_bf16_f32 v76, v72, v73"); a.i("v_cvt_pk_bf16_f32 v77, v74, v75")
    a.i("v_and_b32 v5, 15, v0")
    a.i("v_cmp_gt_u32 vcc, 8, v5"); a.i("s_and_saveexec_b64 s[36:37], vcc")
    a.i(f"buffer_store_dwordx2 v[76:77], v201, {sr(SO, 4)}, 0 offen sc1")
    a.i("s_mov_b64 exec, s[36:37]")
    stamp('fin')
```

```python
import sys
from asmlib import *
import kern_small as ks, kern_attn as ka
from core16 import Cfg

HEADER = open('adaLN_cond__gqa_block_cached__moe_arch_mod__prompt.s.ref').read().split('; Override launch geometry')[0]

def gen(cfg):
    import kern_tail
    kern_tail.DBG_OWN = getattr(cfg, 'dbg_own', False)
    import core16
    core16.PKSUM = getattr(cfg, 'pksum', False)
    ka.FAKE32 = getattr(cfg, 'fake32', False)
    ka.SKEW = getattr(cfg, 'skew', 0)
    ka.NGX = getattr(cfg, 'ngx', 1)
    ka.FUSE = getattr(cfg, 'fuse', True)
    ks.HD = getattr(cfg, 'stamps', 0) == 2
    ka.WARM_MOE = getattr(cfg, 'warm_moe', True)
    a = Asm()
    body = Asm()
    descs = []
    descs.append(ks.gen_k0(body, getattr(cfg, 'codewarm', 0)))
    d, n1, l1 = ka.gen_k1(body, cfg); descs.append(d)
    if not ka.FUSE:
        descs.append(ks.gen_k2(body))
        d, n3, l3 = ks.gen_moe(body, getattr(cfg, 'mst', False)); descs.append(d)
    body.label('ALL_END')
    hdr = HEADER
    hdr += "; @launch kernel=mod_kernel grid=(260,1,1) block=(256,1,1) lds=8192\n"
    hdr += f"; @launch kernel=attn_kernel grid=({n1},1,1) block=(256,1,1) lds={l1}\n"
    if not ka.FUSE:
        hdr += "; @launch kernel=red_kernel grid=(256,1,1) block=(512,1,1) lds=0\n"
        hdr += f"; @launch kernel=moe_kernel grid=({n3},1,1) block=(256,1,1) lds={l3}\n"
    hdr += '.amdgcn_target "amdgcn-amd-amdhsa--gfx950"\n.text\n'
    txt = hdr + body.text()
    for d in descs: txt += d
    return txt

if __name__ == "__main__":
    cfg = Cfg()
    for o in sys.argv[2:]:
        k, v = o.split("="); setattr(cfg, k, eval(v))
    open(sys.argv[1], "w").write(gen(cfg))
```
